```python
import torch

def _softmax(x, axis=-1):
    return torch.softmax(x, dim=axis)
def _gelu(x):
    return torch.nn.functional.gelu(x, approximate="tanh")
def _silu(x):
    return torch.nn.functional.silu(x)
def _sigmoid(x):
    return torch.sigmoid(x)
def _layernorm(x, axis=-1, eps=1e-5):
    m = x.mean(dim=axis, keepdim=True)
    v = x.var(dim=axis, keepdim=True, unbiased=False)
    return (x - m) / torch.sqrt(v + eps)
def _scatter_add(tgt, idx, src, axis=0):
    return tgt.clone().index_add_(axis, idx, src)
def _segment_sum(src, seg, n):
    out = torch.zeros((n,) + src.shape[1:], dtype=src.dtype)
    return out.index_add_(0, seg, src)
def _pad(x, pw):
    flat = tuple(v for pair in reversed(pw) for v in pair)
    return torch.nn.functional.pad(x, flat)

kernel_name = 'sequential_preLN__ssm_conv_s4__dense_activation_mish__prompt'

def setup_inputs():

    _w = (lambda a: (lambda t: t.to(torch.bfloat16) if t.is_floating_point() else t)(torch.as_tensor(a)))
    def _A_setup():
        B, L, D, N = 1, 2048, 640, 128
        A_re = -(lambda _x: torch.exp(torch.as_tensor(_x)))((lambda *s: torch.randn(*s, dtype=torch.bfloat16) * 6.4)(D, N))
        A_im = torch.pi * (lambda *s: torch.randn(*s, dtype=torch.bfloat16) * 0.05)(D, N)
        B_re = (lambda *s: torch.randn(*s, dtype=torch.bfloat16) * 0.1)(D, N)
        B_im = (lambda *s: torch.randn(*s, dtype=torch.bfloat16) * 0.1)(D, N)
        C_re = (lambda *s: torch.randn(*s, dtype=torch.bfloat16) * 0.1)(D, N)
        C_im = (lambda *s: torch.randn(*s, dtype=torch.bfloat16) * 0.1)(D, N)
        log_dt = (lambda *s: torch.randn(*s, dtype=torch.bfloat16) * 0.05)(D) * 0.5 - 4.0
        Dskip = (lambda *s: torch.randn(*s, dtype=torch.bfloat16) * 0.05)(D)
        return {
            "u": _w((lambda *s: torch.randn(*s, dtype=torch.bfloat16) * 0.05)(B, L, D)),
            "A_re": _w(A_re),
            "A_im": _w(A_im),
            "B_re": _w(B_re),
            "B_im": _w(B_im),
            "C_re": _w(C_re),
            "C_im": _w(C_im),
            "log_dt": _w(log_dt),
            "Dskip": _w(Dskip),
        }
    _A_in = _A_setup()

    def _B_setup():
        B, S, D, F = 1, 2048, 640, 1728
        return {
            "x": _w((lambda *s: torch.randn(*s, dtype=torch.bfloat16) * 0.05)(B, S, D)),
            "w1": _w((lambda *s: torch.randn(*s, dtype=torch.bfloat16) * 0.8)(D, F) * (D ** -0.5)),
            "b1": _w((lambda *s: torch.randn(*s, dtype=torch.bfloat16) * 0.2)(F)),
            "w2": _w((lambda *s: torch.randn(*s, dtype=torch.bfloat16) * 0.2)(F, D) * (F ** -0.5)),
        }
    _B_in = _B_setup()

    return {
        "A_u": _A_in["u"],
        "A_A_re": _A_in["A_re"],
        "A_A_im": _A_in["A_im"],
        "A_B_re": _A_in["B_re"],
        "A_B_im": _A_in["B_im"],
        "A_C_re": _A_in["C_re"],
        "A_C_im": _A_in["C_im"],
        "A_log_dt": _A_in["log_dt"],
        "A_Dskip": _A_in["Dskip"],
        "B_x": _B_in["x"],
        "B_w1": _B_in["w1"],
        "B_b1": _B_in["b1"],
        "B_w2": _B_in["w2"],
    }

def reference(A_u, A_A_re, A_A_im, A_B_re, A_B_im, A_C_re, A_C_im, A_log_dt, A_Dskip, B_x, B_w1, B_b1, B_w2):
    def _A_ref(u, A_re, A_im, B_re, B_im, C_re, C_im, log_dt, Dskip):
        Bsz, L, D = u.shape
        dt = torch.exp(log_dt)[:, None]
        A = A_re + 1j * A_im
        Bc = B_re + 1j * B_im
        Cc = C_re + 1j * C_im
        logdA = dt * A
        dB = dt * Bc
        l = (lambda x, dt: x.to(dt))(torch.arange(L), A_re.dtype)
        P = torch.exp(logdA[:, :, None] * l[None, None, :])
        K = torch.einsum("dn,dnl,dn->dl", Cc, P, dB).real
        L2 = 2 * L
        Kp = _pad(K, ((0, 0), (0, L)))
        up = (lambda x, *d: x.permute(*d))(u, 0, 2, 1)
        up = _pad(up, ((0, 0), (0, 0), (0, L)))
        Kf = (lambda x, axes=(-2,-1): torch.fft.rfft2(x.float(), dim=axes))(Kp[:, None, :], axes=(-2, -1))
        Uf = (lambda x, axes=(-2,-1): torch.fft.rfft2(x.float(), dim=axes))(up[:, :, None, :], axes=(-2, -1))
        Yf = Uf * Kf[None, :, :, :]
        y = (lambda x, s, axes=(-2,-1): torch.fft.irfft2(x, s=s, dim=axes).to(torch.bfloat16))(Yf, (1, L2), axes=(-2, -1))[:, :, 0, :L]
        y = (lambda x, *d: x.permute(*d))(y, 0, 2, 1) + u * Dskip[None, None, :]
        return y

    def _B_ref(x, w1, b1, w2):
        h = torch.einsum("bsd,df->bsf", x, w1) + b1
        sp = torch.log1p(torch.exp(-torch.abs(h))) + torch.where(h > 0, h, torch.zeros_like(h))
        act = h * torch.tanh(sp)
        return torch.einsum("bsf,fd->bsd", act, w2)

    x = A_u
    h = x + _A_ref(_layernorm(x, axis=-1), A_A_re, A_A_im, A_B_re, A_B_im, A_C_re, A_C_im, A_log_dt, A_Dskip)
    h2 = h + _B_ref(_layernorm(h, axis=-1), B_w1, B_b1, B_w2)
    return h2
```

```python
import re

def regs_of(tok):
    tok = tok.strip()
    neg = tok.lstrip('-')
    if neg.startswith('abs(') and neg.endswith(')'): neg = neg[4:-1]
    if neg.startswith('|') and neg.endswith('|'): neg = neg[1:-1]
    m = re.fullmatch(r'([vsa])(\d+)', neg)
    if m: return {(m.group(1), int(m.group(2)))}
    m = re.fullmatch(r'([vsa])\[(\d+):(\d+)\]', neg)
    if m: return {(m.group(1), i) for i in range(int(m.group(2)), int(m.group(3))+1)}
    if neg == 'vcc': return {('s', 'vcc_lo'), ('s', 'vcc_hi')}
    if neg in ('vcc_lo', 'vcc_hi'): return {('s', neg)}
    if neg == 'exec': return {('s', 'exec_lo'), ('s', 'exec_hi')}
    if neg in ('exec_lo','exec_hi'): return {('s', neg)}
    if neg == 'm0': return {('s', 'm0')}
    return set()

TRANS = ('v_exp_f32','v_log_f32','v_rcp_f32','v_rsq_f32','v_sqrt_f32','v_sin_f32','v_cos_f32','v_rcp_iflag_f32')

class Ins:
    def __init__(self, op, ops=(), mods='', comment=''):
        self.op = op; self.ops = [str(o) for o in ops]; self.mods = mods; self.comment = comment
        self.label = None; self.raw = None
        self.classify()
    def text(self):
        if self.raw is not None: return self.raw
        s = '    ' + self.op
        if self.ops: s += ' ' + ', '.join(self.ops)
        if self.mods: s += ' ' + self.mods
        if self.comment: s += '    ; ' + self.comment
        return s
    def classify(self):
        op = self.op; o = self.ops
        self.dst = set(); self.src = set(); self.srcC = set(); self.srcAB = set(); self.passes = 0
        self.is_dpp = ('row_' in self.mods or 'quad_perm' in self.mods or 'wave_' in self.mods or op.endswith('_dpp'))
        R = regs_of
        if op.startswith('v_mfma') or op.startswith('v_smfma'):
            self.kind = 'mfma'
            self.dst = R(o[0]); self.srcAB = R(o[1]) | R(o[2]); self.srcC = R(o[3]); self.src = self.srcAB | self.srcC
            if '32x32x16' in op or '32x32x8' in op or '32x32x32_i8' in op: self.passes = 8
            elif '16x16x32' in op or '16x16x16' in op: self.passes = 4
            elif op == 'v_mfma_f32_32x32x2_f32': self.passes = 16
            elif op == 'v_mfma_f32_16x16x4_f32': self.passes = 8
            else: raise ValueError(op)
        elif op.startswith('v_cmp'):
            self.kind = 'valu'
            self.dst = R(o[0])
            for x in o[1:]: self.src |= R(x)
            if op.startswith('v_cmpx'): self.dst |= R('exec')
        elif op in ('v_readfirstlane_b32','v_readlane_b32'):
            self.kind = 'valu'; self.dst = R(o[0])
            for x in o[1:]: self.src |= R(x)
        elif op.startswith('v_permlane') and 'swap' in op:
            self.kind = 'valu'; self.dst = R(o[0]) | R(o[1]); self.src = R(o[0]) | R(o[1])
        elif op.startswith('v_'):
            self.kind = 'valu'
            self.dst = R(o[0])
            rest = o[1:]
            if op.startswith(('v_add_co','v_sub_co','v_addc_co','v_subb_co','v_subrev_co','v_div_scale','v_mad_u64_u32')):
                self.dst |= R(o[1]); rest = o[2:]
            for x in rest: self.src |= R(x)
            if op.startswith(('v_fmac','v_mac','v_dot2c','v_pk_fmac','v_writelane')) or self.is_dpp or 'UNUSED_PRESERVE' in self.mods or ('op_sel' in self.mods and op.startswith('v_cvt')):
                self.src |= R(o[0])
            if op.startswith('v_cndmask') and len(o) == 3: self.src |= R('vcc')
            if op in ('v_div_fmas_f32',): self.src |= R('vcc')
        elif op.startswith('ds_'):
            self.kind = 'ds'
            if op.startswith(('ds_read','ds_bpermute','ds_permute','ds_swizzle')) or '_rtn' in op:
                self.dst = R(o[0])
                for x in o[1:]: self.src |= R(x)
            else:
                for x in o: self.src |= R(x)
        elif op.startswith(('buffer_','global_','flat_')):
            self.kind = 'vmem'
            lds = (' lds' in (' '+self.mods)) or '_lds_' in op
            if op in ('buffer_wbl2','buffer_inv'):
                pass
            elif op.startswith(('buffer_load','global_load','flat_load')) and not lds:
                self.dst = R(o[0])
                for x in o[1:]: self.src |= R(x)
            elif op.startswith('buffer_atomic') and 'sc0' in self.mods:
                self.dst = R(o[0])
                for x in o: self.src |= R(x)
            elif op.startswith('global_atomic') and 'sc0' in self.mods:
                self.dst = R(o[0])
                for x in o[1:]: self.src |= R(x)
            else:
                for x in o: self.src |= R(x)
                if lds: self.src |= R('m0')
        elif op.startswith('s_'):
            self.kind = 'salu'
            if op in ('s_waitcnt','s_nop','s_barrier','s_endpgm','s_branch','s_setprio','s_sleep') or op.startswith('s_cbranch'):
                self.kind = 'sctl'
            elif op.startswith('s_cmp') or op.startswith('s_bitcmp'):
                for x in o: self.src |= R(x)
            elif op.startswith(('s_load','s_buffer_load','s_memtime','s_memrealtime')):
                self.kind = 'smem'
                self.dst = R(o[0])
                for x in o[1:]: self.src |= R(x)
            else:
                self.dst = R(o[0])
                for x in o[1:]: self.src |= R(x)
                if 'saveexec' in op: self.dst |= R('exec'); self.src |= R('exec')
        else:
            raise ValueError('unknown op '+op)
    def states(self):
        if self.op == 's_nop': return int(self.ops[0], 0) + 1
        return 1

def vonly(rs): return {r for r in rs if r[0] in 'va'}
def sonly(rs): return {r for r in rs if r[0] == 's'}

def need(prod, cons):
    n = 0
    pk, ck = prod.kind, cons.kind
    if pk == 'valu':
        pv = vonly(prod.dst); ps = sonly(prod.dst)
        if ck == 'mfma' and pv & cons.src: n = max(n, 2)
        if ck == 'valu':
            if cons.is_dpp and pv & cons.src: n = max(n, 2)
            if prod.op in TRANS and pv & cons.src: n = max(n, 1)
            if cons.op in ('v_readfirstlane_b32','v_readlane_b32') and pv & cons.src: n = max(n, 1)
            if cons.op.startswith('v_permlane') and pv & cons.src: n = max(n, 2)
            if ps & cons.src:
                n = max(n, 4 if cons.op in ('v_readlane_b32','v_writelane_b32') else 2)
            if ('op_sel' in prod.mods and prod.op.startswith('v_cvt')) or 'dst_sel' in prod.mods:
                if pv & (cons.src | cons.dst): n = max(n, 1)
            if ('s','exec_lo') in prod.dst:
                if cons.is_dpp: n = max(n, 5)
                if cons.op in ('v_readfirstlane_b32','v_readlane_b32','v_writelane_b32') or cons.op.startswith('v_permlane'): n = max(n, 4)
        if ck in ('vmem','ds') :
            if ps & cons.src and ck == 'vmem': n = max(n, 5)
            if prod.op in TRANS and pv & cons.src: n = max(n, 1)
        if ck == 'mfma' and ('s','exec_lo') in prod.dst: n = max(n, 4)
        if ck in ('salu','smem') and ps & cons.src: n = max(n, 1)
        if ck == 'sctl' and cons.op in ('s_cbranch_vccz','s_cbranch_vccnz') and ('s','vcc_lo') in prod.dst: n = max(n, 1)
    if pk == 'mfma':
        p = prod.passes
        tRAW = {2:5, 4:8, 8:12, 16:20}[p]
        if ck == 'mfma':
            if prod.dst & cons.srcAB: n = max(n, tRAW)
            if prod.dst & cons.srcC:
                if cons.srcC == prod.dst and cons.passes == p: n = max(n, 2 if p == 2 else 0)
                else: n = max(n, {2:4, 4:6, 8:10, 16:18}[p])
            elif prod.dst & cons.dst: n = max(n, tRAW)
        elif ck in ('valu','vmem','ds'):
            if prod.dst & (cons.src | cons.dst): n = max(n, tRAW)
            if prod.srcC & cons.dst: n = max(n, {2:1, 4:3, 8:7, 16:15}[p])
    if pk == 'salu':
        if ('s','m0') in prod.dst and ((ck == 'vmem' and ('s','m0') in cons.src) or (ck == 'ds' and 'addtid' in cons.op)): n = max(n, 1)
    if pk == 'vmem' and prod.op.startswith(('buffer_store','global_store')) and ('x4' in prod.op or 'x3' in prod.op):
        data = regs_of(prod.ops[0]) if prod.op.startswith('buffer_store') else regs_of(prod.ops[1])
        if data & cons.dst: n = max(n, 2)
    if pk == 'ds' and prod.op.startswith('ds_write') and ('b128' in prod.op or 'b96' in prod.op):
        data = set()
        for x in prod.ops[1:]: data |= regs_of(x)
        if ck == 'valu' and data & cons.dst: n = max(n, 2)
    return n

MAXLOOK = 22

class Asm:
    def __init__(self):
        self.items = []
    def I(self, op, *ops, mods='', c=''):
        self.items.append(Ins(op, ops, mods, c)); return self.items[-1]
    def L(self, name):
        x = Ins('s_nop', ['0']); x.raw = name + ':'; x.label = name; x.kind = 'label'; x.dst = set(); x.src = set()
        self.items.append(x)
    def raw(self, text):
        x = Ins('s_nop', ['0']); x.raw = text; x.kind = 'raw'; x.dst = set(); x.src = set()
        self.items.append(x)
    def nop(self, n):
        while n > 0:
            k = min(n, 16); self.I('s_nop', str(k-1)); n -= k
    def pad_hazards(self):
        total = 0
        while True:
            n = self._pad_pass()
            total += n
            if n == 0: break
        return total
    def _maps(self):
        branch_to = {}
        for i, it in enumerate(self.items):
            if it.kind == 'sctl' and (it.op == 's_branch' or it.op.startswith('s_cbranch')):
                branch_to.setdefault(it.ops[0], []).append(i)
        return branch_to
    def _pad_pass(self):
        total = 0
        branch_to = self._maps()
        i = 0
        while i < len(self.items):
            items = self.items
            cons = items[i]
            if cons.kind in ('label', 'raw') or (cons.kind == 'sctl' and cons.op not in ('s_cbranch_vccz','s_cbranch_vccnz')):
                i += 1; continue
            def preds(k):
                res = []
                if k > 0:
                    p = items[k-1]
                    if not (p.kind == 'sctl' and p.op in ('s_branch', 's_endpgm')): res.append(k-1)
                if items[k].kind == 'label':
                    res += branch_to.get(items[k].label, [])
                return res
            worst = 0
            stack = [(p, 0) for p in preds(i)]
            seen = {}
            while stack:
                j, d = stack.pop()
                if d >= MAXLOOK: continue
                if j in seen and seen[j] <= d: continue
                seen[j] = d
                pr = items[j]
                if pr.kind not in ('label', 'raw'):
                    n = need(pr, cons)
                    if n > d: worst = max(worst, n-d)
                    nd = d + pr.states()
                else: nd = d
                for p in preds(j): stack.append((p, nd))
            if worst > 0:
                ins = []
                w = worst
                while w > 0:
                    k = min(w, 16); ins.append(Ins('s_nop', [str(k-1)], '', 'auto')); w -= k
                self.items = items[:i] + ins + items[i:]
                total += worst
                i += len(ins)
                branch_to = self._maps()
            i += 1
        return total
    def text(self):
        return '\n'.join(it.text() for it in self.items) + '\n'

def V(i, n=1): return f'v{i}' if n == 1 else f'v[{i}:{i+n-1}]'
def S(i, n=1): return f's{i}' if n == 1 else f's[{i}:{i+n-1}]'
def A(i, n=1): return f'a{i}' if n == 1 else f'a[{i}:{i+n-1}]'
```

```python
import sys, importlib
sys.path.insert(0, 'dev')
HEADER = open('sequential_preLN__ssm_conv_s4__dense_activation_mish__prompt.s.ref').read().split('; Override launch')[0]
def build(kernels, path):
    out = [HEADER.rstrip()]
    for a, m in kernels:
        out.append(f"; @launch kernel={m['name']} grid=({m['grid']},1,1) block=({m['block']},1,1) lds={m['lds']}")
    out.append('.amdgcn_target "amdgcn-amd-amdhsa--gfx950"')
    out.append('.text')
    seen = set()
    for a, m in kernels:
        if m['name'] in seen: continue
        seen.add(m['name'])
        n = a.pad_hazards()
        out += [f".globl {m['name']}", '.p2align 8', f".type {m['name']},@function", f"{m['name']}:"]
        out.append(a.text().rstrip())
    out.append('.section .rodata,"a"')
    seen = set()
    for a, m in kernels:
        if m['name'] in seen: continue
        seen.add(m['name'])
        v = m['vgpr']; acc = m.get('accum', v)
        out += ['.p2align 6', f".amdhsa_kernel {m['name']}", f"  .amdhsa_next_free_vgpr {m.get('nfv', v)}", f"  .amdhsa_next_free_sgpr {m['sgpr']}",
                f"  .amdhsa_accum_offset {acc}", "  .amdhsa_group_segment_fixed_size 0", "  .amdhsa_kernarg_size 128", "  .amdhsa_user_sgpr_count 2",
                "  .amdhsa_user_sgpr_kernarg_segment_ptr 1", "  .amdhsa_system_sgpr_workgroup_id_x 1", ".end_amdhsa_kernel"]
    open(path, 'w').write('\n'.join(out) + '\n')
if __name__ == '__main__':
    import gen1
    ks = [gen1.kernel_k1()]
    build(ks, 't1.s')
```

```python
from asmlib import *

KA = dict(u=0, Are=8, Aim=16, Bre=24, Bim=32, Cre=40, Cim=48, logdt=56, D=64, bx=72, w1=80, b1=88, w2=96, out=104, dbg=112, ws=120)
WS_XT4 = 0x000000
WS_STAT = 0x280000
WS_CS = 0x288000
WS_KR = 0x300000
WS_HT4 = 0x600000
WS_ACT = 0x900000
WS_SIZE = 0x1000000
LOG2E = 0x3fb8aa3b
INV2PI = 0x3e22f983

def srd(a, sb, lo, hi, size, off=0):
    if off:
        a.I('s_add_u32', S(sb), S(lo), hex(off)); a.I('s_addc_u32', S(sb+1), S(hi), '0')
    else:
        a.I('s_mov_b32', S(sb), S(lo)); a.I('s_mov_b32', S(sb+1), S(hi))
    a.I('s_mov_b32', S(sb+2), hex(size)); a.I('s_mov_b32', S(sb+3), '0x20000')

def cmul(a, d, x, y, t):
    a.I('v_pk_mul_f32', V(t,2), V(x,2), V(y,2), mods='op_sel:[1,1] op_sel_hi:[1,0] neg_lo:[1,0]')
    a.I('v_pk_fma_f32', V(d,2), V(x,2), V(y,2), V(t,2), mods='op_sel:[0,0,0] op_sel_hi:[0,1,1]')

def k1_ln(a):
    a.L('K1_LN')
    a.I('s_load_dwordx2', S(4,2), S(0,2), str(KA['u']))
    a.I('s_load_dwordx2', S(6,2), S(0,2), str(KA['ws']))
    a.I('v_lshrrev_b32', 'v1', '4', 'v0')
    a.I('v_and_b32', 'v2', '15', 'v0')
    a.I('v_mul_u32_u24', 'v3', '1280', 'v1')
    a.I('v_lshl_add_u32', 'v3', 'v2', '4', 'v3')
    a.I('v_mul_u32_u24', 'v4', '1296', 'v1')
    a.I('v_lshl_add_u32', 'v4', 'v2', '4', 'v4')
    a.I('s_mul_i32', 's12', 's2', '20480')
    a.I('s_waitcnt', 'lgkmcnt(0)')
    srd(a, 8, 4, 5, 2621440)
    srd(a, 16, 6, 7, WS_SIZE)
    for i in range(5):
        a.I('buffer_load_dwordx4', V(12+4*i,4), 'v3', S(8,4), 's12', mods=f'offen offset:{i*256}')
    a.I('v_and_b32', 'v5', '15', 'v0')
    a.I('v_mul_u32_u24', 'v6', '1296', 'v5')
    a.I('v_lshl_add_u32', 'v6', 'v1', '3', 'v6')
    a.I('v_lshlrev_b32', 'v7', '14', 'v1')
    a.I('v_lshl_add_u32', 'v7', 'v5', '3', 'v7')
    a.I('s_lshl_b32', 's13', 's2', '7')
    for i in range(5):
        a.I('s_waitcnt', f'vmcnt({4-i})')
        a.I('ds_write_b128', 'v4', V(12+4*i,4), mods=f'offset:{i*256}')
        for k in range(4):
            a.I('v_lshlrev_b32', V(40+8*i+2*k), '16', V(12+4*i+k))
            a.I('v_and_b32', V(41+8*i+2*k), '0xffff0000', V(12+4*i+k))
    a.I('v_add_f32', 'v8', 'v40', 'v41'); a.I('v_add_f32', 'v9', 'v42', 'v43')
    for k in range(4, 40, 2):
        a.I('v_add_f32', 'v8', 'v8', V(40+k)); a.I('v_add_f32', 'v9', 'v9', V(41+k))
    a.I('v_add_f32', 'v8', 'v8', 'v9')
    for sh in (8, 4, 2, 1):
        a.I('v_add_f32_dpp', 'v8', 'v8', 'v8', mods=f'row_ror:{sh} row_mask:0xf bank_mask:0xf')
    a.I('v_mul_f32', 'v8', '0x3acccccd', 'v8')
    for k in range(40): a.I('v_sub_f32', V(40+k), V(40+k), 'v8')
    a.I('v_mul_f32', 'v9', 'v40', 'v40'); a.I('v_mul_f32', 'v10', 'v41', 'v41')
    for k in range(2, 40, 2):
        a.I('v_fmac_f32', 'v9', V(40+k), V(40+k)); a.I('v_fmac_f32', 'v10', V(41+k), V(41+k))
    a.I('v_add_f32', 'v9', 'v9', 'v10')
    for sh in (8, 4, 2, 1):
        a.I('v_add_f32_dpp', 'v9', 'v9', 'v9', mods=f'row_ror:{sh} row_mask:0xf bank_mask:0xf')
    a.I('v_mov_b32', 'v10', '0x3727c5ac')
    a.I('v_fmac_f32', 'v10', '0x3acccccd', 'v9')
    a.I('v_rsq_f32', 'v9', 'v10')
    a.I('v_lshlrev_b32', 'v11', '3', 'v1')
    a.I('s_add_u32', 's14', 's13', hex(WS_STAT))
    a.I('v_cmp_eq_u32', 'vcc', '0', 'v2')
    a.I('s_and_saveexec_b64', S(20,2), 'vcc')
    a.I('buffer_store_dwordx2', V(8,2), 'v11', S(16,4), 's14', mods='offen')
    a.I('s_mov_b64', 'exec', S(20,2))
    a.I('s_waitcnt', 'lgkmcnt(0)')
    a.I('s_barrier')
    for i in range(10):
        a.I('ds_read_b64', V(12+2*i,2), 'v6', mods=f'offset:{i*128}')
    for i in range(10):
        a.I('s_add_u32', 's15', 's13', hex(WS_XT4 + i*16*16384))
        a.I('s_waitcnt', f'lgkmcnt({9-i})')
        a.I('buffer_store_dwordx2', V(12+2*i,2), 'v7', S(16,4), 's15', mods='offen')
    a.I('s_endpgm')

def k1_cs(a):
    a.L('K1_CS')
    a.I('s_load_dwordx2', S(4,2), S(0,2), str(KA['w1']))
    a.I('s_load_dwordx2', S(6,2), S(0,2), str(KA['ws']))
    a.I('s_sub_u32', 's3', 's2', '448')
    a.I('v_and_b32', 'v1', '7', 'v0')
    a.I('v_lshrrev_b32', 'v2', '3', 'v0')
    a.I('v_mul_u32_u24', 'v3', '3456', 'v2')
    a.I('v_lshl_add_u32', 'v3', 'v1', '4', 'v3')
    a.I('s_lshl_b32', 's12', 's3', '7')
    a.I('s_waitcnt', 'lgkmcnt(0)')
    srd(a, 8, 4, 5, 640*1728*2)
    srd(a, 16, 6, 7, WS_SIZE)
    for i in range(20):
        if i: a.I('s_add_u32', 's12', 's12', str(32*3456))
        a.I('buffer_load_dwordx4', V(12+4*i,4), 'v3', S(8,4), 's12', mods='offen')
    for k in range(8): a.I('v_mov_b32', V(4+k), '0')
    for i in range(20):
        a.I('s_waitcnt', f'vmcnt({19-i})')
        for k in range(4):
            a.I('v_lshlrev_b32', 'v92', '16', V(12+4*i+k)); a.I('v_and_b32', 'v93', '0xffff0000', V(12+4*i+k))
            a.I('v_add_f32', V(4+2*k), V(4+2*k), 'v92'); a.I('v_add_f32', V(5+2*k), V(5+2*k), 'v93')
    a.I('v_lshlrev_b32', 'v94', '8', 'v2'); a.I('v_lshl_add_u32', 'v94', 'v1', '5', 'v94')
    a.I('ds_write_b128', 'v94', V(4,4)); a.I('ds_write_b128', 'v94', V(8,4), mods='offset:16')
    a.I('s_waitcnt', 'lgkmcnt(0)'); a.I('s_barrier')
    a.I('v_cmp_gt_u32', 'vcc', '64', 'v0')
    a.I('s_and_saveexec_b64', S(20,2), 'vcc')
    a.I('s_cbranch_execz', 'K1_CS_END')
    a.I('v_lshlrev_b32', 'v1', '2', 'v0')
    for k in range(32): a.I('ds_read_b32', V(12+k), 'v1', mods=f'offset:{k*256}')
    a.I('s_waitcnt', 'lgkmcnt(0)')
    for k in range(1, 32): a.I('v_add_f32', 'v12', 'v12', V(12+k))
    a.I('s_lshl_b32', 's12', 's3', '8'); a.I('s_add_u32', 's12', 's12', hex(WS_CS))
    a.I('buffer_store_dword', 'v12', 'v1', S(16,4), 's12', mods='offen')
    a.L('K1_CS_END')
    a.I('s_endpgm')

ROW = 544
KDOFF = lambda ch: ch*704*4
E2B = 2*704*4
E1B = E2B + 42*ROW
K1_LDS = E1B + 64*ROW

def k1_kgen(a):
    a.L('K1_KG')
    a.I('s_load_dwordx4', S(4,4), S(0,2), '8')
    a.I('s_load_dwordx4', S(8,4), S(0,2), '24')
    a.I('s_load_dwordx4', S(12,4), S(0,2), '40')
    a.I('s_load_dwordx2', S(16,2), S(0,2), '56')
    a.I('s_load_dwordx2', S(18,2), S(0,2), '120')
    a.I('s_sub_u32', 's3', 's2', '128')
    a.I('v_lshrrev_b32', 'v1', '7', 'v0')
    a.I('v_and_b32', 'v2', '127', 'v0')
    a.I('v_lshlrev_b32', 'v3', '1', 'v0')
    a.I('s_lshl_b32', 's20', 's3', '9')
    a.I('v_lshlrev_b32', 'v4', '1', 'v1')
    a.I('s_lshl_b32', 's21', 's3', '2')
    a.I('s_waitcnt', 'lgkmcnt(0)')
    sz = 640*128*2
    for i, (lo) in enumerate((4, 6, 8, 10, 12, 14)):
        srd(a, 24, lo, lo+1, sz)
        a.I('buffer_load_ushort', V(10+i), 'v3', S(24,4), 's20', mods='offen')
    srd(a, 28, 16, 17, 1280)
    a.I('buffer_load_ushort', 'v16', 'v4', S(28,4), 's21', mods='offen')
    srd(a, 32, 18, 19, WS_SIZE)
    a.I('v_mul_u32_u24', 'v5', str(32*ROW), 'v1'); a.I('v_lshl_add_u32', 'v5', 'v2', '2', 'v5')
    a.I('v_add_u32', 'v5', str(E1B), 'v5')
    a.I('v_mul_u32_u24', 'v6', str(21*ROW), 'v1'); a.I('v_lshl_add_u32', 'v6', 'v2', '2', 'v6')
    a.I('v_add_u32', 'v6', str(E2B), 'v6')
    a.I('s_waitcnt', 'vmcnt(0)')
    for i in range(7): a.I('v_lshlrev_b32', V(10+i), '16', V(10+i))
    a.I('v_mul_f32', 'v16', hex(LOG2E), 'v16'); a.I('v_exp_f32', 'v16', 'v16')
    a.I('v_cvt_pk_bf16_f32', 'v16', 'v16', 'v16'); a.I('v_lshlrev_b32', 'v16', '16', 'v16')
    a.I('v_mul_f32', 'v10', 'v16', 'v10'); a.I('v_mul_f32', 'v11', 'v16', 'v11')
    a.I('v_mul_f32', 'v10', hex(LOG2E), 'v10'); a.I('v_mul_f32', 'v11', hex(INV2PI), 'v11')
    a.I('v_mul_f32', 'v12', 'v16', 'v12'); a.I('v_mul_f32', 'v13', 'v16', 'v13')
    T = 18
    cmul(a, 20, 14, 12, T)
    def cis(d, v):
        a.I('v_mul_f32', V(d), hex(f2u(float(v))), 'v10'); a.I('v_mul_f32', V(d+1), hex(f2u(float(v))), 'v11')
        a.I('v_exp_f32', V(d), V(d)); a.I('v_fract_f32', V(d+1), V(d+1))
        a.I('v_cos_f32', V(T), V(d+1)); a.I('v_sin_f32', V(d+1), V(d+1))
        a.I('v_mul_f32', V(d+1), V(d), V(d+1)); a.I('v_mul_f32', V(d), V(d), V(T))
    g1, g2, g3, g4, g5, g6, g7, g8 = 22, 24, 26, 28, 30, 32, 34, 36
    g256, g512, g1024, g768, tmp = 38, 40, 42, 44, 46
    cis(g1, 1); cis(g8, 8); cis(g256, 256); cis(g512, 512); cis(g1024, 1024)
    cmul(a, g2, g1, g1, T); cmul(a, g3, g2, g1, T); cmul(a, g4, g2, g2, T); cmul(a, g5, g4, g1, T); cmul(a, g6, g3, g3, T); cmul(a, g7, g4, g3, T)
    cmul(a, g768, g512, g256, T)
    pk = 48
    cnt = [0]
    def st2(row, src):
        r = pk + (cnt[0] & 3); cnt[0] += 1
        a.I('v_cvt_pk_bf16_f32', V(r), V(src), '-'+V(src+1))
        a.I('ds_write_b32', 'v6', V(r), mods=f'offset:{row*ROW}')
    a.I('v_mov_b32', V(pk), '0x3f80')
    a.I('ds_write_b32', 'v6', V(pk)); cnt[0] = 1
    for row, g in zip(range(1, 8), (g1, g2, g3, g4, g5, g6, g7)): st2(row, g)
    st2(8, g256)
    for row, (p, q) in zip((9, 10, 11), ((g256, g2), (g256, g4), (g256, g6))): cmul(a, tmp, p, q, T); st2(row, tmp)
    st2(12, g512); cmul(a, tmp, g512, g4, T); st2(13, tmp)
    st2(14, g768); cmul(a, tmp, g768, g4, T); st2(15, tmp)
    st2(16, g1024)
    for row, (p, q) in zip((17, 18, 19, 20), ((g1024, g256), (g1024, g512), (g1024, g768), (g1024, g1024))): cmul(a, tmp, p, q, T); st2(row, tmp)
    for row in range(32):
        r = pk + (cnt[0] & 3); cnt[0] += 1
        a.I('v_cvt_pk_bf16_f32', V(r), 'v20', 'v21')
        a.I('ds_write_b32', 'v5', V(r), mods=f'offset:{row*ROW}')
        if row < 31: cmul(a, 20, 20, g8, T)
    a.I('v_and_b32', 'v7', '63', 'v0')
    a.I('v_and_b32', 'v8', '15', 'v7')
    a.I('v_lshrrev_b32', 'v9', '4', 'v7')
    a.I('v_lshrrev_b32', 'v10', '6', 'v0')
    a.I('v_and_b32', 'v11', '1', 'v10')
    a.I('v_lshl_add_u32', 'v12', 'v11', '4', 'v8')
    a.I('v_lshl_add_u32', 'v12', 'v1', '5', 'v12')
    a.I('v_mul_u32_u24', 'v12', str(ROW), 'v12'); a.I('v_lshl_add_u32', 'v12', 'v9', '4', 'v12')
    a.I('v_add_u32', 'v12', str(E1B), 'v12')
    a.I('v_mul_u32_u24', 'v13', '21', 'v1'); a.I('v_add_u32', 'v13', 'v13', 'v8')
    a.I('v_mul_u32_u24', 'v13', str(ROW), 'v13'); a.I('v_lshl_add_u32', 'v13', 'v9', '4', 'v13')
    a.I('v_add_u32', 'v13', str(E2B), 'v13')
    a.I('v_mov_b32', 'v14', 'v8'); a.I('v_mov_b32', 'v15', '8')
    a.I('v_add_u32', 'v16', '248', 'v8')
    a.I('v_cmp_le_u32', 'vcc', '8', 'v8'); a.I('v_cndmask_b32', 'v14', 'v14', 'v16', 'vcc'); a.I('v_mov_b32', 'v17', '4'); a.I('v_cndmask_b32', 'v15', 'v15', 'v17', 'vcc')
    a.I('v_add_u32', 'v16', '372', 'v8')
    a.I('v_cmp_le_u32', 'vcc', '12', 'v8'); a.I('v_cndmask_b32', 'v14', 'v14', 'v16', 'vcc'); a.I('v_mov_b32', 'v17', '2'); a.I('v_cndmask_b32', 'v15', 'v15', 'v17', 'vcc')
    a.I('v_add_u32', 'v16', '434', 'v8')
    a.I('v_cmp_le_u32', 'vcc', '14', 'v8'); a.I('v_cndmask_b32', 'v14', 'v14', 'v16', 'vcc')
    a.I('v_lshlrev_b32', 'v16', '5', 'v8'); a.I('v_add_u32', 'v16', '512', 'v16')
    a.I('v_mov_b32', 'v17', '672')
    a.I('v_cmp_lt_u32', 'vcc', '4', 'v8'); a.I('v_cndmask_b32', 'v16', 'v16', 'v17', 'vcc')
    a.I('v_lshlrev_b32', 'v17', '2', 'v9'); a.I('v_lshl_add_u32', 'v17', 'v11', '4', 'v17')
    a.I('v_mul_u32_u24', 'v18', 'v15', 'v17'); a.I('v_add_u32', 'v14', 'v14', 'v18')
    a.I('v_add_u32', 'v16', 'v16', 'v17')
    a.I('v_mul_u32_u24', 'v18', str(704*4), 'v1'); a.I('v_add_u32', 'v18', str(KDOFF(0)), 'v18')
    a.I('v_lshl_add_u32', 'v14', 'v14', '2', 'v18'); a.I('v_lshl_add_u32', 'v16', 'v16', '2', 'v18')
    a.I('v_lshlrev_b32', 'v15', '2', 'v15')
    for k in range(8): a.I('v_mov_b32', V(24+k), '0')
    a.I('s_waitcnt', 'lgkmcnt(0)'); a.I('s_barrier')
    def ld(s):
        a.I('ds_read_b128', V(32+12*s,4), 'v12', mods=f'offset:{s*64}')
        a.I('ds_read_b128', V(36+12*s,4), 'v13', mods=f'offset:{s*64}')
        a.I('ds_read_b128', V(40+12*s,4), 'v13', mods=f'offset:{s*64+16*ROW}')
    for s in range(4): ld(s)
    for s in range(8):
        outstanding_after = min(3*(7-s), 9)
        a.I('s_waitcnt', f'lgkmcnt({outstanding_after})')
        a.I('v_mfma_f32_16x16x32_bf16', V(24,4), V(32+12*s,4), V(36+12*s,4), V(24,4))
        a.I('v_mfma_f32_16x16x32_bf16', V(28,4), V(32+12*s,4), V(40+12*s,4), V(28,4))
        if s+4 < 8: ld(s+4)
    a.I('v_add_u32', 'v19', 'v14', 'v15'); a.I('v_add_u32', 'v20', 'v19', 'v15'); a.I('v_add_u32', 'v21', 'v20', 'v15')
    for r, ad in enumerate(('v14', 'v19', 'v20', 'v21')): a.I('ds_write_b32', ad, V(24+r))
    for r in range(4): a.I('ds_write_b32', 'v16', V(28+r), mods=f'offset:{4*r}')
    a.I('v_lshlrev_b32', 'v2', '3', 'v0'); a.I('v_sub_u32', 'v2', '2047', 'v2')
    for e in range(8):
        a.I('v_subrev_u32', V(32+e), str(e), 'v2')
        a.I('v_cvt_f32_u32', V(40+e), V(32+e))
    for e in range(0, 8, 2):
        a.I('v_cvt_pk_bf16_f32', V(48+e), V(40+e), V(41+e))
        a.I('v_lshrrev_b32', V(49+e), '16', V(48+e)); a.I('v_and_b32', V(48+e), '0xffff', V(48+e))
    for e in range(8):
        a.I('v_subrev_u32', V(48+e), '17024', V(48+e))
        a.I('v_cmp_gt_u32', 'vcc', '128', V(32+e))
        a.I('v_cndmask_b32', V(48+e), V(48+e), V(32+e), 'vcc')
        a.I('v_lshlrev_b32', V(48+e), '2', V(48+e))
    a.I('v_lshlrev_b32', 'v3', '4', 'v0')
    a.I('s_lshl_b32', 's20', 's3', '13')
    a.I('s_add_u32', 's20', 's20', hex(WS_KR))
    a.I('s_waitcnt', 'lgkmcnt(0)'); a.I('s_barrier')
    for ch in range(2):
        for e in range(8): a.I('ds_read_b32', V(56+8*ch+e), V(48+e), mods=f'offset:{KDOFF(ch)}')
    for ch in range(2):
        a.I('s_waitcnt', f'lgkmcnt({8 if ch == 0 else 0})')
        for e in range(0, 8, 2): a.I('v_cvt_pk_bf16_f32', V(72+4*ch+e//2), V(56+8*ch+e), V(57+8*ch+e))
        a.I('buffer_store_dwordx4', V(72+4*ch,4), 'v3', S(32,4), 's20', mods=f'offen' + ('' if ch == 0 else ''))
        if ch == 0: a.I('s_add_u32', 's20', 's20', '4096')
    a.I('s_endpgm')

import struct
def f2u(f): return struct.unpack('<I', struct.pack('<f', f))[0]

def kernel_k1():
    a = Asm()
    a.I('s_cmp_lt_u32', 's2', '128'); a.I('s_cbranch_scc1', 'K1_LN')
    a.I('s_cmp_lt_u32', 's2', '448'); a.I('s_cbranch_scc1', 'K1_KG')
    a.I('s_cmp_lt_u32', 's2', '475'); a.I('s_cbranch_scc1', 'K1_CS')
    a.I('s_endpgm')
    k1_ln(a); k1_kgen(a); k1_cs(a)
    return a, dict(name='k1_kernel', grid=475, block=256, lds=K1_LDS, vgpr=128, sgpr=48)
```

```python
from asmlib import *
from gen1 import KA, WS_XT4, WS_STAT, WS_KR, WS_HT4, WS_SIZE, srd

UOFF = lambda c: c*4608
ZB = 4*4608
ZST = 4160
ZOFF = lambda c: ZB + c*4*ZST
K2_LDS = ZB + 16*ZST
X0, ST0, UR0 = 10, 26, 42
L0, L2, W5 = 60, 76, 92
ACC, A0, B0, A1, B1 = 96, 128, 160, 192, 224

def load_set(a, Areg, Breg, k):
    m, r = divmod(k, 3)
    if r == 0: a.I('ds_read_b64', V(Areg+4*m, 2), 'v4', mods=f'offset:{512*(7-m)}')
    elif r == 1: a.I('ds_read_b64', V(Areg+4*m+2, 2), 'v4', mods=f'offset:{512*(7-m)+8}')
    else: a.I('ds_read_b128', V(Breg+4*m, 4), 'v5', mods=f'offset:{512*m}')

def conv_class(a, Ac, Bc, An, Bn, prefetch):
    a.I('s_waitcnt', 'lgkmcnt(0)')
    if prefetch:
        a.I('v_subrev_u32', 'v4', '64', 'v4'); a.I('v_subrev_u32', 'v5', '64', 'v5')
    k = 0
    for m in range(8):
        for t in range(m, 8):
            a.I('v_mfma_f32_16x16x32_bf16', V(ACC+4*t,4), V(Ac+4*m,4), V(Bc+4*(t-m),4), V(ACC+4*t,4))
            if prefetch and k < 24:
                load_set(a, An, Bn, k); k += 1

def kernel_k2():
    a = Asm()
    a.I('s_cmp_ge_u32', 's2', '160'); a.I('s_cbranch_scc1', 'K2_END')
    a.I('s_load_dwordx2', S(4,2), S(0,2), str(KA['ws']))
    a.I('s_load_dwordx2', S(6,2), S(0,2), str(KA['D']))
    a.I('v_and_b32', 'v1', '63', 'v0')
    a.I('v_lshrrev_b32', 'v2', '6', 'v0')
    a.I('v_lshlrev_b32', 'v3', '4', 'v0')
    a.I('s_lshl_b32', 's12', 's2', '14')
    a.I('s_lshl_b32', 's13', 's2', '3')
    a.I('s_waitcnt', 'lgkmcnt(0)')
    srd(a, 8, 4, 5, WS_SIZE)
    a.I('s_add_u32', 's6', 's6', 's13'); a.I('s_addc_u32', 's7', 's7', '0')
    a.I('s_load_dwordx2', S(16,2), S(6,2), '0')
    a.I('v_lshlrev_b32', 'v6', '12', 'v2'); a.I('v_lshl_add_u32', 'v6', 'v1', '4', 'v6')
    a.I('s_add_u32', 's14', 's12', hex(WS_KR))
    for i in range(4):
        a.I('buffer_load_dwordx4', V(L0+4*i,4), 'v6', S(8,4), 's14', mods=f'offen offset:{1024*i}')
        a.I('buffer_load_dwordx4', V(L2+4*i,4), 'v6', S(8,4), 's14', mods=f'offen offset:{1024*i+4}')
        a.I('buffer_load_dword', V(W5+i), 'v6', S(8,4), 's14', mods=f'offen offset:{1024*i+20}')
    a.I('s_add_u32', 's14', 's12', hex(WS_XT4))
    a.I('s_mov_b32', 's15', hex(WS_STAT))
    for i in range(4):
        a.I('s_add_u32', 's18', 's14', str(4096*i)); a.I('s_add_u32', 's19', 's15', str(4096*i))
        a.I('buffer_load_dwordx4', V(X0+4*i,4), 'v3', S(8,4), 's18', mods='offen')
        a.I('buffer_load_dwordx4', V(ST0+4*i,4), 'v3', S(8,4), 's19', mods='offen')
    a.I('v_mul_u32_u24', 'v7', '4608', 'v2'); a.I('v_lshl_add_u32', 'v7', 'v1', '3', 'v7')
    a.I('v_mov_b32', 'v8', '0'); a.I('v_mov_b32', 'v9', '0')
    a.I('ds_write_b64', 'v7', V(8,2))
    a.I('v_and_b32', 'v7', '15', 'v1'); a.I('v_lshrrev_b32', 'v58', '2', 'v7'); a.I('v_and_b32', 'v7', '3', 'v7')
    a.I('v_mul_u32_u24', 'v58', str(ZST), 'v58'); a.I('v_lshl_add_u32', 'v7', 'v7', '3', 'v58')
    a.I('v_mul_u32_u24', 'v59', str(4*ZST), 'v2')
    a.I('v_add_u32', 'v7', 'v7', 'v59'); a.I('v_add_u32', 'v7', str(ZB+4096), 'v7')
    a.I('ds_write_b64', 'v7', V(8,2))
    a.I('v_lshl_add_u32', 'v7', 'v1', '4', 'v59'); a.I('v_add_u32', 'v7', str(ZB), 'v7')
    a.I('v_cmp_eq_u32', 'vcc', '63', 'v1')
    for i in range(4):
        a.I('s_waitcnt', f'vmcnt({8 + 3*(3-i)})')
        l0, l2, w5 = L0+4*i, L2+4*i, W5+i
        if i == 3:
            a.I('v_cndmask_b32', V(l2+3), V(l2+3), 'v8', 'vcc'); a.I('v_cndmask_b32', V(w5), V(w5), 'v8', 'vcc')
        a.I('ds_write_b128', 'v7', V(l0,4), mods=f'offset:{1024*i}')
        a.I('ds_write_b128', 'v7', V(l2,4), mods=f'offset:{1024*i+2*ZST}')
        T = A0 + 8*i
        a.I('v_alignbit_b32', V(T), V(l0+1), V(l0), '16'); a.I('v_alignbit_b32', V(T+1), V(l0+2), V(l0+1), '16')
        a.I('v_alignbit_b32', V(T+2), V(l0+3), V(l0+2), '16'); a.I('v_alignbit_b32', V(T+3), V(l2+3), V(l0+3), '16')
        a.I('v_mov_b32', V(T+4), V(T+1)); a.I('v_mov_b32', V(T+5), V(T+2)); a.I('v_mov_b32', V(T+6), V(T+3))
        a.I('v_alignbit_b32', V(T+7), V(w5), V(l2+3), '16')
        a.I('ds_write_b128', 'v7', V(T,4), mods=f'offset:{1024*i+ZST}')
        a.I('ds_write_b128', 'v7', V(T+4,4), mods=f'offset:{1024*i+3*ZST}')
    a.I('v_lshlrev_b32', 'v6', '2', 'v0')
    for i in range(4):
        a.I('s_waitcnt', f'vmcnt({2*(3-i)})')
        x, st = X0+4*i, ST0+4*i
        T = B0
        for h in range(2):
            for dwi in range(2):
                r = x + 2*h + dwi
                a.I('v_lshlrev_b32', V(T+4*h+2*dwi), '16', V(r)); a.I('v_and_b32', V(T+4*h+2*dwi+1), '0xffff0000', V(r))
            for c in range(4):
                a.I('v_sub_f32', V(T+4*h+c), V(T+4*h+c), V(st+2*h)); a.I('v_mul_f32', V(T+4*h+c), V(T+4*h+c), V(st+2*h+1))
        for c in range(4):
            a.I('v_cvt_pk_bf16_f32', V(UR0+4*i+c), V(T+c), V(T+4+c))
            a.I('ds_write_b32', 'v6', V(UR0+4*i+c), mods=f'offset:{UOFF(c)+512+1024*i}')
    a.I('v_and_b32', 'v7', '15', 'v1')
    a.I('v_lshrrev_b32', 'v8', '4', 'v1')
    a.I('v_lshrrev_b32', 'v9', '1', 'v8')
    a.I('v_and_b32', 'v8', '1', 'v8')
    a.I('v_sub_u32', 'v5', 'v7', 'v9'); a.I('v_lshlrev_b32', 'v5', '5', 'v5'); a.I('v_lshl_add_u32', 'v5', 'v8', '4', 'v5')
    a.I('v_mul_u32_u24', 'v58', '4608', 'v2'); a.I('v_add_u32', 'v5', 'v5', 'v58'); a.I('v_add_u32', 'v5', '512', 'v5')
    a.I('v_and_b32', 'v58', '3', 'v7'); a.I('v_sub_u32', 'v58', '3', 'v58'); a.I('v_mul_u32_u24', 'v58', str(ZST), 'v58')
    a.I('v_add_u32', 'v4', 'v58', 'v59')
    a.I('v_lshrrev_b32', 'v58', '2', 'v7'); a.I('v_lshlrev_b32', 'v58', '3', 'v58'); a.I('v_sub_u32', 'v4', 'v4', 'v58')
    a.I('v_lshlrev_b32', 'v58', '5', 'v9'); a.I('v_sub_u32', 'v4', 'v4', 'v58')
    a.I('v_lshl_add_u32', 'v4', 'v8', '4', 'v4'); a.I('v_add_u32', 'v4', str(ZB + 4088 - 3584), 'v4')
    for k in range(32): a.I('v_mov_b32', V(ACC+k), '0')
    a.I('s_waitcnt', 'lgkmcnt(0)'); a.I('s_barrier')
    for k in range(24): load_set(a, A0, B0, k)
    a.I('s_mov_b32', 's20', '0')
    a.L('K2_LOOP')
    conv_class(a, A0, B0, A1, B1, True)
    conv_class(a, A1, B1, A0, B0, True)
    a.I('s_add_u32', 's20', 's20', '1'); a.I('s_cmp_lt_u32', 's20', '3'); a.I('s_cbranch_scc1', 'K2_LOOP')
    conv_class(a, A0, B0, A1, B1, True)
    conv_class(a, A1, B1, A0, B0, False)
    a.I('v_lshrrev_b32', 'v8', '4', 'v1'); a.I('v_lshlrev_b32', 'v8', '3', 'v8'); a.I('v_lshl_add_u32', 'v8', 'v7', '5', 'v8')
    a.I('v_add_u32', 'v8', 'v8', 'v59'); a.I('v_add_u32', 'v8', str(ZB), 'v8')
    for t in range(8):
        a.I('v_cvt_pk_bf16_f32', V(A0+2*t), V(ACC+4*t), V(ACC+4*t+1)); a.I('v_cvt_pk_bf16_f32', V(A0+2*t+1), V(ACC+4*t+2), V(ACC+4*t+3))
        a.I('ds_write_b64', 'v8', V(A0+2*t,2), mods=f'offset:{512*t}')
    a.I('s_lshl_b32', 's22', 's16', '16'); a.I('s_and_b32', 's23', 's16', '0xffff0000')
    a.I('s_lshl_b32', 's24', 's17', '16'); a.I('s_and_b32', 's25', 's17', '0xffff0000')
    a.I('s_waitcnt', 'lgkmcnt(0)'); a.I('s_barrier')
    a.I('v_add_u32', 'v6', str(ZB), 'v6')
    for i in range(4):
        for c in range(4):
            off = c*4*ZST + 1024*i
            if off < 65536: a.I('ds_read_b32', V(B0+4*i+c), 'v6', mods=f'offset:{off}')
            else: raise ValueError
    a.I('s_add_u32', 's14', 's12', hex(WS_HT4))
    for i in range(4):
        a.I('s_waitcnt', f'lgkmcnt({4*(3-i)})')
        T = A1; H = A0 + 8*i
        x = X0+4*i
        for c in range(4):
            u, y = UR0+4*i+c, B0+4*i+c
            a.I('v_lshlrev_b32', V(T), '16', V(u)); a.I('v_and_b32', V(T+1), '0xffff0000', V(u))
            a.I('v_lshlrev_b32', V(T+2), '16', V(y)); a.I('v_and_b32', V(T+3), '0xffff0000', V(y))
            a.I('v_fmac_f32', V(T+2), S(22+c), V(T)); a.I('v_fmac_f32', V(T+3), S(22+c), V(T+1))
            xl, xh = x + c//2, x + 2 + c//2
            if c % 2 == 0:
                a.I('v_lshlrev_b32', V(T), '16', V(xl)); a.I('v_lshlrev_b32', V(T+1), '16', V(xh))
            else:
                a.I('v_and_b32', V(T), '0xffff0000', V(xl)); a.I('v_and_b32', V(T+1), '0xffff0000', V(xh))
            a.I('v_add_f32', V(H+c), V(T), V(T+2)); a.I('v_add_f32', V(H+4+c), V(T+1), V(T+3))
        O = B1 + 4*i
        a.I('v_cvt_pk_bf16_f32', V(O), V(H), V(H+1)); a.I('v_cvt_pk_bf16_f32', V(O+1), V(H+2), V(H+3))
        a.I('v_cvt_pk_bf16_f32', V(O+2), V(H+4), V(H+5)); a.I('v_cvt_pk_bf16_f32', V(O+3), V(H+6), V(H+7))
        a.I('s_add_u32', 's18', 's14', str(4096*i))
        a.I('buffer_store_dwordx4', V(O,4), 'v3', S(8,4), 's18', mods='offen')
    a.L('K2_END')
    a.I('s_endpgm')
    return a, dict(name='k2_kernel', grid=160, block=256, lds=K2_LDS, vgpr=256, sgpr=48)
```

```python
from asmlib import *
from gen1 import KA, WS_HT4, WS_CS, WS_ACT, WS_SIZE, srd, LOG2E, f2u

K3_LDS = 143360
ACC = 8
W0, W1 = 64, 92
H0 = 120
VOFF = 216
SS, SQ = 224, 228
TMP = 232
LN2 = 0x3f317218

def wload(a, Wn, ks_in_stage, k):
    T, h = divmod(k, 2)
    a.I('ds_read_b64_tr_b16', V(Wn+4*T+2*h, 2), 'v4', mods=f'offset:{ks_in_stage*7168 + h*3584 + T*32}')

def kernel_k3():
    a = Asm()
    a.I('s_cmp_ge_u32', 's2', '256'); a.I('s_cbranch_scc1', 'K3_END')
    a.I('s_load_dwordx2', S(4,2), S(0,2), str(KA['ws']))
    a.I('s_load_dwordx4', S(12,4), S(0,2), str(KA['w1']))
    a.I('s_and_b32', 's20', 's2', '7'); a.I('s_lshr_b32', 's21', 's2', '3')
    a.I('s_lshr_b32', 's22', 's20', '1'); a.I('s_lshl_b32', 's22', 's22', '2'); a.I('s_and_b32', 's23', 's21', '3'); a.I('s_add_u32', 's22', 's22', 's23')
    a.I('s_and_b32', 's23', 's20', '1'); a.I('s_lshl_b32', 's23', 's23', '3'); a.I('s_lshr_b32', 's24', 's21', '2'); a.I('s_add_u32', 's23', 's23', 's24')
    a.I('v_and_b32', 'v1', '63', 'v0'); a.I('v_lshrrev_b32', 'v2', '6', 'v0')
    a.I('v_readfirstlane_b32', 's24', 'v2')
    a.I('s_mul_i32', 's25', 's23', '224')
    a.I('v_mul_u32_u24', 'v3', '448', 'v2'); a.I('v_add_u32', 'v3', 'v3', 'v1')
    for c in range(7):
        a.I('v_add_u32', V(TMP), str(64*c), 'v3')
        a.I('v_mul_u32_u24', V(TMP+1), '4682', V(TMP)); a.I('v_lshrrev_b32', V(TMP+1), '16', V(TMP+1))
        a.I('v_mul_u32_u24', V(TMP+2), '14', V(TMP+1)); a.I('v_sub_u32', V(TMP+2), V(TMP), V(TMP+2))
        a.I('v_lshlrev_b32', V(TMP+2), '4', V(TMP+2)); a.I('v_add_u32', V(TMP+2), 's25', V(TMP+2))
        a.I('v_min_u32', V(TMP+2), '3440', V(TMP+2))
        a.I('v_mul_u32_u24', V(TMP+1), '3456', V(TMP+1)); a.I('v_add_u32', V(VOFF+c), V(TMP+1), V(TMP+2))
    a.I('v_lshrrev_b32', 'v7', '4', 'v1')
    a.I('v_and_b32', V(TMP), '15', 'v1')
    a.I('v_lshlrev_b32', 'v5', '14', 'v7'); a.I('v_lshl_add_u32', 'v5', V(TMP), '3', 'v5'); a.I('v_add_u32', 'v6', '0x10000', 'v5')
    a.I('v_lshrrev_b32', V(TMP+1), '2', V(TMP)); a.I('v_lshl_add_u32', V(TMP+1), 'v7', '2', V(TMP+1)); a.I('v_mul_u32_u24', 'v4', '224', V(TMP+1))
    a.I('v_and_b32', V(TMP+1), '3', V(TMP)); a.I('v_lshl_add_u32', 'v4', V(TMP+1), '3', 'v4')
    a.I('s_waitcnt', 'lgkmcnt(0)')
    srd(a, 8, 4, 5, WS_SIZE)
    srd(a, 16, 12, 13, 640*3456)
    srd(a, 28, 14, 15, 3456)
    a.I('s_lshl_b32', 's26', 's22', '10'); a.I('s_lshl_b32', 's27', 's24', '8'); a.I('s_add_u32', 's26', 's26', 's27'); a.I('s_add_u32', 's26', 's26', hex(WS_HT4))
    a.I('s_mul_i32', 's27', 's24', '7168')
    def dma(s):
        for c in range(7):
            a.I('s_add_u32', 'm0', 's27', str(s*28672 + c*1024))
            a.I('s_mov_b32', 's32', str(s*128*3456))
            a.I('buffer_load_dwordx4', V(VOFF+c), S(16,4), 's32', mods='offen lds')
    def csb1():
        a.I('v_lshlrev_b32', V(TMP), '4', 'v7')
        a.I('s_mul_i32', 's34', 's23', '448'); a.I('s_add_u32', 's34', 's34', hex(WS_CS))
        a.I('v_lshlrev_b32', V(TMP+1), '3', 'v7'); a.I('v_add_u32', V(TMP+1), 's25', V(TMP+1))
        for T in range(7):
            a.I('buffer_load_dwordx4', A(4*T,4), V(TMP), S(8,4), 's34', mods=f'offen offset:{64*T}')
            a.I('buffer_load_dwordx2', A(28+2*T,2), V(TMP+1), S(28,4), '0', mods=f'offen offset:{32*T}')
    def hload(s):
        buf = H0 + 32*(s % 3)
        for kk in range(4):
            ks = 4*s + kk
            a.I('s_add_u32', 's33', 's26', str(ks*131072))
            for lt in range(2):
                a.I('buffer_load_dwordx2', V(buf+8*kk+4*lt, 2), 'v5', S(8,4), 's33', mods=f'offen offset:{128*lt}')
                a.I('buffer_load_dwordx2', V(buf+8*kk+4*lt+2, 2), 'v6', S(8,4), 's33', mods=f'offen offset:{128*lt}')
    dma(0); hload(0); dma(1); hload(1); dma(2)
    for k in range(56): a.I('v_mov_b32', V(ACC+k), '0')
    for k in range(8): a.I('v_mov_b32', V(SS+k), '0')
    a.I('s_mov_b32', 's36', '0x3f803f80')
    a.I('s_waitcnt', 'vmcnt(30)'); a.I('s_barrier')
    hload(2); dma(3)
    for k in range(14): wload(a, W0, 0, k)
    Wc, Wn = W0, W1
    for ks in range(20):
        s, kk = divmod(ks, 4)
        last = ks == 19
        if kk == 3 and not last:
            n = {0: 30, 1: 30, 2: 37, 3: 14}[s]
            a.I('s_waitcnt', f'vmcnt({n})'); a.I('s_barrier')
        if ks == 4: hload(3); dma(4)
        if ks == 8: hload(4); csb1()
        a.I('s_waitcnt', 'lgkmcnt(0)')
        if kk == 3 and not last: a.I('v_add_u32', 'v4', '28672', 'v4')
        hb = H0 + 32*(s % 3) + 8*kk
        k = 0; st = 0
        stats = []
        for lt in range(2):
            for dd in range(4):
                stats.append(('v_dot2_f32_bf16', V(SS+2*lt+(dd & 1)), V(hb+4*lt+dd), 's36', V(SS+2*lt+(dd & 1))))
                stats.append(('v_dot2_f32_bf16', V(SQ+2*lt+(dd & 1)), V(hb+4*lt+dd), V(hb+4*lt+dd), V(SQ+2*lt+(dd & 1))))
        for T in range(7):
            for lt in range(2):
                a.I('v_mfma_f32_16x16x32_bf16', V(ACC+8*T+4*lt,4), V(Wc+4*T,4), V(hb+4*lt,4), V(ACC+8*T+4*lt,4))
                if not last:
                    wload(a, Wn, (kk+1) % 4, k); k += 1
                if st < 16:
                    a.I(*stats[st]); st += 1
                    if st in (2, 9) :
                        a.I(*stats[st]); st += 1
        while st < 16: a.I(*stats[st]); st += 1
        Wc, Wn = Wn, Wc
    a.nop(4)
    a.I('s_waitcnt', 'vmcnt(0)')
    for lt in range(2):
        a.I('v_add_f32', V(SS+2*lt), V(SS+2*lt), V(SS+2*lt+1)); a.I('v_add_f32', V(SQ+2*lt), V(SQ+2*lt), V(SQ+2*lt+1))
    vals = [SS, SS+2, SQ, SQ+2]
    for sw in ('v_permlane16_swap_b32', 'v_permlane32_swap_b32'):
        for i, r in enumerate(vals): a.I('v_mov_b32', V(TMP+i), V(r))
        for i, r in enumerate(vals): a.I(sw, V(r), V(TMP+i))
        for i, r in enumerate(vals): a.I('v_add_f32', V(r), V(r), V(TMP+i))
    RS, MR = W0, W0+4
    for lt in range(2):
        m, qv = SS+2*lt, SQ+2*lt
        a.I('v_mul_f32', V(m), '0x3acccccd', V(m))
        a.I('v_mul_f32', V(qv), '0x3acccccd', V(qv))
        a.I('v_fma_f32', V(qv), '-'+V(m), V(m), V(qv))
        a.I('v_add_f32', V(qv), '0x3727c5ac', V(qv))
        a.I('v_rsq_f32', V(qv), V(qv))
        a.I('v_mul_f32', V(RS+2*lt), hex(LOG2E), V(qv))
        a.I('v_mul_f32', V(MR+2*lt), V(m), V(RS+2*lt))
    L2P, LNP = W0+8, W0+10
    a.I('s_mov_b32', 's38', hex(LOG2E)); a.I('s_mov_b32', 's39', hex(LOG2E))
    a.I('s_mov_b32', 's40', hex(f2u(-2.0))); a.I('s_mov_b32', 's41', hex(f2u(-2.0)))
    twoL = hex(f2u(2*1.4426950408889634))
    a.I('v_mov_b32', V(L2P), twoL); a.I('v_mov_b32', V(L2P+1), twoL)
    a.I('v_mov_b32', V(LNP), hex(LN2)); a.I('v_mov_b32', V(LNP+1), hex(LN2))
    a.I('s_lshl_b32', 's42', 's22', '3'); a.I('s_lshl_b32', 's43', 's24', '1'); a.I('s_add_u32', 's42', 's42', 's43'); a.I('s_mul_i32', 's42', 's42', '55296'); a.I('s_add_u32', 's42', 's42', hex(WS_ACT))
    a.I('s_mul_i32', 's43', 's23', '7')
    a.I('v_lshlrev_b32', 'v3', '4', 'v1')
    CS, B1, X = W1, W1+4, H0
    for T in range(7):
        a.I('s_add_u32', 's44', 's43', str(T))
        a.I('s_cmp_ge_u32', 's44', '108'); a.I('s_cbranch_scc1', 'K3_END')
        a.I('s_lshr_b32', 's45', 's44', '1'); a.I('s_lshl_b32', 's45', 's45', '10'); a.I('s_and_b32', 's46', 's44', '1'); a.I('s_lshl_b32', 's46', 's46', '3')
        a.I('s_add_u32', 's45', 's45', 's46'); a.I('s_add_u32', 's45', 's45', 's42')
        for r in range(4): a.I('v_accvgpr_read_b32', V(CS+r), A(4*T+r))
        a.I('v_accvgpr_read_b32', V(B1+1), A(28+2*T)); a.I('v_accvgpr_read_b32', V(B1+3), A(28+2*T+1))
        a.I('v_lshlrev_b32', V(B1), '16', V(B1+1)); a.I('v_and_b32', V(B1+1), '0xffff0000', V(B1+1))
        a.I('v_lshlrev_b32', V(B1+2), '16', V(B1+3)); a.I('v_and_b32', V(B1+3), '0xffff0000', V(B1+3))
        a.I('v_pk_mul_f32', V(B1,2), V(B1,2), S(38,2)); a.I('v_pk_mul_f32', V(B1+2,2), V(B1+2,2), S(38,2))
        for lt in range(2):
            x = X + 24*lt + 48*(T & 1)
            Hh, E, P = x, x+4, x+8
            ac = ACC+8*T+4*lt
            for p in range(2):
                a.I('v_pk_fma_f32', V(Hh+2*p,2), V(CS+2*p,2), V(MR+2*lt,2), V(B1+2*p,2), mods='op_sel_hi:[1,0,1] neg_lo:[0,1,0] neg_hi:[0,1,0]')
            for p in range(2):
                a.I('v_pk_fma_f32', V(Hh+2*p,2), V(ac+2*p,2), V(RS+2*lt,2), V(Hh+2*p,2), mods='op_sel_hi:[1,0,1]')
            for r in range(4): a.I('v_exp_f32', V(E+r), V(Hh+r))
            for p in range(2): a.I('v_pk_fma_f32', V(P+2*p,2), V(E+2*p,2), S(38,2), V(L2P,2))
            for p in range(2): a.I('v_pk_fma_f32', V(P+2*p,2), V(E+2*p,2), V(P+2*p,2), V(L2P,2))
            for r in range(4): a.I('v_rcp_f32', V(P+r), V(P+r))
            for p in range(2): a.I('v_pk_fma_f32', V(P+2*p,2), V(P+2*p,2), S(40,2), V(LNP,2))
            for p in range(2): a.I('v_pk_mul_f32', V(Hh+2*p,2), V(Hh+2*p,2), V(P+2*p,2))
            O = x+12
            a.I('v_cvt_pk_bf16_f32', V(O), V(Hh), V(Hh+1)); a.I('v_cvt_pk_bf16_f32', V(O+1), V(Hh+2), V(Hh+3))
            if lt == 0: a.I('buffer_store_dwordx2', V(O,2), 'v3', S(8,4), 's45', mods='offen')
            else:
                a.I('s_add_u32', 's46', 's45', '55296')
                a.I('buffer_store_dwordx2', V(O,2), 'v3', S(8,4), 's46', mods='offen')
    a.L('K3_END')
    a.I('s_endpgm')
    return a, dict(name='k3_kernel', grid=256, block=256, lds=K3_LDS, vgpr=256, accum=256, nfv=304, sgpr=56)
```

```python
from asmlib import *
from gen1 import KA, WS_HT4, WS_ACT, WS_SIZE, srd

K4_LDS = 143360
ACC = 8
W0, W1 = 28, 48
RES = 68
VOFF = 78
TMP = 88
AB = 96
NST = 14

def kernel_k4():
    a = Asm()
    a.I('s_cmp_ge_u32', 's2', '256'); a.I('s_cbranch_scc1', 'K4_END')
    a.I('s_load_dwordx2', S(4,2), S(0,2), str(KA['ws']))
    a.I('s_load_dwordx4', S(12,4), S(0,2), str(KA['w2']))
    a.I('s_and_b32', 's20', 's2', '7'); a.I('s_lshr_b32', 's21', 's2', '3')
    a.I('s_lshr_b32', 's22', 's20', '1'); a.I('s_lshl_b32', 's22', 's22', '3'); a.I('s_and_b32', 's23', 's21', '7'); a.I('s_add_u32', 's22', 's22', 's23')
    a.I('s_and_b32', 's23', 's20', '1'); a.I('s_lshl_b32', 's23', 's23', '2'); a.I('s_lshr_b32', 's24', 's21', '3'); a.I('s_add_u32', 's23', 's23', 's24')
    a.I('v_and_b32', 'v1', '63', 'v0'); a.I('v_lshrrev_b32', 'v2', '6', 'v0')
    a.I('v_readfirstlane_b32', 's24', 'v2')
    a.I('s_mul_i32', 's25', 's23', '160')
    a.I('v_mul_u32_u24', 'v3', '320', 'v2'); a.I('v_add_u32', 'v3', 'v3', 'v1')
    for c in range(5):
        a.I('v_add_u32', V(TMP), str(64*c), 'v3')
        a.I('v_mul_u32_u24', V(TMP+1), '6554', V(TMP)); a.I('v_lshrrev_b32', V(TMP+1), '16', V(TMP+1))
        a.I('v_mul_u32_u24', V(TMP+2), '10', V(TMP+1)); a.I('v_sub_u32', V(TMP+2), V(TMP), V(TMP+2))
        a.I('v_lshlrev_b32', V(TMP+2), '4', V(TMP+2)); a.I('v_add_u32', V(TMP+2), 's25', V(TMP+2))
        a.I('v_mul_u32_u24', V(TMP+1), '1280', V(TMP+1)); a.I('v_add_u32', V(VOFF+c), V(TMP+1), V(TMP+2))
        a.I('v_add_u32', V(VOFF+5+c), str(13*163840), V(VOFF+c)); a.I('v_min_u32', V(VOFF+5+c), str(1728*1280-16), V(VOFF+5+c))
    a.I('v_lshrrev_b32', 'v7', '4', 'v1')
    a.I('v_and_b32', 'v6', '15', 'v1')
    a.I('v_lshlrev_b32', 'v5', '4', 'v1')
    a.I('v_lshrrev_b32', V(TMP+1), '2', 'v6'); a.I('v_lshl_add_u32', V(TMP+1), 'v7', '2', V(TMP+1)); a.I('v_mul_u32_u24', 'v4', '160', V(TMP+1))
    a.I('v_and_b32', V(TMP+1), '3', 'v6'); a.I('v_mul_u32_u24', V(TMP+1), '40', V(TMP+1)); a.I('v_add_u32', 'v4', 'v4', V(TMP+1))
    a.I('s_waitcnt', 'lgkmcnt(0)')
    srd(a, 8, 4, 5, WS_SIZE)
    srd(a, 16, 12, 13, 1728*1280)
    srd(a, 28, 14, 15, 2048*1280)
    a.I('s_lshl_b32', 's26', 's22', '2'); a.I('s_add_u32', 's26', 's26', 's24')
    a.I('s_mul_i32', 's27', 's26', '55296'); a.I('s_add_u32', 's27', 's27', hex(WS_ACT))
    a.I('s_mul_i32', 's34', 's24', '5120')
    def group(s):
        slot = s % 7
        for c in range(5):
            a.I('s_add_u32', 'm0', 's34', str(slot*20480 + c*1024))
            if s < 13:
                a.I('s_mov_b32', 's32', str(s*163840))
                a.I('buffer_load_dwordx4', V(VOFF+c), S(16,4), 's32', mods='offen lds')
            else:
                a.I('buffer_load_dwordx4', V(VOFF+5+c), S(16,4), '0', mods='offen lds')
        for kk in range(4):
            a.I('s_add_u32', 's33', 's27', str((4*s+kk)*1024))
            a.I('buffer_load_dwordx4', V(AB+16*(s % 8)+4*kk, 4), 'v5', S(8,4), 's33', mods='offen')
    def resid():
        a.I('v_mul_u32_u24', V(TMP), str(5*16384), 'v7'); a.I('v_lshl_add_u32', V(TMP), 'v6', '3', V(TMP))
        a.I('s_mul_i32', 's35', 's23', str(20*16384)); a.I('s_lshl_b32', 's36', 's26', '7'); a.I('s_add_u32', 's35', 's35', 's36'); a.I('s_add_u32', 's35', 's35', hex(WS_HT4))
        for T in range(5):
            a.I('buffer_load_dwordx2', V(RES+2*T, 2), V(TMP), S(8,4), 's35', mods='offen')
            if T < 4: a.I('s_add_u32', 's35', 's35', '16384')
    def wload(Wn, vbase, kk, k):
        T, h = divmod(k, 2)
        a.I('ds_read_b64_tr_b16', V(Wn+4*T+2*h, 2), vbase, mods=f'offset:{kk*5120 + h*2560 + 8*T}')
    for s in range(7): group(s)
    for k in range(20): a.I('v_mov_b32', V(ACC+k), '0')
    a.I('s_waitcnt', 'vmcnt(54)'); a.I('s_barrier')
    for k in range(10): wload(W0, 'v4', 0, k)
    Wc, Wn = W0, W1
    vb = ['v4', 'v3']
    for ks in range(54):
        s, kk = divmod(ks, 4)
        last = ks == 53
        nxt_stage = (kk == 3)
        a.I('s_waitcnt', 'lgkmcnt(0)')
        if nxt_stage and not last:
            issued_hi = min(13, s+6)
            n = 9*(issued_hi - (s+1)) + (5 if s >= 8 else 0)
            a.I('s_waitcnt', f'vmcnt({n})'); a.I('s_barrier')
            if s+7 < NST: group(s+7)
            if s == 7: resid()
            a.I('v_add_u32', vb[(s+1) & 1], str(((s+1) % 7)*20480 - (s % 7)*20480) if ((s+1) % 7) > (s % 7) else hex((((s+1) % 7)*20480 - (s % 7)*20480) & 0xffffffff), vb[s & 1])
        ab = AB + 16*(s % 8) + 4*kk
        for T in range(5):
            a.I('v_mfma_f32_16x16x32_bf16', V(ACC+4*T,4), V(Wc+4*T,4), V(ab,4), V(ACC+4*T,4))
            if not last:
                for k in (2*T, 2*T+1):
                    if nxt_stage: wload(Wn, vb[(s+1) & 1], 0, k)
                    else: wload(Wn, vb[s & 1], kk+1, k)
        Wc, Wn = Wn, Wc
    a.I('s_waitcnt', 'vmcnt(0)')
    a.I('v_mul_u32_u24', V(TMP), '1280', 'v6'); a.I('v_mul_u32_u24', V(TMP+1), '40', 'v7'); a.I('v_add_u32', V(TMP), V(TMP), V(TMP+1))
    a.I('s_mul_i32', 's35', 's26', '20480'); a.I('s_add_u32', 's35', 's35', 's25')
    X = W0
    for T in range(5):
        r0, r1 = RES+2*T, RES+2*T+1
        a.I('v_lshlrev_b32', V(X+4*T), '16', V(r0)); a.I('v_and_b32', V(X+4*T+1), '0xffff0000', V(r0))
        a.I('v_lshlrev_b32', V(X+4*T+2), '16', V(r1)); a.I('v_and_b32', V(X+4*T+3), '0xffff0000', V(r1))
        for r in range(4): a.I('v_add_f32', V(X+4*T+r), V(X+4*T+r), V(ACC+4*T+r))
        a.I('v_cvt_pk_bf16_f32', V(r0), V(X+4*T), V(X+4*T+1)); a.I('v_cvt_pk_bf16_f32', V(r1), V(X+4*T+2), V(X+4*T+3))
        a.I('buffer_store_dwordx2', V(r0,2), V(TMP), S(28,4), 's35', mods=f'offen offset:{8*T}')
    a.L('K4_END')
    a.I('s_endpgm')
    return a, dict(name='k4_kernel', grid=256, block=256, lds=K4_LDS, vgpr=224, sgpr=56)
```

```python
import sys; sys.path.insert(0,'dev')
from build import build
import gen1, gen2, gen3, gen4
path = sys.argv[1] if len(sys.argv) > 1 else 't4.s'
build([gen1.kernel_k1(), gen2.kernel_k2(), gen3.kernel_k3(), gen4.kernel_k4()], path)
```

```python
import re

def regs_of(tok):
    tok = tok.strip()
    neg = tok.lstrip('-')
    if neg.startswith('abs(') and neg.endswith(')'): neg = neg[4:-1]
    if neg.startswith('|') and neg.endswith('|'): neg = neg[1:-1]
    m = re.fullmatch(r'([vsa])(\d+)', neg)
    if m: return {(m.group(1), int(m.group(2)))}
    m = re.fullmatch(r'([vsa])\[(\d+):(\d+)\]', neg)
    if m: return {(m.group(1), i) for i in range(int(m.group(2)), int(m.group(3))+1)}
    if neg == 'vcc': return {('s', 'vcc_lo'), ('s', 'vcc_hi')}
    if neg in ('vcc_lo', 'vcc_hi'): return {('s', neg)}
    if neg == 'exec': return {('s', 'exec_lo'), ('s', 'exec_hi')}
    if neg in ('exec_lo','exec_hi'): return {('s', neg)}
    if neg == 'm0': return {('s', 'm0')}
    return set()

TRANS = ('v_exp_f32','v_log_f32','v_rcp_f32','v_rsq_f32','v_sqrt_f32','v_sin_f32','v_cos_f32','v_rcp_iflag_f32')

class Ins:
    def __init__(self, op, ops=(), mods='', comment=''):
        self.op = op; self.ops = [str(o) for o in ops]; self.mods = mods; self.comment = comment
        self.label = None; self.raw = None
        self.classify()
    def text(self):
        if self.raw is not None: return self.raw
        s = '    ' + self.op
        if self.ops: s += ' ' + ', '.join(self.ops)
        if self.mods: s += ' ' + self.mods
        if self.comment: s += '    ; ' + self.comment
        return s
    def classify(self):
        op = self.op; o = self.ops
        self.dst = set(); self.src = set(); self.srcC = set(); self.srcAB = set(); self.passes = 0
        self.is_dpp = ('row_' in self.mods or 'quad_perm' in self.mods or 'wave_' in self.mods or op.endswith('_dpp'))
        R = regs_of
        if op.startswith('v_mfma') or op.startswith('v_smfma'):
            self.kind = 'mfma'
            self.dst = R(o[0]); self.srcAB = R(o[1]) | R(o[2]); self.srcC = R(o[3]); self.src = self.srcAB | self.srcC
            if '32x32x16' in op or '32x32x8' in op or '32x32x32_i8' in op: self.passes = 8
            elif '16x16x32' in op or '16x16x16' in op: self.passes = 4
            elif op == 'v_mfma_f32_32x32x2_f32': self.passes = 16
            elif op == 'v_mfma_f32_16x16x4_f32': self.passes = 8
            else: raise ValueError(op)
        elif op.startswith('v_cmp'):
            self.kind = 'valu'
            self.dst = R(o[0])
            for x in o[1:]: self.src |= R(x)
            if op.startswith('v_cmpx'): self.dst |= R('exec')
        elif op in ('v_readfirstlane_b32','v_readlane_b32'):
            self.kind = 'valu'; self.dst = R(o[0])
            for x in o[1:]: self.src |= R(x)
        elif op.startswith('v_permlane') and 'swap' in op:
            self.kind = 'valu'; self.dst = R(o[0]) | R(o[1]); self.src = R(o[0]) | R(o[1])
        elif op.startswith('v_'):
            self.kind = 'valu'
            self.dst = R(o[0])
            rest = o[1:]
            if op.startswith(('v_add_co','v_sub_co','v_addc_co','v_subb_co','v_subrev_co','v_div_scale','v_mad_u64_u32')):
                self.dst |= R(o[1]); rest = o[2:]
            for x in rest: self.src |= R(x)
            if op.startswith(('v_fmac','v_mac','v_dot2c','v_pk_fmac','v_writelane')) or self.is_dpp or 'UNUSED_PRESERVE' in self.mods or ('op_sel' in self.mods and op.startswith('v_cvt')):
                self.src |= R(o[0])
            if op.startswith('v_cndmask') and len(o) == 3: self.src |= R('vcc')
            if op in ('v_div_fmas_f32',): self.src |= R('vcc')
        elif op.startswith('ds_'):
            self.kind = 'ds'
            if op.startswith(('ds_read','ds_bpermute','ds_permute','ds_swizzle')) or '_rtn' in op:
                self.dst = R(o[0])
                for x in o[1:]: self.src |= R(x)
            else:
                for x in o: self.src |= R(x)
        elif op.startswith(('buffer_','global_','flat_')):
            self.kind = 'vmem'
            lds = (' lds' in (' '+self.mods)) or '_lds_' in op
            if op in ('buffer_wbl2','buffer_inv'):
                pass
            elif op.startswith(('buffer_load','global_load','flat_load')) and not lds:
                self.dst = R(o[0])
                for x in o[1:]: self.src |= R(x)
            elif op.startswith('buffer_atomic') and 'sc0' in self.mods:
                self.dst = R(o[0])
                for x in o: self.src |= R(x)
            elif op.startswith('global_atomic') and 'sc0' in self.mods:
                self.dst = R(o[0])
                for x in o[1:]: self.src |= R(x)
            else:
                for x in o: self.src |= R(x)
                if lds: self.src |= R('m0')
        elif op.startswith('s_'):
            self.kind = 'salu'
            if op in ('s_waitcnt','s_nop','s_barrier','s_endpgm','s_branch','s_setprio','s_sleep') or op.startswith('s_cbranch'):
                self.kind = 'sctl'
            elif op.startswith('s_cmp') or op.startswith('s_bitcmp'):
                for x in o: self.src |= R(x)
            elif op.startswith(('s_load','s_buffer_load','s_memtime','s_memrealtime')):
                self.kind = 'smem'
                self.dst = R(o[0])
                for x in o[1:]: self.src |= R(x)
            else:
                self.dst = R(o[0])
                for x in o[1:]: self.src |= R(x)
                if 'saveexec' in op: self.dst |= R('exec'); self.src |= R('exec')
        else:
            raise ValueError('unknown op '+op)
    def states(self):
        if self.op == 's_nop': return int(self.ops[0], 0) + 1
        return 1

def vonly(rs): return {r for r in rs if r[0] in 'va'}
def sonly(rs): return {r for r in rs if r[0] == 's'}

def need(prod, cons):
    n = 0
    pk, ck = prod.kind, cons.kind
    if pk == 'valu':
        pv = vonly(prod.dst); ps = sonly(prod.dst)
        if ck == 'mfma' and pv & cons.src: n = max(n, 2)
        if ck == 'valu':
            if cons.is_dpp and pv & cons.src: n = max(n, 2)
            if prod.op in TRANS and pv & cons.src: n = max(n, 1)
            if cons.op in ('v_readfirstlane_b32','v_readlane_b32') and pv & cons.src: n = max(n, 1)
            if cons.op.startswith('v_permlane') and pv & cons.src: n = max(n, 2)
            if ps & cons.src:
                n = max(n, 4 if cons.op in ('v_readlane_b32','v_writelane_b32') else 2)
            if ('op_sel' in prod.mods and prod.op.startswith('v_cvt')) or 'dst_sel' in prod.mods:
                if pv & (cons.src | cons.dst): n = max(n, 1)
            if ('s','exec_lo') in prod.dst:
                if cons.is_dpp: n = max(n, 5)
                if cons.op in ('v_readfirstlane_b32','v_readlane_b32','v_writelane_b32') or cons.op.startswith('v_permlane'): n = max(n, 4)
        if ck in ('vmem','ds') :
            if ps & cons.src and ck == 'vmem': n = max(n, 5)
            if prod.op in TRANS and pv & cons.src: n = max(n, 1)
        if ck == 'mfma' and ('s','exec_lo') in prod.dst: n = max(n, 4)
        if ck in ('salu','smem') and ps & cons.src: n = max(n, 1)
        if ck == 'sctl' and cons.op in ('s_cbranch_vccz','s_cbranch_vccnz') and ('s','vcc_lo') in prod.dst: n = max(n, 1)
    if pk == 'mfma':
        p = prod.passes
        tRAW = {2:5, 4:8, 8:12, 16:20}[p]
        if ck == 'mfma':
            if prod.dst & cons.srcAB: n = max(n, tRAW)
            if prod.dst & cons.srcC:
                if cons.srcC == prod.dst and cons.passes == p: n = max(n, 2 if p == 2 else 0)
                else: n = max(n, {2:4, 4:6, 8:10, 16:18}[p])
            elif prod.dst & cons.dst: n = max(n, tRAW)
        elif ck in ('valu','vmem','ds'):
            if prod.dst & (cons.src | cons.dst): n = max(n, tRAW)
            if prod.srcC & cons.dst: n = max(n, {2:1, 4:3, 8:7, 16:15}[p])
    if pk == 'salu':
        if ('s','m0') in prod.dst and ((ck == 'vmem' and ('s','m0') in cons.src) or (ck == 'ds' and 'addtid' in cons.op)): n = max(n, 1)
    if pk == 'vmem' and prod.op.startswith(('buffer_store','global_store')) and ('x4' in prod.op or 'x3' in prod.op):
        data = regs_of(prod.ops[0]) if prod.op.startswith('buffer_store') else regs_of(prod.ops[1])
        if data & cons.dst: n = max(n, 2)
    if pk == 'ds' and prod.op.startswith('ds_write') and ('b128' in prod.op or 'b96' in prod.op):
        data = set()
        for x in prod.ops[1:]: data |= regs_of(x)
        if ck == 'valu' and data & cons.dst: n = max(n, 2)
    return n

MAXLOOK = 22

class Asm:
    def __init__(self):
        self.items = []
    def I(self, op, *ops, mods='', c=''):
        self.items.append(Ins(op, ops, mods, c)); return self.items[-1]
    def L(self, name):
        x = Ins('s_nop', ['0']); x.raw = name + ':'; x.label = name; x.kind = 'label'; x.dst = set(); x.src = set()
        self.items.append(x)
    def raw(self, text):
        x = Ins('s_nop', ['0']); x.raw = text; x.kind = 'raw'; x.dst = set(); x.src = set()
        self.items.append(x)
    def nop(self, n):
        while n > 0:
            k = min(n, 16); self.I('s_nop', str(k-1)); n -= k
    def pad_hazards(self):
        total = 0
        while True:
            n = self._pad_pass()
            total += n
            if n == 0: break
        return total
    def _maps(self):
        branch_to = {}
        for i, it in enumerate(self.items):
            if it.kind == 'sctl' and (it.op == 's_branch' or it.op.startswith('s_cbranch')):
                branch_to.setdefault(it.ops[0], []).append(i)
        return branch_to
    def _pad_pass(self):
        total = 0
        branch_to = self._maps()
        i = 0
        while i < len(self.items):
            items = self.items
            cons = items[i]
            if cons.kind in ('label', 'raw') or (cons.kind == 'sctl' and cons.op not in ('s_cbranch_vccz','s_cbranch_vccnz')):
                i += 1; continue
            def preds(k):
                res = []
                if k > 0:
                    p = items[k-1]
                    if not (p.kind == 'sctl' and p.op in ('s_branch', 's_endpgm')): res.append(k-1)
                if items[k].kind == 'label':
                    res += branch_to.get(items[k].label, [])
                return res
            worst = 0
            stack = [(p, 0) for p in preds(i)]
            seen = {}
            while stack:
                j, d = stack.pop()
                if d >= MAXLOOK: continue
                if j in seen and seen[j] <= d: continue
                seen[j] = d
                pr = items[j]
                if pr.kind not in ('label', 'raw'):
                    n = need(pr, cons)
                    if n > d: worst = max(worst, n-d)
                    nd = d + pr.states()
                else: nd = d
                for p in preds(j): stack.append((p, nd))
            if worst > 0:
                ins = []
                w = worst
                while w > 0:
                    k = min(w, 16); ins.append(Ins('s_nop', [str(k-1)], '', 'auto')); w -= k
                self.items = items[:i] + ins + items[i:]
                total += worst
                i += len(ins)
                branch_to = self._maps()
            i += 1
        return total
    def text(self):
        return '\n'.join(it.text() for it in self.items) + '\n'

def V(i, n=1): return f'v{i}' if n == 1 else f'v[{i}:{i+n-1}]'
def S(i, n=1): return f's{i}' if n == 1 else f's[{i}:{i+n-1}]'
def A(i, n=1): return f'a{i}' if n == 1 else f'a[{i}:{i+n-1}]'

WS_DBG = 0x1800000
class Stamps:
    def __init__(self, a, base=64, enable=True):
        self.a = a; self.base = base; self.n = 0; self.enable = enable; self.names = []
    def stamp(self, name):
        if not self.enable: return
        self.a.I('s_memtime', S(self.base+2*self.n, 2)); self.n += 1; self.names.append(name)
    def dump(self, ws_lo, ws_hi, region):
        if not self.enable: return
        a = self.a
        a.I('s_memrealtime', S(94,2))
        a.I('s_waitcnt', 'lgkmcnt(0)')
        a.I('s_add_u32', 's96', S(ws_lo), hex(WS_DBG + region*0x20000)); a.I('s_addc_u32', 's97', S(ws_hi), '0')
        a.I('s_mov_b32', 's98', '0x20000'); a.I('s_mov_b32', 's99', '0x20000')
        a.I('v_lshrrev_b32', 'v250', '6', 'v0'); a.I('v_lshlrev_b32', 'v250', '6', 'v250')
        a.I('s_lshl_b32', 's100', 's2', '9'); a.I('v_add_u32', 'v250', 's100', 'v250')
        for i in range(self.n):
            a.I('v_mov_b32', 'v251', S(self.base+2*i))
            a.I('buffer_store_dword', 'v251', 'v250', S(96,4), '0', mods=f'offen offset:{4*i}')
            a.I('s_nop', '1')
        a.I('v_mov_b32', 'v251', 's94')
        a.I('buffer_store_dword', 'v251', 'v250', S(96,4), '0', mods='offen offset:60')
```

```python
from asmlib import *

KA = dict(u=0, Are=8, Aim=16, Bre=24, Bim=32, Cre=40, Cim=48, logdt=56, D=64, bx=72, w1=80, b1=88, w2=96, out=104, dbg=112, ws=120)
WS_XT4 = 0x000000
WS_STAT = 0x280000
WS_CS = 0x288000
WS_KR = 0x300000
WS_HT4 = 0x600000
WS_HF = 0x600000
WS_ACT = 0x900000
WS_W1F = 0x1000000
WS_W2F = 0x1300000
WS_SIZE = 0x1600000
LOG2E = 0x3fb8aa3b
INV2PI = 0x3e22f983

def srd(a, sb, lo, hi, size, off=0):
    if off:
        a.I('s_add_u32', S(sb), S(lo), hex(off)); a.I('s_addc_u32', S(sb+1), S(hi), '0')
    else:
        a.I('s_mov_b32', S(sb), S(lo)); a.I('s_mov_b32', S(sb+1), S(hi))
    a.I('s_mov_b32', S(sb+2), hex(size)); a.I('s_mov_b32', S(sb+3), '0x20000')

def cmul(a, d, x, y, t):
    a.I('v_pk_mul_f32', V(t,2), V(x,2), V(y,2), mods='op_sel:[1,1] op_sel_hi:[1,0] neg_lo:[1,0]')
    a.I('v_pk_fma_f32', V(d,2), V(x,2), V(y,2), V(t,2), mods='op_sel:[0,0,0] op_sel_hi:[0,1,1]')

def k1_ln(a):
    a.L('K1_LN')
    a.I('s_load_dwordx2', S(4,2), S(0,2), str(KA['u']))
    a.I('s_load_dwordx2', S(6,2), S(0,2), str(KA['ws']))
    a.I('v_lshrrev_b32', 'v1', '4', 'v0')
    a.I('v_and_b32', 'v2', '15', 'v0')
    a.I('v_mul_u32_u24', 'v3', '1280', 'v1')
    a.I('v_lshl_add_u32', 'v3', 'v2', '4', 'v3')
    a.I('v_mul_u32_u24', 'v4', '1296', 'v1')
    a.I('v_lshl_add_u32', 'v4', 'v2', '4', 'v4')
    a.I('s_mul_i32', 's12', 's2', '20480')
    a.I('s_waitcnt', 'lgkmcnt(0)')
    srd(a, 8, 4, 5, 2621440)
    srd(a, 16, 6, 7, WS_SIZE)
    for i in range(5):
        a.I('buffer_load_dwordx4', V(12+4*i,4), 'v3', S(8,4), 's12', mods=f'offen offset:{i*256}')
    a.I('v_and_b32', 'v5', '15', 'v0')
    a.I('v_mul_u32_u24', 'v6', '1296', 'v5')
    a.I('v_lshl_add_u32', 'v6', 'v1', '3', 'v6')
    a.I('v_lshlrev_b32', 'v7', '14', 'v1')
    a.I('v_lshl_add_u32', 'v7', 'v5', '3', 'v7')
    a.I('s_lshl_b32', 's13', 's2', '7')
    for i in range(5):
        a.I('s_waitcnt', f'vmcnt({4-i})')
        a.I('ds_write_b128', 'v4', V(12+4*i,4), mods=f'offset:{i*256}')
        for k in range(4):
            a.I('v_lshlrev_b32', V(40+8*i+2*k), '16', V(12+4*i+k))
            a.I('v_and_b32', V(41+8*i+2*k), '0xffff0000', V(12+4*i+k))
    a.I('v_add_f32', 'v8', 'v40', 'v41'); a.I('v_add_f32', 'v9', 'v42', 'v43')
    for k in range(4, 40, 2):
        a.I('v_add_f32', 'v8', 'v8', V(40+k)); a.I('v_add_f32', 'v9', 'v9', V(41+k))
    a.I('v_add_f32', 'v8', 'v8', 'v9')
    for sh in (8, 4, 2, 1):
        a.I('v_add_f32_dpp', 'v8', 'v8', 'v8', mods=f'row_ror:{sh} row_mask:0xf bank_mask:0xf')
    a.I('v_mul_f32', 'v8', '0x3acccccd', 'v8')
    for k in range(40): a.I('v_sub_f32', V(40+k), V(40+k), 'v8')
    a.I('v_mul_f32', 'v9', 'v40', 'v40'); a.I('v_mul_f32', 'v10', 'v41', 'v41')
    for k in range(2, 40, 2):
        a.I('v_fmac_f32', 'v9', V(40+k), V(40+k)); a.I('v_fmac_f32', 'v10', V(41+k), V(41+k))
    a.I('v_add_f32', 'v9', 'v9', 'v10')
    for sh in (8, 4, 2, 1):
        a.I('v_add_f32_dpp', 'v9', 'v9', 'v9', mods=f'row_ror:{sh} row_mask:0xf bank_mask:0xf')
    a.I('v_mov_b32', 'v10', '0x3727c5ac')
    a.I('v_fmac_f32', 'v10', '0x3acccccd', 'v9')
    a.I('v_rsq_f32', 'v9', 'v10')
    a.I('v_lshlrev_b32', 'v11', '3', 'v1')
    a.I('s_add_u32', 's14', 's13', hex(WS_STAT))
    a.I('v_cmp_eq_u32', 'vcc', '0', 'v2')
    a.I('s_and_saveexec_b64', S(20,2), 'vcc')
    a.I('buffer_store_dwordx2', V(8,2), 'v11', S(16,4), 's14', mods='offen')
    a.I('s_mov_b64', 'exec', S(20,2))
    a.I('s_waitcnt', 'lgkmcnt(0)')
    a.I('s_barrier')
    for i in range(10):
        a.I('ds_read_b64', V(12+2*i,2), 'v6', mods=f'offset:{i*128}')
    for i in range(10):
        a.I('s_add_u32', 's15', 's13', hex(WS_XT4 + i*16*16384))
        a.I('s_waitcnt', f'lgkmcnt({9-i})')
        a.I('buffer_store_dwordx2', V(12+2*i,2), 'v7', S(16,4), 's15', mods='offen')
    a.I('s_endpgm')

def k1_cs(a):
    a.L('K1_CS')
    a.I('s_load_dwordx2', S(4,2), S(0,2), str(KA['w1']))
    a.I('s_load_dwordx2', S(6,2), S(0,2), str(KA['ws']))
    a.I('s_sub_u32', 's3', 's2', '448')
    a.I('v_and_b32', 'v1', '7', 'v0')
    a.I('v_lshrrev_b32', 'v2', '3', 'v0')
    a.I('v_mul_u32_u24', 'v3', '3456', 'v2')
    a.I('v_lshl_add_u32', 'v3', 'v1', '4', 'v3')
    a.I('s_lshl_b32', 's12', 's3', '7')
    a.I('s_waitcnt', 'lgkmcnt(0)')
    srd(a, 8, 4, 5, 640*1728*2)
    srd(a, 16, 6, 7, WS_SIZE)
    for i in range(20):
        if i: a.I('s_add_u32', 's12', 's12', str(32*3456))
        a.I('buffer_load_dwordx4', V(12+4*i,4), 'v3', S(8,4), 's12', mods='offen')
    for k in range(8): a.I('v_mov_b32', V(4+k), '0')
    for i in range(20):
        a.I('s_waitcnt', f'vmcnt({19-i})')
        for k in range(4):
            a.I('v_lshlrev_b32', 'v92', '16', V(12+4*i+k)); a.I('v_and_b32', 'v93', '0xffff0000', V(12+4*i+k))
            a.I('v_add_f32', V(4+2*k), V(4+2*k), 'v92'); a.I('v_add_f32', V(5+2*k), V(5+2*k), 'v93')
    a.I('v_lshlrev_b32', 'v94', '8', 'v2'); a.I('v_lshl_add_u32', 'v94', 'v1', '5', 'v94')
    a.I('ds_write_b128', 'v94', V(4,4)); a.I('ds_write_b128', 'v94', V(8,4), mods='offset:16')
    a.I('s_waitcnt', 'lgkmcnt(0)'); a.I('s_barrier')
    a.I('v_cmp_gt_u32', 'vcc', '64', 'v0')
    a.I('s_and_saveexec_b64', S(20,2), 'vcc')
    a.I('s_cbranch_execz', 'K1_CS_END')
    a.I('v_lshlrev_b32', 'v1', '2', 'v0')
    for k in range(32): a.I('ds_read_b32', V(12+k), 'v1', mods=f'offset:{k*256}')
    a.I('s_waitcnt', 'lgkmcnt(0)')
    for k in range(1, 32): a.I('v_add_f32', 'v12', 'v12', V(12+k))
    a.I('s_lshl_b32', 's12', 's3', '8'); a.I('s_add_u32', 's12', 's12', hex(WS_CS))
    a.I('buffer_store_dword', 'v12', 'v1', S(16,4), 's12', mods='offen')
    a.L('K1_CS_END')
    a.I('s_endpgm')

ROW = 544
KDOFF = lambda ch: ch*704*4
E2B = 2*704*4
E1B = E2B + 42*ROW
K1_LDS = E1B + 64*ROW

def k1_kgen(a):
    a.L('K1_KG')
    a.I('s_load_dwordx4', S(4,4), S(0,2), '8')
    a.I('s_load_dwordx4', S(8,4), S(0,2), '24')
    a.I('s_load_dwordx4', S(12,4), S(0,2), '40')
    a.I('s_load_dwordx2', S(16,2), S(0,2), '56')
    a.I('s_load_dwordx2', S(18,2), S(0,2), '120')
    a.I('s_sub_u32', 's3', 's2', '128')
    a.I('v_lshrrev_b32', 'v1', '7', 'v0')
    a.I('v_and_b32', 'v2', '127', 'v0')
    a.I('v_lshlrev_b32', 'v3', '1', 'v0')
    a.I('s_lshl_b32', 's20', 's3', '9')
    a.I('v_lshlrev_b32', 'v4', '1', 'v1')
    a.I('s_lshl_b32', 's21', 's3', '2')
    a.I('s_waitcnt', 'lgkmcnt(0)')
    sz = 640*128*2
    for i, (lo) in enumerate((4, 6, 8, 10, 12, 14)):
        srd(a, 24, lo, lo+1, sz)
        a.I('buffer_load_ushort', V(10+i), 'v3', S(24,4), 's20', mods='offen')
    srd(a, 28, 16, 17, 1280)
    a.I('buffer_load_ushort', 'v16', 'v4', S(28,4), 's21', mods='offen')
    srd(a, 32, 18, 19, WS_SIZE)
    a.I('v_mul_u32_u24', 'v5', str(32*ROW), 'v1'); a.I('v_lshl_add_u32', 'v5', 'v2', '2', 'v5')
    a.I('v_add_u32', 'v5', str(E1B), 'v5')
    a.I('v_mul_u32_u24', 'v6', str(21*ROW), 'v1'); a.I('v_lshl_add_u32', 'v6', 'v2', '2', 'v6')
    a.I('v_add_u32', 'v6', str(E2B), 'v6')
    a.I('s_waitcnt', 'vmcnt(0)')
    for i in range(7): a.I('v_lshlrev_b32', V(10+i), '16', V(10+i))
    a.I('v_mul_f32', 'v16', hex(LOG2E), 'v16'); a.I('v_exp_f32', 'v16', 'v16')
    a.I('v_cvt_pk_bf16_f32', 'v16', 'v16', 'v16'); a.I('v_lshlrev_b32', 'v16', '16', 'v16')
    a.I('v_mul_f32', 'v10', 'v16', 'v10'); a.I('v_mul_f32', 'v11', 'v16', 'v11')
    a.I('v_mul_f32', 'v10', hex(LOG2E), 'v10'); a.I('v_mul_f32', 'v11', hex(INV2PI), 'v11')
    a.I('v_mul_f32', 'v12', 'v16', 'v12'); a.I('v_mul_f32', 'v13', 'v16', 'v13')
    T = 18
    cmul(a, 20, 14, 12, T)
    def cis(d, v):
        a.I('v_mul_f32', V(d), hex(f2u(float(v))), 'v10'); a.I('v_mul_f32', V(d+1), hex(f2u(float(v))), 'v11')
        a.I('v_exp_f32', V(d), V(d)); a.I('v_fract_f32', V(d+1), V(d+1))
        a.I('v_cos_f32', V(T), V(d+1)); a.I('v_sin_f32', V(d+1), V(d+1))
        a.I('v_mul_f32', V(d+1), V(d), V(d+1)); a.I('v_mul_f32', V(d), V(d), V(T))
    g1, g2, g3, g4, g5, g6, g7, g8 = 22, 24, 26, 28, 30, 32, 34, 36
    g256, g512, g1024, g768, tmp = 38, 40, 42, 44, 46
    cis(g1, 1); cis(g8, 8); cis(g256, 256); cis(g512, 512); cis(g1024, 1024)
    cmul(a, g2, g1, g1, T); cmul(a, g3, g2, g1, T); cmul(a, g4, g2, g2, T); cmul(a, g5, g4, g1, T); cmul(a, g6, g3, g3, T); cmul(a, g7, g4, g3, T)
    cmul(a, g768, g512, g256, T)
    pk = 48
    cnt = [0]
    def st2(row, src):
        r = pk + (cnt[0] & 3); cnt[0] += 1
        a.I('v_cvt_pk_bf16_f32', V(r), V(src), '-'+V(src+1))
        a.I('ds_write_b32', 'v6', V(r), mods=f'offset:{row*ROW}')
    a.I('v_mov_b32', V(pk), '0x3f80')
    a.I('ds_write_b32', 'v6', V(pk)); cnt[0] = 1
    for row, g in zip(range(1, 8), (g1, g2, g3, g4, g5, g6, g7)): st2(row, g)
    st2(8, g256)
    for row, (p, q) in zip((9, 10, 11), ((g256, g2), (g256, g4), (g256, g6))): cmul(a, tmp, p, q, T); st2(row, tmp)
    st2(12, g512); cmul(a, tmp, g512, g4, T); st2(13, tmp)
    st2(14, g768); cmul(a, tmp, g768, g4, T); st2(15, tmp)
    st2(16, g1024)
    for row, (p, q) in zip((17, 18, 19, 20), ((g1024, g256), (g1024, g512), (g1024, g768), (g1024, g1024))): cmul(a, tmp, p, q, T); st2(row, tmp)
    for row in range(32):
        r = pk + (cnt[0] & 3); cnt[0] += 1
        a.I('v_cvt_pk_bf16_f32', V(r), 'v20', 'v21')
        a.I('ds_write_b32', 'v5', V(r), mods=f'offset:{row*ROW}')
        if row < 31: cmul(a, 20, 20, g8, T)
    a.I('v_and_b32', 'v7', '63', 'v0')
    a.I('v_and_b32', 'v8', '15', 'v7')
    a.I('v_lshrrev_b32', 'v9', '4', 'v7')
    a.I('v_lshrrev_b32', 'v10', '6', 'v0')
    a.I('v_and_b32', 'v11', '1', 'v10')
    a.I('v_lshl_add_u32', 'v12', 'v11', '4', 'v8')
    a.I('v_lshl_add_u32', 'v12', 'v1', '5', 'v12')
    a.I('v_mul_u32_u24', 'v12', str(ROW), 'v12'); a.I('v_lshl_add_u32', 'v12', 'v9', '4', 'v12')
    a.I('v_add_u32', 'v12', str(E1B), 'v12')
    a.I('v_mul_u32_u24', 'v13', '21', 'v1'); a.I('v_add_u32', 'v13', 'v13', 'v8')
    a.I('v_mul_u32_u24', 'v13', str(ROW), 'v13'); a.I('v_lshl_add_u32', 'v13', 'v9', '4', 'v13')
    a.I('v_add_u32', 'v13', str(E2B), 'v13')
    a.I('v_mov_b32', 'v14', 'v8'); a.I('v_mov_b32', 'v15', '8')
    a.I('v_add_u32', 'v16', '248', 'v8')
    a.I('v_cmp_le_u32', 'vcc', '8', 'v8'); a.I('v_cndmask_b32', 'v14', 'v14', 'v16', 'vcc'); a.I('v_mov_b32', 'v17', '4'); a.I('v_cndmask_b32', 'v15', 'v15', 'v17', 'vcc')
    a.I('v_add_u32', 'v16', '372', 'v8')
    a.I('v_cmp_le_u32', 'vcc', '12', 'v8'); a.I('v_cndmask_b32', 'v14', 'v14', 'v16', 'vcc'); a.I('v_mov_b32', 'v17', '2'); a.I('v_cndmask_b32', 'v15', 'v15', 'v17', 'vcc')
    a.I('v_add_u32', 'v16', '434', 'v8')
    a.I('v_cmp_le_u32', 'vcc', '14', 'v8'); a.I('v_cndmask_b32', 'v14', 'v14', 'v16', 'vcc')
    a.I('v_lshlrev_b32', 'v16', '5', 'v8'); a.I('v_add_u32', 'v16', '512', 'v16')
    a.I('v_mov_b32', 'v17', '672')
    a.I('v_cmp_lt_u32', 'vcc', '4', 'v8'); a.I('v_cndmask_b32', 'v16', 'v16', 'v17', 'vcc')
    a.I('v_lshlrev_b32', 'v17', '2', 'v9'); a.I('v_lshl_add_u32', 'v17', 'v11', '4', 'v17')
    a.I('v_mul_u32_u24', 'v18', 'v15', 'v17'); a.I('v_add_u32', 'v14', 'v14', 'v18')
    a.I('v_add_u32', 'v16', 'v16', 'v17')
    a.I('v_mul_u32_u24', 'v18', str(704*4), 'v1'); a.I('v_add_u32', 'v18', str(KDOFF(0)), 'v18')
    a.I('v_lshl_add_u32', 'v14', 'v14', '2', 'v18'); a.I('v_lshl_add_u32', 'v16', 'v16', '2', 'v18')
    a.I('v_lshlrev_b32', 'v15', '2', 'v15')
    for k in range(8): a.I('v_mov_b32', V(24+k), '0')
    a.I('s_waitcnt', 'lgkmcnt(0)'); a.I('s_barrier')
    def ld(s):
        a.I('ds_read_b128', V(32+12*s,4), 'v12', mods=f'offset:{s*64}')
        a.I('ds_read_b128', V(36+12*s,4), 'v13', mods=f'offset:{s*64}')
        a.I('ds_read_b128', V(40+12*s,4), 'v13', mods=f'offset:{s*64+16*ROW}')
    for s in range(4): ld(s)
    for s in range(8):
        outstanding_after = min(3*(7-s), 9)
        a.I('s_waitcnt', f'lgkmcnt({outstanding_after})')
        a.I('v_mfma_f32_16x16x32_bf16', V(24,4), V(32+12*s,4), V(36+12*s,4), V(24,4))
        a.I('v_mfma_f32_16x16x32_bf16', V(28,4), V(32+12*s,4), V(40+12*s,4), V(28,4))
        if s+4 < 8: ld(s+4)
    a.I('v_add_u32', 'v19', 'v14', 'v15'); a.I('v_add_u32', 'v20', 'v19', 'v15'); a.I('v_add_u32', 'v21', 'v20', 'v15')
    for r, ad in enumerate(('v14', 'v19', 'v20', 'v21')): a.I('ds_write_b32', ad, V(24+r))
    for r in range(4): a.I('ds_write_b32', 'v16', V(28+r), mods=f'offset:{4*r}')
    a.I('v_lshlrev_b32', 'v2', '3', 'v0'); a.I('v_sub_u32', 'v2', '2047', 'v2')
    for e in range(8):
        a.I('v_subrev_u32', V(32+e), str(e), 'v2')
        a.I('v_cvt_f32_u32', V(40+e), V(32+e))
    for e in range(0, 8, 2):
        a.I('v_cvt_pk_bf16_f32', V(48+e), V(40+e), V(41+e))
        a.I('v_lshrrev_b32', V(49+e), '16', V(48+e)); a.I('v_and_b32', V(48+e), '0xffff', V(48+e))
    for e in range(8):
        a.I('v_subrev_u32', V(48+e), '17024', V(48+e))
        a.I('v_cmp_gt_u32', 'vcc', '128', V(32+e))
        a.I('v_cndmask_b32', V(48+e), V(48+e), V(32+e), 'vcc')
        a.I('v_lshlrev_b32', V(48+e), '2', V(48+e))
    a.I('v_lshlrev_b32', 'v3', '4', 'v0')
    a.I('s_lshl_b32', 's20', 's3', '13')
    a.I('s_add_u32', 's20', 's20', hex(WS_KR))
    a.I('s_waitcnt', 'lgkmcnt(0)'); a.I('s_barrier')
    for ch in range(2):
        for e in range(8): a.I('ds_read_b32', V(56+8*ch+e), V(48+e), mods=f'offset:{KDOFF(ch)}')
    for ch in range(2):
        a.I('s_waitcnt', f'lgkmcnt({8 if ch == 0 else 0})')
        for e in range(0, 8, 2): a.I('v_cvt_pk_bf16_f32', V(72+4*ch+e//2), V(56+8*ch+e), V(57+8*ch+e))
        a.I('buffer_store_dwordx4', V(72+4*ch,4), 'v3', S(32,4), 's20', mods=f'offen' + ('' if ch == 0 else ''))
        if ch == 0: a.I('s_add_u32', 's20', 's20', '4096')
    a.I('s_endpgm')

import struct
def f2u(f): return struct.unpack('<I', struct.pack('<f', f))[0]

def kernel_k1():
    a = Asm()
    a.I('s_cmp_lt_u32', 's2', '128'); a.I('s_cbranch_scc1', 'K1_LN')
    a.I('s_cmp_lt_u32', 's2', '448'); a.I('s_cbranch_scc1', 'K1_KG')
    a.I('s_cmp_lt_u32', 's2', '475'); a.I('s_cbranch_scc1', 'K1_CS')
    a.I('s_endpgm')
    k1_ln(a); k1_kgen(a); k1_cs(a)
    return a, dict(name='k1_kernel', grid=475, block=256, lds=K1_LDS, vgpr=128, sgpr=48)
```

```python
from asmlib import *
from gen1 import KA, WS_XT4, WS_STAT, WS_KR, WS_HF, WS_W1F, WS_W2F, WS_SIZE, srd

UOFF = lambda c: c*4608
ZB = 4*4608
ZST = 4160
ZOFF = lambda c: ZB + c*4*ZST
K2_LDS = ZB + 16*ZST
X0, ST0, UR0 = 10, 26, 42
L0, L2, W5 = 60, 76, 92
ACC, A0, B0, A1, B1 = 96, 128, 160, 192, 224

def load_set(a, Areg, Breg, k):
    m, r = divmod(k, 3)
    if r == 0: a.I('ds_read_b64', V(Areg+4*m, 2), 'v4', mods=f'offset:{512*(7-m)}')
    elif r == 1: a.I('ds_read_b64', V(Areg+4*m+2, 2), 'v4', mods=f'offset:{512*(7-m)+8}')
    else: a.I('ds_read_b128', V(Breg+4*m, 4), 'v5', mods=f'offset:{512*m}')

def conv_class(a, Ac, Bc, An, Bn, prefetch):
    a.I('s_waitcnt', 'lgkmcnt(0)')
    if prefetch:
        a.I('v_subrev_u32', 'v4', '64', 'v4'); a.I('v_subrev_u32', 'v5', '64', 'v5')
    k = 0
    for m in range(8):
        for t in range(m, 8):
            a.I('v_mfma_f32_16x16x32_bf16', V(ACC+4*t,4), V(Ac+4*m,4), V(Bc+4*(t-m),4), V(ACC+4*t,4))
            if prefetch and k < 24:
                load_set(a, An, Bn, k); k += 1

def k2_tile(a):
    a.L('K2_TILE')
    a.I('s_load_dwordx2', S(4,2), S(0,2), str(KA['ws']))
    a.I('s_load_dwordx2', S(12,2), S(0,2), str(KA['w1']))
    a.I('s_load_dwordx2', S(14,2), S(0,2), str(KA['w2']))
    a.I('v_and_b32', 'v1', '63', 'v0'); a.I('v_lshrrev_b32', 'v2', '6', 'v0')
    a.I('v_readfirstlane_b32', 's24', 'v2')
    a.I('s_sub_u32', 's25', 's2', '160'); a.I('s_lshl_b32', 's25', 's25', '2'); a.I('s_add_u32', 's25', 's25', 's24')
    a.I('s_mul_i32', 's26', 's24', '20480')
    a.I('v_lshlrev_b32', 'v5', '4', 'v1')
    a.I('v_lshrrev_b32', 'v6', '3', 'v1'); a.I('v_mul_u32_u24', 'v6', '3456', 'v6'); a.I('v_and_b32', 'v7', '7', 'v1'); a.I('v_lshl_add_u32', 'v6', 'v7', '4', 'v6')
    for c in range(5):
        a.I('v_add_u32', 'v8', str(64*c), 'v1'); a.I('v_mul_u32_u24', 'v9', '6554', 'v8'); a.I('v_lshrrev_b32', 'v9', '16', 'v9')
        a.I('v_mul_u32_u24', V(10+c), '10', 'v9'); a.I('v_sub_u32', V(10+c), 'v8', V(10+c)); a.I('v_lshlrev_b32', V(10+c), '4', V(10+c))
        a.I('v_mul_u32_u24', 'v9', '1280', 'v9'); a.I('v_add_u32', V(10+c), V(10+c), 'v9')
    a.I('v_and_b32', 'v8', '15', 'v1'); a.I('v_lshrrev_b32', 'v9', '4', 'v1'); a.I('v_lshrrev_b32', 'v15', '2', 'v8'); a.I('v_lshl_add_u32', 'v15', 'v9', '2', 'v15')
    a.I('v_and_b32', 'v8', '3', 'v8')
    a.I('v_lshlrev_b32', 'v16', '7', 'v15'); a.I('v_lshl_add_u32', 'v16', 'v8', '3', 'v16'); a.I('v_add_u32', 'v16', 's26', 'v16')
    a.I('v_mul_u32_u24', 'v17', '160', 'v15'); a.I('v_mul_u32_u24', 'v8', '40', 'v8'); a.I('v_add_u32', 'v17', 'v17', 'v8'); a.I('v_add_u32', 'v17', 's26', 'v17')
    a.I('s_waitcnt', 'lgkmcnt(0)')
    srd(a, 8, 4, 5, WS_SIZE); srd(a, 16, 12, 13, 640*3456); srd(a, 20, 14, 15, 1728*1280)
    def w1task(sidx, slot, sout):
        a.I('s_mul_i32', 's30', S(sidx), '2428'); a.I('s_lshr_b32', 's30', 's30', '16')
        a.I('s_mul_i32', 's31', 's30', '27'); a.I('s_sub_u32', 's31', S(sidx), 's31')
        a.I('s_mul_i32', 's32', 's30', str(32*3456)); a.I('s_lshl_b32', 's33', 's31', '7'); a.I('s_add_u32', 's32', 's32', 's33')
        for c in range(4):
            a.I('s_add_u32', 'm0', 's26', str(slot*5120 + c*1024)); a.I('s_add_u32', 's33', 's32', str(c*8*3456))
            a.I('buffer_load_dwordx4', 'v6', S(16,4), 's33', mods='offen lds')
        a.I('s_mov_b32', S(sout), 's30'); a.I('s_lshl_b32', S(sout+1), 's31', '2')
    def w2task(sidx, slot, sout):
        a.I('s_lshr_b32', 's30', S(sidx), '3'); a.I('s_and_b32', 's31', S(sidx), '7')
        a.I('s_mul_i32', 's32', 's30', str(32*1280)); a.I('s_mul_i32', 's33', 's31', '160'); a.I('s_add_u32', 's32', 's32', 's33')
        for c in range(5):
            a.I('s_add_u32', 'm0', 's26', str(slot*5120 + c*1024))
            a.I('buffer_load_dwordx4', V(10+c), S(20,4), 's32', mods='offen lds')
        a.I('s_mul_i32', 's33', 's31', '54'); a.I('s_add_u32', 's33', 's33', 's30'); a.I('s_mul_i32', 's33', 's33', '5120'); a.I('s_add_u32', S(sout), 's33', hex(WS_W2F))
    a.I('s_add_u32', 's27', 's25', '384'); a.I('s_cmp_lt_u32', 's27', '540'); a.I('s_cselect_b32', 's27', 's27', 's25')
    a.I('s_add_u32', 's28', 's25', '384'); a.I('s_cmp_lt_u32', 's28', '432'); a.I('s_cselect_b32', 's28', 's28', 's25')
    w1task(25, 0, 36); w1task(27, 1, 38); w2task(25, 2, 40); w2task(28, 3, 41)
    R = 20
    for slot, sp in ((0, 36), (1, 38)):
        a.I('s_waitcnt', f'vmcnt({14 if slot == 0 else 10 + 4})')
        for T in range(4):
            a.I('ds_read_b64_tr_b16', V(R+16*slot+4*T,2), 'v16', mods=f'offset:{slot*5120 + 32*T}')
            a.I('ds_read_b64_tr_b16', V(R+16*slot+4*T+2,2), 'v16', mods=f'offset:{slot*5120 + 32*T + 2048}')
        a.I('s_waitcnt', 'lgkmcnt(0)')
        for T in range(4):
            a.I('s_add_u32', 's30', S(sp+1), str(T)); a.I('s_mul_i32', 's31', 's30', '9363'); a.I('s_lshr_b32', 's31', 's31', '16')
            a.I('s_mul_i32', 's32', 's31', '7'); a.I('s_sub_u32', 's32', 's30', 's32')
            a.I('s_mul_i32', 's31', 's31', '20'); a.I('s_add_u32', 's31', 's31', S(sp)); a.I('s_mul_i32', 's31', 's31', '7'); a.I('s_add_u32', 's31', 's31', 's32')
            a.I('s_lshl_b32', 's31', 's31', '10'); a.I('s_add_u32', 's31', 's31', hex(WS_W1F))
            a.I('buffer_store_dwordx4', V(R+16*slot+4*T,4), 'v5', S(8,4), 's31', mods='offen')
    R2 = 52
    for slot, sp in ((2, 40), (3, 41)):
        a.I('s_waitcnt', f'vmcnt({13})')
        for T in range(5):
            a.I('ds_read_b64_tr_b16', V(R2+20*(slot-2)+4*T,2), 'v17', mods=f'offset:{slot*5120 + 8*T}')
            a.I('ds_read_b64_tr_b16', V(R2+20*(slot-2)+4*T+2,2), 'v17', mods=f'offset:{slot*5120 + 8*T + 2560}')
        a.I('s_waitcnt', 'lgkmcnt(0)')
        for T in range(5):
            a.I('buffer_store_dwordx4', V(R2+20*(slot-2)+4*T,4), 'v5', S(8,4), S(sp), mods=f'offen offset:{1024*T}' if T < 4 else 'offen')
            if T == 3: a.I('s_add_u32', S(sp), S(sp), '4096')
    a.I('s_endpgm')

def kernel_k2(prof=False):
    a = Asm()
    st_ = Stamps(a, enable=prof)
    a.I('s_cmp_ge_u32', 's2', '256'); a.I('s_cbranch_scc1', 'K2_END')
    a.I('s_cmp_ge_u32', 's2', '160'); a.I('s_cbranch_scc1', 'K2_TILE')
    st_.stamp('start')
    a.I('s_and_b32', 's26', 's2', '7'); a.I('s_lshr_b32', 's27', 's2', '3')
    a.I('s_lshr_b32', 's28', 's27', '1'); a.I('s_lshl_b32', 's28', 's28', '3'); a.I('s_add_u32', 's28', 's28', 's26')
    a.I('s_and_b32', 's27', 's27', '1')
    a.I('s_lshr_b32', 's29', 's28', '2'); a.I('s_and_b32', 's28', 's28', '3')
    a.I('s_lshl_b32', 's30', 's29', '3'); a.I('s_lshl_b32', 's31', 's27', '2'); a.I('s_add_u32', 's30', 's30', 's31'); a.I('s_add_u32', 's30', 's30', 's28')
    a.I('s_lshl_b32', 's31', 's29', '10'); a.I('s_lshl_b32', 's28', 's28', '8'); a.I('s_add_u32', 's31', 's31', 's28'); a.I('s_lshl_b32', 's27', 's27', '3'); a.I('s_add_u32', 's31', 's31', 's27')
    a.I('s_load_dwordx2', S(4,2), S(0,2), str(KA['ws']))
    a.I('s_load_dwordx2', S(6,2), S(0,2), str(KA['D']))
    a.I('v_and_b32', 'v1', '63', 'v0')
    a.I('v_lshrrev_b32', 'v2', '6', 'v0')
    a.I('v_lshlrev_b32', 'v3', '4', 'v0')
    a.I('s_lshl_b32', 's12', 's30', '14')
    a.I('s_lshl_b32', 's13', 's30', '3')
    a.I('s_waitcnt', 'lgkmcnt(0)')
    srd(a, 8, 4, 5, WS_SIZE)
    a.I('s_add_u32', 's6', 's6', 's13'); a.I('s_addc_u32', 's7', 's7', '0')
    a.I('s_load_dwordx2', S(16,2), S(6,2), '0')
    a.I('v_lshlrev_b32', 'v6', '12', 'v2'); a.I('v_lshl_add_u32', 'v6', 'v1', '4', 'v6')
    a.I('s_add_u32', 's14', 's12', hex(WS_KR))
    for i in range(4):
        a.I('buffer_load_dwordx4', V(L0+4*i,4), 'v6', S(8,4), 's14', mods=f'offen offset:{1024*i}')
        a.I('buffer_load_dwordx4', V(L2+4*i,4), 'v6', S(8,4), 's14', mods=f'offen offset:{1024*i+4}')
        a.I('buffer_load_dword', V(W5+i), 'v6', S(8,4), 's14', mods=f'offen offset:{1024*i+20}')
    a.I('s_add_u32', 's14', 's12', hex(WS_XT4))
    a.I('s_mov_b32', 's15', hex(WS_STAT))
    for i in range(4):
        a.I('s_add_u32', 's18', 's14', str(4096*i)); a.I('s_add_u32', 's19', 's15', str(4096*i))
        a.I('buffer_load_dwordx4', V(X0+4*i,4), 'v3', S(8,4), 's18', mods='offen')
        a.I('buffer_load_dwordx4', V(ST0+4*i,4), 'v3', S(8,4), 's19', mods='offen')
    st_.stamp('loads-issued')
    a.I('v_mul_u32_u24', 'v7', '4608', 'v2'); a.I('v_lshl_add_u32', 'v7', 'v1', '3', 'v7')
    a.I('v_mov_b32', 'v8', '0'); a.I('v_mov_b32', 'v9', '0')
    a.I('ds_write_b64', 'v7', V(8,2))
    a.I('v_and_b32', 'v7', '15', 'v1'); a.I('v_lshrrev_b32', 'v58', '2', 'v7'); a.I('v_and_b32', 'v7', '3', 'v7')
    a.I('v_mul_u32_u24', 'v58', str(ZST), 'v58'); a.I('v_lshl_add_u32', 'v7', 'v7', '3', 'v58')
    a.I('v_mul_u32_u24', 'v59', str(4*ZST), 'v2')
    a.I('v_add_u32', 'v7', 'v7', 'v59'); a.I('v_add_u32', 'v7', str(ZB+4096), 'v7')
    a.I('ds_write_b64', 'v7', V(8,2))
    a.I('v_lshl_add_u32', 'v7', 'v1', '4', 'v59'); a.I('v_add_u32', 'v7', str(ZB), 'v7')
    a.I('v_cmp_eq_u32', 'vcc', '63', 'v1')
    for i in range(4):
        a.I('s_waitcnt', f'vmcnt({8 + 3*(3-i)})')
        l0, l2, w5 = L0+4*i, L2+4*i, W5+i
        if i == 3:
            a.I('v_cndmask_b32', V(l2+3), V(l2+3), 'v8', 'vcc'); a.I('v_cndmask_b32', V(w5), V(w5), 'v8', 'vcc')
        a.I('ds_write_b128', 'v7', V(l0,4), mods=f'offset:{1024*i}')
        a.I('ds_write_b128', 'v7', V(l2,4), mods=f'offset:{1024*i+2*ZST}')
        T = A0 + 8*i
        a.I('v_alignbit_b32', V(T), V(l0+1), V(l0), '16'); a.I('v_alignbit_b32', V(T+1), V(l0+2), V(l0+1), '16')
        a.I('v_alignbit_b32', V(T+2), V(l0+3), V(l0+2), '16'); a.I('v_alignbit_b32', V(T+3), V(l2+3), V(l0+3), '16')
        a.I('v_mov_b32', V(T+4), V(T+1)); a.I('v_mov_b32', V(T+5), V(T+2)); a.I('v_mov_b32', V(T+6), V(T+3))
        a.I('v_alignbit_b32', V(T+7), V(w5), V(l2+3), '16')
        a.I('ds_write_b128', 'v7', V(T,4), mods=f'offset:{1024*i+ZST}')
        a.I('ds_write_b128', 'v7', V(T+4,4), mods=f'offset:{1024*i+3*ZST}')
    st_.stamp('Zdone')
    a.I('v_lshlrev_b32', 'v6', '2', 'v0')
    for i in range(4):
        a.I('s_waitcnt', f'vmcnt({2*(3-i)})')
        x, st = X0+4*i, ST0+4*i
        T = B0
        for h in range(2):
            for dwi in range(2):
                r = x + 2*h + dwi
                a.I('v_lshlrev_b32', V(T+4*h+2*dwi), '16', V(r)); a.I('v_and_b32', V(T+4*h+2*dwi+1), '0xffff0000', V(r))
            for c in range(4):
                a.I('v_sub_f32', V(T+4*h+c), V(T+4*h+c), V(st+2*h)); a.I('v_mul_f32', V(T+4*h+c), V(T+4*h+c), V(st+2*h+1))
        for c in range(4):
            a.I('v_cvt_pk_bf16_f32', V(UR0+4*i+c), V(T+c), V(T+4+c))
            a.I('ds_write_b32', 'v6', V(UR0+4*i+c), mods=f'offset:{UOFF(c)+512+1024*i}')
    a.I('v_and_b32', 'v7', '15', 'v1')
    a.I('v_lshrrev_b32', 'v8', '4', 'v1')
    a.I('v_lshrrev_b32', 'v9', '1', 'v8')
    a.I('v_and_b32', 'v8', '1', 'v8')
    a.I('v_sub_u32', 'v5', 'v7', 'v9'); a.I('v_lshlrev_b32', 'v5', '5', 'v5'); a.I('v_lshl_add_u32', 'v5', 'v8', '4', 'v5')
    a.I('v_mul_u32_u24', 'v58', '4608', 'v2'); a.I('v_add_u32', 'v5', 'v5', 'v58'); a.I('v_add_u32', 'v5', '512', 'v5')
    a.I('v_and_b32', 'v58', '3', 'v7'); a.I('v_sub_u32', 'v58', '3', 'v58'); a.I('v_mul_u32_u24', 'v58', str(ZST), 'v58')
    a.I('v_add_u32', 'v4', 'v58', 'v59')
    a.I('v_lshrrev_b32', 'v58', '2', 'v7'); a.I('v_lshlrev_b32', 'v58', '3', 'v58'); a.I('v_sub_u32', 'v4', 'v4', 'v58')
    a.I('v_lshlrev_b32', 'v58', '5', 'v9'); a.I('v_sub_u32', 'v4', 'v4', 'v58')
    a.I('v_lshl_add_u32', 'v4', 'v8', '4', 'v4'); a.I('v_add_u32', 'v4', str(ZB + 4088 - 3584), 'v4')
    for k in range(32): a.I('v_mov_b32', V(ACC+k), '0')
    st_.stamp('prologue')
    a.I('s_waitcnt', 'lgkmcnt(0)'); a.I('s_barrier')
    st_.stamp('bar1')
    for k in range(24): load_set(a, A0, B0, k)
    a.I('s_mov_b32', 's20', '0')
    a.L('K2_LOOP')
    conv_class(a, A0, B0, A1, B1, True)
    conv_class(a, A1, B1, A0, B0, True)
    a.I('s_add_u32', 's20', 's20', '1'); a.I('s_cmp_lt_u32', 's20', '3'); a.I('s_cbranch_scc1', 'K2_LOOP')
    conv_class(a, A0, B0, A1, B1, True)
    conv_class(a, A1, B1, A0, B0, False)
    st_.stamp('loopend')
    a.I('v_lshrrev_b32', 'v8', '4', 'v1'); a.I('v_lshlrev_b32', 'v8', '3', 'v8'); a.I('v_lshl_add_u32', 'v8', 'v7', '5', 'v8')
    a.I('v_add_u32', 'v8', 'v8', 'v59'); a.I('v_add_u32', 'v8', str(ZB), 'v8')
    for t in range(8):
        a.I('v_cvt_pk_bf16_f32', V(A0+2*t), V(ACC+4*t), V(ACC+4*t+1)); a.I('v_cvt_pk_bf16_f32', V(A0+2*t+1), V(ACC+4*t+2), V(ACC+4*t+3))
        a.I('ds_write_b64', 'v8', V(A0+2*t,2), mods=f'offset:{512*t}')
    st_.stamp('ywritten')
    a.I('s_lshl_b32', 's22', 's16', '16'); a.I('s_and_b32', 's23', 's16', '0xffff0000')
    a.I('s_lshl_b32', 's24', 's17', '16'); a.I('s_and_b32', 's25', 's17', '0xffff0000')
    a.I('s_waitcnt', 'lgkmcnt(0)'); a.I('s_barrier')
    a.I('v_add_u32', 'v6', str(ZB), 'v6')
    for i in range(4):
        for c in range(4):
            off = c*4*ZST + 1024*i
            if off < 65536: a.I('ds_read_b32', V(B0+4*i+c), 'v6', mods=f'offset:{off}')
            else: raise ValueError
    a.I('s_add_u32', 's14', 's31', hex(WS_HF))
    a.I('v_lshrrev_b32', 'v7', '3', 'v0'); a.I('v_mul_u32_u24', 'v7', '20480', 'v7')
    a.I('v_and_b32', 'v8', '7', 'v0'); a.I('v_lshl_add_u32', 'v7', 'v8', '5', 'v7')
    for i in range(4):
        a.I('s_waitcnt', f'lgkmcnt({4*(3-i)})')
        T = A1; H = A0 + 8*i
        x = X0+4*i
        for c in range(4):
            u, y = UR0+4*i+c, B0+4*i+c
            a.I('v_lshlrev_b32', V(T), '16', V(u)); a.I('v_and_b32', V(T+1), '0xffff0000', V(u))
            a.I('v_lshlrev_b32', V(T+2), '16', V(y)); a.I('v_and_b32', V(T+3), '0xffff0000', V(y))
            a.I('v_fmac_f32', V(T+2), S(22+c), V(T)); a.I('v_fmac_f32', V(T+3), S(22+c), V(T+1))
            xl, xh = x + c//2, x + 2 + c//2
            if c % 2 == 0:
                a.I('v_lshlrev_b32', V(T), '16', V(xl)); a.I('v_lshlrev_b32', V(T+1), '16', V(xh))
            else:
                a.I('v_and_b32', V(T), '0xffff0000', V(xl)); a.I('v_and_b32', V(T+1), '0xffff0000', V(xh))
            a.I('v_add_f32', V(H+c), V(T), V(T+2)); a.I('v_add_f32', V(H+4+c), V(T+1), V(T+3))
        O = B1 + 4*i
        a.I('v_cvt_pk_bf16_f32', V(O), V(H), V(H+1)); a.I('v_cvt_pk_bf16_f32', V(O+1), V(H+2), V(H+3))
        a.I('v_cvt_pk_bf16_f32', V(O+2), V(H+4), V(H+5)); a.I('v_cvt_pk_bf16_f32', V(O+3), V(H+6), V(H+7))
        a.I('s_add_u32', 's18', 's14', str(655360*i))
        a.I('buffer_store_dwordx2', V(O,2), 'v7', S(8,4), 's18', mods='offen')
        a.I('buffer_store_dwordx2', V(O+2,2), 'v7', S(8,4), 's18', mods='offen offset:16')
    st_.stamp('stored')
    if prof:
        a.I('s_waitcnt', 'vmcnt(0)'); st_.stamp('end'); st_.dump(4, 5, 2)
    a.I('s_endpgm')
    k2_tile(a)
    a.L('K2_END')
    a.I('s_endpgm')
    return a, dict(name='k2_kernel', grid=256, block=256, lds=K2_LDS, vgpr=256, sgpr=102 if prof else 48, stamps=st_.names)
```

```python
from asmlib import *
from gen1 import KA, WS_HF, WS_CS, WS_ACT, WS_W1F, WS_SIZE, srd, LOG2E, f2u
from gengemm import gemm_loop

K3_LDS = 143360
ACC = 8
WB = (64, 92)
SUM, GRAM, ONES = 120, 128, 136
VW = 140
BB = 144
TMP = 240
LN2 = 0x3f317218

def mish_epilogue(a, ACCf, NTILES, RS, MR, work, store, csb):
    L2P, LNP = work, work+2
    CS, B1 = work+4, work+8
    X = work+12
    a.I('s_mov_b32', 's38', hex(LOG2E)); a.I('s_mov_b32', 's39', hex(LOG2E))
    a.I('s_mov_b32', 's40', hex(f2u(-2.0))); a.I('s_mov_b32', 's41', hex(f2u(-2.0)))
    twoL = hex(f2u(2*1.4426950408889634))
    a.I('v_mov_b32', V(L2P), twoL); a.I('v_mov_b32', V(L2P+1), twoL)
    a.I('v_mov_b32', V(LNP), hex(LN2)); a.I('v_mov_b32', V(LNP+1), hex(LN2))
    for T in range(NTILES):
        pre = csb(T, CS, B1)
        xs = [X + 14*lt + 28*(T & 1) for lt in range(2)]
        for lt in range(2):
            x = xs[lt]; ac = ACCf(T, lt)
            for p in range(2): a.I('v_pk_fma_f32', V(x+2*p,2), V(CS+2*p,2), V(MR+2*lt,2), V(B1+2*p,2), mods='op_sel_hi:[1,0,1] neg_lo:[0,1,0] neg_hi:[0,1,0]')
            for p in range(2): a.I('v_pk_fma_f32', V(x+2*p,2), V(ac+2*p,2), V(RS+2*lt,2), V(x+2*p,2), mods='op_sel_hi:[1,0,1]')
        for lt in range(2):
            for r in range(4): a.I('v_exp_f32', V(xs[lt]+4+r), V(xs[lt]+r))
        for lt in range(2):
            x = xs[lt]
            for p in range(2): a.I('v_pk_fma_f32', V(x+8+2*p,2), V(x+4+2*p,2), S(38,2), V(L2P,2))
            for p in range(2): a.I('v_pk_fma_f32', V(x+8+2*p,2), V(x+4+2*p,2), V(x+8+2*p,2), V(L2P,2))
        for lt in range(2):
            for r in range(4): a.I('v_rcp_f32', V(xs[lt]+8+r), V(xs[lt]+8+r))
        for lt in range(2):
            x = xs[lt]
            for p in range(2): a.I('v_pk_fma_f32', V(x+8+2*p,2), V(x+8+2*p,2), S(40,2), V(LNP,2))
            for p in range(2): a.I('v_pk_mul_f32', V(x+2*p,2), V(x+2*p,2), V(x+8+2*p,2))
            a.I('v_cvt_pk_bf16_f32', V(x+12), V(x), V(x+1)); a.I('v_cvt_pk_bf16_f32', V(x+13), V(x+2), V(x+3))
            store(T, lt, x+12)

REGION=[3]
def kernel_k3(prof=False, D=5, SK=2, burst=False, dbg='', name='k3_kernel'):
    a = Asm()
    st_ = Stamps(a, enable=prof)
    a.I('s_cmp_ge_u32', 's2', '256'); a.I('s_cbranch_scc1', name+'_END')
    st_.stamp('start')
    a.I('s_load_dwordx2', S(4,2), S(0,2), str(KA['ws']))
    a.I('s_load_dwordx2', S(14,2), S(0,2), str(KA['b1']))
    a.I('s_and_b32', 's20', 's2', '7'); a.I('s_lshr_b32', 's21', 's2', '3')
    a.I('s_lshr_b32', 's22', 's20', '1'); a.I('s_lshl_b32', 's22', 's22', '2'); a.I('s_and_b32', 's23', 's21', '3'); a.I('s_add_u32', 's22', 's22', 's23')
    a.I('s_and_b32', 's23', 's20', '1'); a.I('s_lshl_b32', 's23', 's23', '3'); a.I('s_lshr_b32', 's24', 's21', '2'); a.I('s_add_u32', 's23', 's23', 's24')
    a.I('v_and_b32', 'v1', '63', 'v0'); a.I('v_lshrrev_b32', 'v2', '6', 'v0')
    a.I('v_readfirstlane_b32', 's24', 'v2')
    a.I('v_lshlrev_b32', 'v3', '4', 'v1')
    a.I('v_lshrrev_b32', 'v7', '4', 'v1')
    a.I('v_mov_b32', V(VW), 'v3'); a.I('v_add_u32', V(VW+1), '0x10000', 'v3'); a.I('v_add_u32', V(VW+2), '0x20000', 'v3')
    a.I('s_lshl_b32', 's27', 's24', '10')
    a.I('s_mul_i32', 's28', 's23', '143360'); a.I('s_add_u32', 's28', 's28', 's27'); a.I('s_add_u32', 's28', 's28', hex(WS_W1F))
    a.I('s_lshl_b32', 's30', 's22', '3'); a.I('s_lshl_b32', 's31', 's24', '1'); a.I('s_add_u32', 's30', 's30', 's31')
    a.I('s_mul_i32', 's26', 's30', '20480'); a.I('s_add_u32', 's26', 's26', hex(WS_HF))
    a.I('s_mul_i32', 's25', 's23', '224')
    a.I('s_waitcnt', 'lgkmcnt(0)')
    srd(a, 8, 4, 5, WS_SIZE)
    srd(a, 16, 14, 15, 3456)
    st_.stamp('pre-issue')
    def mid():
        for k in range(16): a.I('v_mov_b32', V(SUM+k), '0')
        for k in range(4): a.I('v_mov_b32', V(ONES+k), '0x3f803f80')
    def extra(ks, bregs):
        r = []
        for lt in range(2):
            r.append(('v_mfma_f32_16x16x32_bf16', V(SUM+4*lt,4), V(ONES,4), V(bregs[lt],4), V(SUM+4*lt,4)))
            r.append(('v_mfma_f32_16x16x32_bf16', V(GRAM+4*lt,4), V(bregs[lt],4), V(bregs[lt],4), V(GRAM+4*lt,4)))
        return r
    def late(ks):
        if ks != 14: return 0
        a.I('v_lshlrev_b32', V(TMP), '4', 'v7')
        a.I('s_mul_i32', 's34', 's23', '448'); a.I('s_add_u32', 's34', 's34', hex(WS_CS))
        a.I('v_lshlrev_b32', V(TMP+1), '3', 'v7'); a.I('v_add_u32', V(TMP+1), 's25', V(TMP+1))
        for T in range(7):
            a.I('buffer_load_dwordx4', A(4*T,4), V(TMP), S(8,4), 's34', mods=f'offen offset:{64*T}')
            a.I('buffer_load_dwordx2', A(28+2*T,2), V(TMP+1), S(16,4), '0', mods=f'offen offset:{32*T}')
        return 14
    gemm_loop(a, 7, 2, 20, 140, D, 8, 28, 8, 26, 20480, ACC, WB, BB, 3, VW, 27, 33, extra=extra, mid=mid, st_=st_, late=late, SK=SK, burst=burst, dbg=dbg)
    st_.stamp('loopend')
    a.I('v_and_b32', V(TMP), '15', 'v1'); a.I('v_and_b32', V(TMP+1), '3', V(TMP)); a.I('v_lshrrev_b32', V(TMP+2), '2', V(TMP))
    RS, MR = WB[0], WB[0]+4
    for lt in range(2):
        g = GRAM+4*lt; d = TMP+4+lt
        a.I('v_mov_b32', V(d), V(g))
        for r in (1, 2, 3):
            a.I('v_cmp_eq_u32', 'vcc', str(r), V(TMP+1)); a.I('v_cndmask_b32', V(d), V(d), V(g+r), 'vcc')
        a.I('v_cmp_eq_u32', 'vcc', V(TMP+2), 'v7'); a.I('v_cndmask_b32', V(d), '0', V(d), 'vcc')
    for sw in ('v_permlane16_swap_b32', 'v_permlane32_swap_b32'):
        for lt in range(2): a.I('v_mov_b32', V(TMP+6+lt), V(TMP+4+lt))
        for lt in range(2): a.I(sw, V(TMP+4+lt), V(TMP+6+lt))
        for lt in range(2): a.I('v_add_f32', V(TMP+4+lt), V(TMP+4+lt), V(TMP+6+lt))
    for lt in range(2):
        m, qv = SUM+4*lt, TMP+4+lt
        a.I('v_mul_f32', V(m), '0x3acccccd', V(m))
        a.I('v_mul_f32', V(qv), '0x3acccccd', V(qv))
        a.I('v_fma_f32', V(qv), '-'+V(m), V(m), V(qv))
        a.I('v_add_f32', V(qv), '0x3727c5ac', V(qv))
        a.I('v_rsq_f32', V(qv), V(qv))
        a.I('v_mul_f32', V(RS+2*lt), hex(LOG2E), V(qv))
        a.I('v_mul_f32', V(MR+2*lt), V(m), V(RS+2*lt))
    a.I('s_mul_i32', 's42', 's30', '55296'); a.I('s_add_u32', 's42', 's42', hex(WS_ACT))
    a.I('s_mul_i32', 's43', 's23', '7')
    a.I('s_waitcnt', 'vmcnt(0)')
    def csb(T, CS, B1):
        a.I('s_add_u32', 's44', 's43', str(T))
        a.I('s_cmp_ge_u32', 's44', '108'); a.I('s_cbranch_scc1', name+'_DONE')
        a.I('s_lshr_b32', 's45', 's44', '1'); a.I('s_lshl_b32', 's45', 's45', '10'); a.I('s_and_b32', 's46', 's44', '1'); a.I('s_lshl_b32', 's46', 's46', '3')
        a.I('s_add_u32', 's45', 's45', 's46'); a.I('s_add_u32', 's45', 's45', 's42'); a.I('s_add_u32', 's46', 's45', '55296')
        for r in range(4): a.I('v_accvgpr_read_b32', V(CS+r), A(4*T+r))
        a.I('v_accvgpr_read_b32', V(B1+1), A(28+2*T)); a.I('v_accvgpr_read_b32', V(B1+3), A(28+2*T+1))
        a.I('v_lshlrev_b32', V(B1), '16', V(B1+1)); a.I('v_and_b32', V(B1+1), '0xffff0000', V(B1+1))
        a.I('v_lshlrev_b32', V(B1+2), '16', V(B1+3)); a.I('v_and_b32', V(B1+3), '0xffff0000', V(B1+3))
        a.I('v_pk_mul_f32', V(B1,2), V(B1,2), S(38,2)); a.I('v_pk_mul_f32', V(B1+2,2), V(B1+2,2), S(38,2))
    def store(T, lt, r):
        a.I('buffer_store_dwordx2', V(r,2), 'v3', S(8,4), 's45' if lt == 0 else 's46', mods='offen')
    mish_epilogue(a, lambda T, lt: ACC+4*(2*T+lt), 7, RS, MR, BB, store, csb)
    a.L(name+'_DONE')
    if prof:
        a.I('s_waitcnt','vmcnt(0)'); st_.stamp('end'); st_.dump(4, 5, REGION[0])
    a.L(name+'_END')
    a.I('s_endpgm')
    return a, dict(name=name, grid=256, block=256, lds=K3_LDS, vgpr=256, accum=256, nfv=304, sgpr=102 if prof else 56, stamps=st_.names)
```

```python
from asmlib import *
from gen1 import KA, WS_HF, WS_ACT, WS_W2F, WS_SIZE, srd
from gengemm import gemm_loop

REGION=[4]
ACC = 8
WB = (28, 48)
RES = 68
VW = 78
TMP = 82
BB = 92

def kernel_k4(prof=False, D=8, SK=2, burst=False, RING=96, name='k4_kernel', dbg=''):
    a = Asm()
    st_ = Stamps(a, enable=prof)
    a.I('s_cmp_ge_u32', 's2', '256'); a.I('s_cbranch_scc1', name+'_END')
    st_.stamp('start')
    a.I('s_load_dwordx2', S(4,2), S(0,2), str(KA['ws']))
    a.I('s_load_dwordx2', S(14,2), S(0,2), str(KA['out']))
    a.I('s_and_b32', 's20', 's2', '7'); a.I('s_lshr_b32', 's21', 's2', '3')
    a.I('s_lshr_b32', 's22', 's20', '1'); a.I('s_lshl_b32', 's22', 's22', '3'); a.I('s_and_b32', 's23', 's21', '7'); a.I('s_add_u32', 's22', 's22', 's23')
    a.I('s_and_b32', 's23', 's20', '1'); a.I('s_lshl_b32', 's23', 's23', '2'); a.I('s_lshr_b32', 's24', 's21', '3'); a.I('s_add_u32', 's23', 's23', 's24')
    a.I('v_and_b32', 'v1', '63', 'v0'); a.I('v_lshrrev_b32', 'v2', '6', 'v0')
    a.I('v_readfirstlane_b32', 's24', 'v2')
    a.I('v_lshlrev_b32', 'v3', '4', 'v1')
    a.I('v_lshrrev_b32', 'v7', '4', 'v1'); a.I('v_and_b32', 'v6', '15', 'v1')
    a.I('v_mov_b32', V(VW), 'v3'); a.I('v_add_u32', V(VW+1), '0x10000', 'v3'); a.I('v_add_u32', V(VW+2), '0x20000', 'v3')
    a.I('s_lshl_b32', 's27', 's24', '10')
    a.I('s_mul_i32', 's28', 's23', str(270*1024)); a.I('s_add_u32', 's28', 's28', 's27'); a.I('s_add_u32', 's28', 's28', hex(WS_W2F))
    a.I('s_lshl_b32', 's30', 's22', '2'); a.I('s_add_u32', 's30', 's30', 's24')
    a.I('s_mul_i32', 's26', 's30', '55296'); a.I('s_add_u32', 's26', 's26', hex(WS_ACT))
    a.I('s_mul_i32', 's25', 's23', '160')
    a.I('s_waitcnt', 'lgkmcnt(0)')
    srd(a, 8, 4, 5, WS_SIZE)
    srd(a, 16, 14, 15, 2048*1280)
    st_.stamp('pre-issue')
    def late(ks):
        if ks != 44: return 0
        a.I('s_mul_i32', 's35', 's23', '20')
        a.I('s_mul_i32', 's36', 's30', '20480'); a.I('s_add_u32', 's36', 's36', hex(WS_HF))
        a.I('v_mul_u32_u24', V(TMP), '5', 'v7'); a.I('v_add_u32', V(TMP), 's35', V(TMP))
        for T in range(5):
            a.I('v_add_u32', V(TMP+1), str(T), V(TMP))
            a.I('v_lshrrev_b32', V(TMP+2), '3', V(TMP+1)); a.I('v_lshlrev_b32', V(TMP+2), '10', V(TMP+2))
            a.I('v_and_b32', V(TMP+3), '3', V(TMP+1)); a.I('v_lshl_add_u32', V(TMP+2), V(TMP+3), '8', V(TMP+2))
            a.I('v_bfe_u32', V(TMP+3), V(TMP+1), '2', '1'); a.I('v_lshl_add_u32', V(TMP+2), V(TMP+3), '3', V(TMP+2))
            a.I('v_lshl_add_u32', V(TMP+2), 'v6', '4', V(TMP+2))
            a.I('buffer_load_dwordx2', V(RES+2*T,2), V(TMP+2), S(8,4), 's36', mods='offen')
        return 5
    gemm_loop(a, 5, 1, 54, RING, D, 8, 28, 8, 26, 0, ACC, WB, BB, 3, VW, 27, 33, st_=st_, late=late, SK=SK, burst=burst, dbg=dbg)
    st_.stamp('loopend')
    a.I('s_waitcnt', 'vmcnt(0)')
    a.I('v_mul_u32_u24', V(TMP), '1280', 'v6'); a.I('v_mul_u32_u24', V(TMP+1), '40', 'v7'); a.I('v_add_u32', V(TMP), V(TMP), V(TMP+1))
    a.I('s_mul_i32', 's35', 's30', '20480'); a.I('s_add_u32', 's35', 's35', 's25')
    X = WB[0]
    for T in range(5):
        r0, r1 = RES+2*T, RES+2*T+1
        a.I('v_lshlrev_b32', V(X+4*T), '16', V(r0)); a.I('v_and_b32', V(X+4*T+1), '0xffff0000', V(r0))
        a.I('v_lshlrev_b32', V(X+4*T+2), '16', V(r1)); a.I('v_and_b32', V(X+4*T+3), '0xffff0000', V(r1))
        for r in range(4): a.I('v_add_f32', V(X+4*T+r), V(X+4*T+r), V(ACC+4*T+r))
        a.I('v_cvt_pk_bf16_f32', V(r0), V(X+4*T), V(X+4*T+1)); a.I('v_cvt_pk_bf16_f32', V(r1), V(X+4*T+2), V(X+4*T+3))
        a.I('buffer_store_dwordx2', V(r0,2), V(TMP), S(16,4), 's35', mods=f'offen offset:{8*T}')
    if prof:
        a.I('s_waitcnt','vmcnt(0)'); st_.stamp('end'); st_.dump(4, 5, REGION[0])
    a.L(name+'_END')
    a.I('s_endpgm')
    return a, dict(name=name, grid=256, block=256, lds=RING*1024, vgpr=256, sgpr=102 if prof else 56, stamps=st_.names)
```

```python
from asmlib import *

def gemm_loop(a, NT, NL, KS, RING, D, wsrd, wsoff, bsrd, bsoff, bstride_lt, ACC, WB, BB, vlane16, vW, s_w, s_tmp, extra=None, mid=None, SK=2, st_=None, late=None, burst=False, dbg=''):
    NS = (KS + SK - 1)//SK
    nchunks = NT*KS
    def wneed(s):
        last = min(NT*SK*(s+1), nchunks) - 1
        return last//4 + 1
    maxi = (nchunks + 3)//4
    seq = []
    need = []
    wi = 0
    for s in range(NS):
        while wi < min(wneed(s), maxi):
            seq.append(('W', wi)); wi += 1
        for ks in range(s*SK, min((s+1)*SK, KS)):
            for lt in range(NL): seq.append(('B', ks, lt))
        need.append(len(seq))
    def breg(ks, lt):
        s = ks//SK
        return BB + ((s % (D+1))*SK*NL + (ks % SK)*NL + lt)*4
    issued = [0]
    extra_cnt = [0]
    log = []
    def issue(n_upto):
        while issued[0] < n_upto:
            ld = seq[issued[0]]
            if (ld[0] == 'W' and 'noW' in dbg) or (ld[0] == 'B' and 'noB' in dbg):
                a.I('s_nop', '0')
                a.I('buffer_load_dword', 'v249', V(vlane16), S(wsrd,4), S(wsoff), mods='offen')
            elif ld[0] == 'W':
                i = ld[1]
                slot = (4*i) % RING
                a.I('s_add_u32', 'm0', S(s_w), str(slot*1024))
                a.I('s_add_u32', S(s_tmp), S(wsoff), str(4*i*1024))
                a.I('buffer_load_dwordx4', V(vlane16), S(wsrd,4), S(s_tmp), mods='offen lds')
            else:
                _, ks, lt = ld
                a.I('s_add_u32', S(s_tmp), S(bsoff), str(ks*1024 + lt*bstride_lt))
                a.I('buffer_load_dwordx4', V(breg(ks, lt),4), V(vlane16), S(bsrd,4), S(s_tmp), mods='offen')
            log.append(issued[0]); issued[0] += 1
    def waitfor(n_needed):
        pos = max(i for i, x in enumerate(log) if x is not None and x == n_needed-1)
        n = len(log) - 1 - pos
        a.I('s_waitcnt', f'vmcnt({min(n, 63)})')
    def wread(Wn, ks, T):
        chunk = (NT*ks + T) % RING
        off = chunk*1024
        if off < 65536: a.I('ds_read_b128', V(Wn+4*T,4), V(vW), mods=f'offset:{off}')
        elif off < 131072: a.I('ds_read_b128', V(Wn+4*T,4), V(vW+1), mods=f'offset:{off-65536}')
        else: a.I('ds_read_b128', V(Wn+4*T,4), V(vW+2), mods=f'offset:{off-131072}')
    issue(need[min(D-1, NS-1)])
    if st_: st_.stamp('issued')
    for k in range(NT*NL*4): a.I('v_mov_b32', V(ACC+k), '0')
    if mid: mid()
    waitfor(need[0]); a.I('s_barrier')
    if st_: st_.stamp('G0')
    for T in range(NT): wread(WB[0], 0, T)
    cur = 0
    for ks in range(KS):
        s, kk = divmod(ks, SK)
        last = ks == KS-1
        stage_last = (kk == SK-1) or last
        a.I('s_waitcnt', 'lgkmcnt(0)')
        if stage_last and not last:
            waitfor(need[s+1])
            if 'nobar' not in dbg: a.I('s_barrier')
        if late:
            for _ in range(late(ks)): log.append(None)
        tgt_stage = s + D
        todo = []
        if tgt_stage < NS:
            lo = need[tgt_stage-1]; hi = need[tgt_stage]
            part = (hi - lo + SK - 1)//SK
            upto = min(lo + part*(kk+1), hi)
        else: upto = issued[0]
        ins = []
        for T in range(NT):
            for lt in range(NL):
                ins.append(('v_mfma_f32_16x16x32_bf16', V(ACC+4*(T*NL+lt),4), V(WB[cur]+4*T,4), V(breg(ks, lt),4), V(ACC+4*(T*NL+lt),4)))
        if extra: ins += extra(ks, [breg(ks, lt) for lt in range(NL)])
        nld = upto - issued[0]
        rd = 0
        every = max(1, len(ins)//max(nld, 1))
        if burst: issue(upto)
        for idx, m in enumerate(ins):
            if 'nomfma' not in dbg: a.I(*m)
            if 'nods' in dbg: rd = NT
            if not last and rd < NT:
                wread(WB[cur ^ 1], ks+1, rd); rd += 1
            if issued[0] < upto and (idx % every == every-1):
                issue(issued[0]+1)
        while not last and rd < NT and 'nods' not in dbg:
            wread(WB[cur ^ 1], ks+1, rd); rd += 1
        issue(upto)
        if st_ and ks in (KS//4, KS//2, 3*KS//4): st_.stamp(f'ks{ks}')
        cur ^= 1
    return log
```

```python
import sys; sys.path.insert(0,'dev')
from build import build
import gen1, gen2, gen3, gen4, json
prof = len(sys.argv) > 2 and sys.argv[2] == 'p'
ks=[gen1.kernel_k1(), gen2.kernel_k2(prof), gen3.kernel_k3(prof), gen4.kernel_k4(prof)]
build(ks, sys.argv[1])
json.dump({m['name']: m.get('stamps', []) for a,m in ks}, open(sys.argv[1].replace('.s','.json'),'w'))
```

```python
import sys; sys.path.insert(0, 'dev')
from asmlib import *
import struct
def f2u(f): return struct.unpack('<I', struct.pack('<f', f))[0]
LOG2E = 0x3fb8aa3b; INV2PI = 0x3e22f983; LN2 = 0x3f317218
WS_STAT = 0x000000
WS_NONCE = 0x008000
WS_FS = 0x010000; WS_FR = 0x014000; WS_FA = 0x018000; WS_FT = 0x01C000
WS_RC = 0x00C000
WS_CS = 0x020000
WS_HT4 = 0x040000
WS_W1F = 0x2C0000
WS_W2F = 0x4F0000
WS_ACT = 0x710000
WS_SIZE = 0xDD0000
GS = 16384
P = dict(x=64, Are=66, Aim=68, Bre=70, Bim=72, Cre=74, Cim=76, logdt=78, D=80, bx=82, w1=84, b1=86, w2=88, out=90, dbg=92, ws=94)
ROW = 544
EREG = 53*ROW
E1O = 21*ROW
KDO = 16640
ZST = 4160
UB = 143360
UOFF = lambda c: UB + c*4608
LSYNC = UB + 4*4608
LDS_TOTAL = 163840
S_NONCE = 49
SPIN_MAX = 200000
RC_SLEEP = [0]
NONCE_LDS = LSYNC + 192

def srd(a, sb, p, size, off=0):
    if off:
        a.I('s_add_u32', S(sb), S(p), hex(off)); a.I('s_addc_u32', S(sb+1), S(p+1), '0')
    else:
        a.I('s_mov_b32', S(sb), S(p)); a.I('s_mov_b32', S(sb+1), S(p+1))
    a.I('s_mov_b32', S(sb+2), hex(size)); a.I('s_mov_b32', S(sb+3), '0x20000')

def cmul(a, d, x, y, t):
    a.I('v_pk_mul_f32', V(t,2), V(x,2), V(y,2), mods='op_sel:[1,1] op_sel_hi:[1,0] neg_lo:[1,0]')
    a.I('v_pk_fma_f32', V(d,2), V(x,2), V(y,2), V(t,2), mods='op_sel:[0,0,0] op_sel_hi:[0,1,1]')

class VmLog:
    def __init__(self, a): self.a = a; self.log = []
    def op(self, tag=None): self.log.append(tag)
    def wait(self, tags):
        tags = set(tags); pos = -1
        for i, t in enumerate(self.log):
            if t in tags: pos = i
        if pos < 0: return
        n = len(self.log) - 1 - pos
        self.a.I('s_waitcnt', f'vmcnt({min(n, 63)})')
    def wait_all(self):
        self.a.I('s_waitcnt', 'vmcnt(0)'); self.log = []

_uid = [0]
def uid(p):
    _uid[0] += 1; return f'{p}_{_uid[0]}'

def get_nonce(a, vt):
    L = uid('NONCE'); E = uid('NONCEX')
    a.I('v_mov_b32', V(vt), '0'); a.I('s_mov_b32', 's101', '0')
    a.L(L)
    a.I('s_add_u32', 's101', 's101', '1'); a.I('s_cmp_gt_u32', 's101', str(SPIN_MAX)); a.I('s_cbranch_scc1', E)
    a.I('buffer_load_dword', V(vt+1), V(vt), S(60,4), '0', mods='offen sc1'); a.I('s_waitcnt', 'vmcnt(0)')
    a.I('v_readfirstlane_b32', S(S_NONCE), V(vt+1)); a.I('s_cmp_eq_u32', S(S_NONCE), '0'); a.I('s_cbranch_scc1', L)
    a.L(E)

def poll_flags(a, voffs, soff, vt):
    L = uid('POLL'); E = uid('POLLX')
    a.I('s_mov_b32', 's101', '0')
    a.L(L)
    a.I('s_add_u32', 's101', 's101', '1'); a.I('s_cmp_gt_u32', 's101', str(SPIN_MAX)); a.I('s_cbranch_scc1', E)
    for k, vo in enumerate(voffs): a.I('buffer_load_dword', V(vt+k), V(vo), S(8,4), soff, mods='offen sc1')
    a.I('s_waitcnt', 'vmcnt(0)')
    a.I('v_cmp_ne_u32', 'vcc', S(S_NONCE), V(vt))
    for k in range(1, len(voffs)):
        a.I('v_cmp_ne_u32', S(34,2), S(S_NONCE), V(vt+k)); a.I('s_or_b64', 'vcc', 'vcc', S(34,2))
    a.I('s_cbranch_vccnz', L)
    a.L(E)

def publish_last(a, slot_base, myslot_sgpr, nslots, flag_soff, vt):
    skip = uid('PUB')
    a.I('s_lshl_b32', 's34', S(myslot_sgpr), '2'); a.I('s_add_u32', 's34', 's34', str(slot_base))
    a.I('v_mov_b32', V(vt), 's34'); a.I('v_mov_b32', V(vt+1), '1')
    a.I('ds_write_b32', V(vt), V(vt+1))
    a.I('v_mov_b32', V(vt), str(slot_base))
    a.I('s_waitcnt', 'lgkmcnt(0)')
    for k in range(nslots//4): a.I('ds_read_b128', V(vt+2+4*k,4), V(vt), mods=f'offset:{16*k}')
    a.I('s_waitcnt', 'lgkmcnt(0)')
    a.I('v_cmp_ne_u32', 'vcc', '1', V(vt+2))
    for k in range(1, nslots):
        a.I('v_cmp_ne_u32', S(34,2), '1', V(vt+2+k)); a.I('s_or_b64', 'vcc', 'vcc', S(34,2))
    a.I('s_cbranch_vccnz', skip)
    a.I('v_mov_b32', V(vt), '0'); a.I('v_mov_b32', V(vt+1), S(S_NONCE))
    a.I('s_mov_b64', 'exec', '1')
    a.I('buffer_store_dword', V(vt+1), V(vt), S(8,4), flag_soff, mods='offen sc1')
    a.I('s_mov_b64', 'exec', '-1')
    a.L(skip)

def lane(a, d):
    a.I('v_mbcnt_lo_u32_b32', V(d), '-1', '0'); a.I('v_mbcnt_hi_u32_b32', V(d), '-1', V(d))

class St:
    def __init__(self, a, enable): self.a = a; self.enable = enable; self.names = []
    def stamp(self, name):
        if not self.enable: return
        if name in self.names: i = self.names.index(name)
        else: self.names.append(name); i = len(self.names)-1
        a = self.a
        a.I('s_memtime', S(96,2))
        if name == 'start': a.I('s_memrealtime', S(98,2))
        a.I('s_waitcnt', 'lgkmcnt(0)'); a.I('v_writelane_b32', 'v0', 's96', str(i))
        if name == 'start': a.I('v_writelane_b32', 'v0', 's98', '63')
    def dump(self):
        if not self.enable: return
        a = self.a
        a.I('s_add_u32', 's96', S(P['ws']), hex(WS_DBG)); a.I('s_addc_u32', 's97', S(P['ws']+1), '0'); a.I('s_mov_b32', 's98', '0x100000'); a.I('s_mov_b32', 's99', '0x20000')
        lane(a, 254); a.I('v_lshlrev_b32', 'v254', '2', 'v254')
        a.I('s_lshl_b32', 's100', 's2', '3'); a.I('s_add_u32', 's100', 's100', 's3'); a.I('s_lshl_b32', 's100', 's100', '8')
        a.I('buffer_store_dword', 'v0', 'v254', S(96,4), 's100', mods='offen')

def arrive_last(a, slot_base, myslot_sgpr, nslots, ctr_soff, vt):
    skip = uid('ARR')
    a.I('v_mov_b32', V(vt), str(slot_base)); a.I('v_mov_b32', V(vt+1), '1')
    a.I('s_mov_b64', 'exec', '1')
    a.I('ds_add_rtn_u32', V(vt+2), V(vt), V(vt+1))
    a.I('s_waitcnt', 'lgkmcnt(0)')
    a.I('v_readfirstlane_b32', 's34', V(vt+2))
    a.I('s_cmp_lg_u32', 's34', str(nslots-1)); a.I('s_cbranch_scc1', skip)
    a.I('v_mov_b32', V(vt), '0')
    a.I('buffer_atomic_add', V(vt+1), V(vt), S(8,4), ctr_soff, mods='offen sc1')
    a.L(skip)
    a.I('s_mov_b64', 'exec', '-1')

def poll_count(a, voff, soff, target, vt):
    L = uid('PC'); E = uid('PCX')
    a.I('s_mov_b32', 's101', '0')
    a.L(L)
    a.I('s_add_u32', 's101', 's101', '1'); a.I('s_cmp_gt_u32', 's101', str(SPIN_MAX)); a.I('s_cbranch_scc1', E)
    if RC_SLEEP[0]: a.I('s_sleep', str(RC_SLEEP[0]))
    a.I('buffer_load_dword', V(vt), V(voff), S(8,4), soff, mods='offen sc1'); a.I('s_waitcnt', 'vmcnt(0)')
    a.I('v_cmp_ne_u32', 'vcc', str(target), V(vt)); a.I('s_cbranch_vccnz', L)
    a.L(E)

HS_W1W, HS_RDY, HS_G1D, HS_ARDY, HS_W2W, HS_B1I, HS_GO = [LSYNC+128+4*i for i in range(7)]
def lds_signal(a, slot, vt):
    a.I('v_mov_b32', V(vt), str(slot)); a.I('v_mov_b32', V(vt+1), '1')
    a.I('s_mov_b64', 'exec', '1'); a.I('ds_add_u32', V(vt), V(vt+1)); a.I('s_mov_b64', 'exec', '-1')
def lds_wait(a, slot, target, vt):
    L = uid('LW'); E = uid('LWX')
    a.I('v_mov_b32', V(vt), str(slot)); a.I('s_mov_b32', 's101', '0')
    a.L(L)
    a.I('s_add_u32', 's101', 's101', '1'); a.I('s_cmp_gt_u32', 's101', str(SPIN_MAX*20)); a.I('s_cbranch_scc1', E)
    a.I('ds_read_b32', V(vt+1), V(vt)); a.I('s_waitcnt', 'lgkmcnt(0)')
    a.I('v_readfirstlane_b32', 's34', V(vt+1)); a.I('s_cmp_lt_u32', 's34', str(target)); a.I('s_cbranch_scc1', L)
    a.L(E)
def poll_dbg_count(a, soff_imm_sgpr, target, vt):
    L = uid('PD'); E = uid('PDX')
    a.I('v_mov_b32', V(vt), '0'); a.I('s_mov_b32', 's101', '0')
    a.L(L)
    a.I('s_add_u32', 's101', 's101', '1'); a.I('s_cmp_gt_u32', 's101', str(SPIN_MAX)); a.I('s_cbranch_scc1', E)
    a.I('buffer_load_dword', V(vt+1), V(vt), S(60,4), soff_imm_sgpr, mods='offen sc1'); a.I('s_waitcnt', 'vmcnt(0)')
    a.I('v_readfirstlane_b32', 's34', V(vt+1)); a.I('s_cmp_lt_u32', 's34', str(target)); a.I('s_cbranch_scc1', L)
    a.L(E)
def arrive_last_dbg(a, slot_base, nslots, soff_sgpr, vt):
    skip = uid('ARD')
    a.I('v_mov_b32', V(vt), str(slot_base)); a.I('v_mov_b32', V(vt+1), '1')
    a.I('s_mov_b64', 'exec', '1')
    a.I('ds_add_rtn_u32', V(vt+2), V(vt), V(vt+1))
    a.I('s_waitcnt', 'lgkmcnt(0)')
    a.I('v_readfirstlane_b32', 's34', V(vt+2))
    a.I('s_cmp_lg_u32', 's34', str(nslots-1)); a.I('s_cbranch_scc1', skip)
    a.I('v_mov_b32', V(vt), '0')
    a.I('buffer_atomic_add', V(vt+1), V(vt), S(60,4), soff_sgpr, mods='offen sc1')
    a.L(skip)
    a.I('s_mov_b64', 'exec', '-1')
```

```python
from common import *

ROT=[True]
class GemmC:
    def __init__(self, a, vm, NT, own, KSPLIT, RK, KSB, HS, TS, DB, s_boff, ACC, WB, BB, VWL, s_tmp, bmods, SKo=None, rot=None):
        self.__dict__.update(locals()); self.bi = 0; self.NB = DB+1
    def breg(self, i): return self.BB + 8*(i % self.NB)
    def issue_b(self, upto):
        a = self.a
        while self.bi < min(upto, self.own):
            i = self.bi; r = self.breg(i)
            if self.rot is None:
                a.I('s_add_u32', S(self.s_tmp), S(self.s_boff), str(i*self.KSPLIT*8*GS))
            else:
                a.I('s_add_u32', S(self.s_tmp), S(self.rot), str(i)); a.I('s_sub_u32', 's35', S(self.s_tmp), str(self.own))
                a.I('s_cmp_ge_u32', S(self.s_tmp), str(self.own)); a.I('s_cselect_b32', S(self.s_tmp), 's35', S(self.s_tmp))
                a.I('s_mul_i32', S(self.s_tmp), S(self.s_tmp), str(self.KSPLIT*8*GS)); a.I('s_add_u32', S(self.s_tmp), S(self.s_tmp), S(self.s_boff))
            a.I('buffer_load_dwordx4', V(r,4), 'v4', S(8,4), S(self.s_tmp), mods=self.bmods); self.vm.op(('B', id(self), i))
            a.I('buffer_load_dwordx4', V(r+4,4), 'v5', S(8,4), S(self.s_tmp), mods=self.bmods); self.vm.op(('B', id(self), i))
            self.bi += 1
    def wread(self, Wn, i, T2):
        if self.HS is None:
            off = ((self.KSPLIT*i) % self.RK)*self.KSB + T2*1024
            k, o = divmod(off, 65536)
            self.a.I('ds_read_b128', V(Wn+4*T2,4), V(self.VWL[k]), mods=f'offset:{o}')
            return
        T, h = divmod(T2, 2)
        off = ((self.KSPLIT*i) % self.RK)*self.KSB + h*self.HS + T*self.TS
        k, o = divmod(off, 65536)
        self.a.I('ds_read_b64_tr_b16', V(Wn+4*T+2*h,2), V(self.VWL[k]), mods=f'offset:{o}')
    def run(self, extra=None, late=None, st=None, tag=''):
        a, vm, NT = self.a, self.vm, self.NT
        nwb = len(self.WB); pre = nwb-1
        NR = NT if self.HS is None else 2*NT
        nbar = 0
        visible = 0
        def ensure(i):
            nonlocal visible, nbar
            if self.SKo is None: return
            s = i//self.SKo
            while visible < s:
                visible += 1
                a.I('s_waitcnt', 'lgkmcnt(0)'); a.I('s_barrier'); nbar += 1
        for p in range(pre):
            ensure(p)
            for T in range(NR): self.wread(self.WB[p % nwb], p, T)
        for i in range(self.own):
            nxt = i + pre; vn = nxt < self.own
            if vn: ensure(nxt)
            a.I('s_waitcnt', f'lgkmcnt({min(15, NR*(pre-1))})' if (pre > 1 and i+pre-1 < self.own and not (vn and self.SKo and nxt % self.SKo == 0)) else 'lgkmcnt(0)')
            vm.wait([('B', id(self), i)])
            r = self.breg(i)
            a.I('v_swap_b32', V(r+2), V(r+4)); a.I('v_swap_b32', V(r+3), V(r+5))
            if late: late(i)
            Wc = self.WB[i % nwb]; Wn = self.WB[nxt % nwb]
            ins = []
            for T in range(NT):
                for lt in range(2):
                    ins.append(('v_mfma_f32_16x16x32_bf16', V(self.ACC+4*(2*T+lt),4), V(Wc+4*T,4), V(r+4*lt,4), V(self.ACC+4*(2*T+lt),4)))
            if extra: ins += extra(i, [r, r+4])
            rd = 0
            for idx, m in enumerate(ins):
                a.I(*m)
                if vn and rd < NR and (self.HS is not None or idx % 2 == 0): self.wread(Wn, nxt, rd); rd += 1
                if idx == 1: self.issue_b(i+1+self.DB)
            while vn and rd < NR: self.wread(Wn, nxt, rd); rd += 1
            if st and i == self.own//2: st.stamp(tag+'mid')
        return nbar

def c_common_regs(a):
    lane(a, 1)
    a.I('v_lshlrev_b32', 'v3', '4', 'v1'); a.I('v_lshrrev_b32', 'v7', '4', 'v1'); a.I('v_and_b32', 'v6', '15', 'v1')
    a.I('v_lshlrev_b32', 'v4', '14', 'v7'); a.I('v_lshl_add_u32', 'v4', 'v6', '4', 'v4'); a.I('v_add_u32', 'v5', '0x10000', 'v4')

def w_addr(a, rowb, colb, extra_sgpr=None):
    a.I('v_lshrrev_b32', 'v3', '2', 'v6'); a.I('v_lshl_add_u32', 'v3', 'v7', '2', 'v3'); a.I('v_mul_u32_u24', 'v3', str(rowb), 'v3')
    a.I('v_and_b32', 'v2', '3', 'v6'); a.I('v_mul_u32_u24', 'v2', str(colb), 'v2'); a.I('v_add_u32', 'v3', 'v3', 'v2')
    if extra_sgpr is not None: a.I('v_add_u32', 'v3', S(extra_sgpr), 'v3')
    a.I('v_add_u32', 'v2', '0x10000', 'v3'); a.I('v_add_u32', 'v1', '0x20000', 'v3')

def c_gemm1(a, vm, st, done_label, DB=8):
    ACC, WB, SUM, GRAM, ONES, BB, CSR, B1R = 8, (64, 92), 120, 128, 136, 140, 212, 240
    c_common_regs(a)
    w_addr(a, 224, 8)
    a.I('s_lshl_b32', 's30', 's22', '10'); a.I('s_lshl_b32', 's31', 's24', '8'); a.I('s_add_u32', 's30', 's30', 's31')
    a.I('s_add_u32', 's26', 's30', hex(WS_HT4))
    a.I('s_mul_i32', 's25', 's23', '224')
    for k in range(56): a.I('v_mov_b32', V(ACC+k), '0')
    for k in range(16): a.I('v_mov_b32', V(SUM+k), '0')
    for k in range(4): a.I('v_mov_b32', V(ONES+k), '0x3f803f80')
    srd(a, 12, P['b1'], 3456)
    lds_wait(a, HS_RDY, 1, B1R); lds_wait(a, HS_W1W, 4, B1R)
    st.stamp('C:bar3')
    g = GemmC(a, vm, 7, 20, 1, 20, 7168, 3584, 32, DB, 26, ACC, WB, BB, [3, 2, 1], 33, 'offen sc1')
    g.issue_b(DB)
    def extra(i, b):
        r = []
        for lt in range(2):
            r.append(('v_mfma_f32_16x16x32_bf16', V(SUM+4*lt,4), V(ONES,4), V(b[lt],4), V(SUM+4*lt,4)))
            r.append(('v_mfma_f32_16x16x32_bf16', V(GRAM+4*lt,4), V(b[lt],4), V(b[lt],4), V(GRAM+4*lt,4)))
        return r
    def late(i):
        if i == 1: lds_signal(a, HS_GO, B1R)
        if i == 13:
            T0 = CSR
            a.I('v_lshlrev_b32', V(B1R+12), '4', 'v7'); a.I('v_lshlrev_b32', V(B1R+13), '3', 'v7'); a.I('v_add_u32', V(B1R+13), 's25', V(B1R+13))
            a.I('s_mul_i32', 's34', 's23', '448'); a.I('s_add_u32', 's34', 's34', hex(WS_CS))
            for T in range(7):
                a.I('buffer_load_dwordx4', V(CSR+4*T,4), V(B1R+12), S(8,4), 's34', mods=f'offen offset:{64*T} sc1'); vm.op('cs')
            for T in range(6):
                a.I('buffer_load_dwordx2', V(B1R+2*T,2), V(B1R+13), S(12,4), '0', mods=f'offen offset:{32*T}'); vm.op('cs')
            a.I('buffer_load_dwordx2', V(B1R+12,2), V(B1R+13), S(12,4), '0', mods=f'offen offset:{32*6}'); vm.op('cs')
    g.run(extra=extra, late=late, st=st, tag='C:g1')
    a.I('s_waitcnt', 'lgkmcnt(0)')
    lds_signal(a, HS_G1D, WB[0])
    st.stamp('C:loop1end')
    TMP = BB+64+12
    a.I('v_and_b32', V(WB[1]+1), '3', 'v6'); a.I('v_lshrrev_b32', V(WB[1]+2), '2', 'v6')
    RS, MR = WB[0], WB[0]+4
    Tm = WB[1]
    for lt in range(2):
        gg = GRAM+4*lt; d = Tm+4+lt
        a.I('v_mov_b32', V(d), V(gg))
        for r in (1, 2, 3):
            a.I('v_cmp_eq_u32', 'vcc', str(r), V(Tm+1)); a.I('v_cndmask_b32', V(d), V(d), V(gg+r), 'vcc')
        a.I('v_cmp_eq_u32', 'vcc', V(Tm+2), 'v7'); a.I('v_cndmask_b32', V(d), '0', V(d), 'vcc')
    for sw in ('v_permlane16_swap_b32', 'v_permlane32_swap_b32'):
        for lt in range(2): a.I('v_mov_b32', V(Tm+6+lt), V(Tm+4+lt))
        for lt in range(2): a.I(sw, V(Tm+4+lt), V(Tm+6+lt))
        for lt in range(2): a.I('v_add_f32', V(Tm+4+lt), V(Tm+4+lt), V(Tm+6+lt))
    for lt in range(2):
        m, qv = SUM+4*lt, Tm+4+lt
        a.I('v_mul_f32', V(m), '0x3acccccd', V(m)); a.I('v_mul_f32', V(qv), '0x3acccccd', V(qv))
        a.I('v_fma_f32', V(qv), '-'+V(m), V(m), V(qv)); a.I('v_add_f32', V(qv), '0x3727c5ac', V(qv)); a.I('v_rsq_f32', V(qv), V(qv))
        a.I('v_mul_f32', V(RS+2*lt), hex(LOG2E), V(qv)); a.I('v_mul_f32', V(MR+2*lt), V(m), V(RS+2*lt))
    a.I('s_add_u32', 's42', 's30', hex(WS_ACT)); a.I('s_mul_i32', 's43', 's23', '7')
    vm.wait(['cs'])
    work = BB
    L2P, LNP, B1, X = work, work+2, work+4, work+8
    a.I('s_mov_b32', 's38', hex(LOG2E)); a.I('s_mov_b32', 's39', hex(LOG2E))
    a.I('s_mov_b32', 's40', hex(f2u(-2.0))); a.I('s_mov_b32', 's41', hex(f2u(-2.0)))
    twoL = hex(f2u(2*1.4426950408889634))
    a.I('v_mov_b32', V(L2P), twoL); a.I('v_mov_b32', V(L2P+1), twoL); a.I('v_mov_b32', V(LNP), hex(LN2)); a.I('v_mov_b32', V(LNP+1), hex(LN2))
    for T in range(7):
        a.I('s_add_u32', 's36', 's43', str(T))
        a.I('s_cmp_ge_u32', 's36', '108'); a.I('s_cbranch_scc1', done_label)
        a.I('s_lshl_b32', 's36', 's36', '16'); a.I('s_add_u32', 's36', 's36', 's42')
        CS = CSR+4*T; b = B1R+2*T
        a.I('v_lshlrev_b32', V(B1), '16', V(b)); a.I('v_and_b32', V(B1+1), '0xffff0000', V(b))
        a.I('v_lshlrev_b32', V(B1+2), '16', V(b+1)); a.I('v_and_b32', V(B1+3), '0xffff0000', V(b+1))
        a.I('v_pk_mul_f32', V(B1,2), V(B1,2), S(38,2)); a.I('v_pk_mul_f32', V(B1+2,2), V(B1+2,2), S(38,2))
        base = X + 32*(T & 1)
        xs = [base, base+12]; O = base+24
        for lt in range(2):
            x = xs[lt]; ac = ACC+4*(2*T+lt)
            for p in range(2): a.I('v_pk_fma_f32', V(x+2*p,2), V(CS+2*p,2), V(MR+2*lt,2), V(B1+2*p,2), mods='op_sel_hi:[1,0,1] neg_lo:[0,1,0] neg_hi:[0,1,0]')
            for p in range(2): a.I('v_pk_fma_f32', V(x+2*p,2), V(ac+2*p,2), V(RS+2*lt,2), V(x+2*p,2), mods='op_sel_hi:[1,0,1]')
        for lt in range(2):
            for r in range(4): a.I('v_exp_f32', V(xs[lt]+4+r), V(xs[lt]+r))
        for lt in range(2):
            x = xs[lt]
            for p in range(2): a.I('v_pk_fma_f32', V(x+8+2*p,2), V(x+4+2*p,2), S(38,2), V(L2P,2))
            for p in range(2): a.I('v_pk_fma_f32', V(x+8+2*p,2), V(x+4+2*p,2), V(x+8+2*p,2), V(L2P,2))
        for lt in range(2):
            for r in range(4): a.I('v_rcp_f32', V(xs[lt]+8+r), V(xs[lt]+8+r))
        for lt in range(2):
            x = xs[lt]
            for p in range(2): a.I('v_pk_fma_f32', V(x+8+2*p,2), V(x+8+2*p,2), S(40,2), V(LNP,2))
            for p in range(2): a.I('v_pk_mul_f32', V(x+2*p,2), V(x+2*p,2), V(x+8+2*p,2))
            a.I('v_cvt_pk_bf16_f32', V(O+2*lt), V(x), V(x+1)); a.I('v_cvt_pk_bf16_f32', V(O+2*lt+1), V(x+2), V(x+3))
        a.I('buffer_store_dwordx4', V(O,4), 'v4', S(8,4), 's36', mods='offen sc1'); vm.op('st')

def g2_params(a):
    a.I('s_lshr_b32', 's50', 's23', '3'); a.I('s_lshl_b32', 's51', 's22', '1'); a.I('s_add_u32', 's50', 's50', 's51')
    a.I('s_and_b32', 's51', 's23', '7')
    a.I('s_mul_i32', 's45', 's51', '27'); a.I('s_lshr_b32', 's45', 's45', '3')
    if not ROT[0]: a.I('s_mov_b32', 's45', '0')
    a.I('s_and_b32', 's52', 's24', '1'); a.I('s_lshr_b32', 's53', 's24', '1')

def c_gemm2(a, vm, st, DB=13):
    ACC, WB, BB, RES, TMP = 8, (48, 68, 88), 108, 228, 240
    g2_params(a)
    a.I('s_lshl_b32', 's55', 's50', '6'); a.I('s_lshl_b32', 's56', 's52', '5'); a.I('s_add_u32', 's55', 's55', 's56')
    a.I('s_lshl_b32', 's56', 's55', '3'); a.I('s_lshl_b32', 's57', 's53', '17'); a.I('s_add_u32', 's56', 's56', 's57'); a.I('s_add_u32', 's56', 's56', hex(WS_ACT))
    g = GemmC(a, vm, 5, 27, 2, 28, 5120, None, None, DB, 56, ACC, WB, BB, [3, 2, 1], 33, 'offen sc1', SKo=2, rot=45)
    g.issue_b(DB)
    a.I('s_mul_i32', 's57', 's53', '5120')
    a.I('v_add_u32', 'v3', 's57', 'v3'); a.I('v_add_u32', 'v2', '0x10000', 'v3'); a.I('v_add_u32', 'v1', '0x20000', 'v3')
    for k in range(40): a.I('v_mov_b32', V(ACC+k), '0')
    lds_wait(a, HS_W2W, 4, TMP)
    st.stamp('C:bar5')
    def late(i):
        if i != 20: return
        a.I('v_mul_u32_u24', V(TMP), str(5*GS), 'v7'); a.I('v_lshl_add_u32', V(TMP), 'v6', '4', V(TMP))
        a.I('s_add_u32', 's58', 's55', 's53'); a.I('s_lshl_b32', 's58', 's58', '3'); a.I('s_mul_i32', 's59', 's51', str(20*GS)); a.I('s_add_u32', 's58', 's58', 's59'); a.I('s_add_u32', 's58', 's58', hex(WS_HT4))
        for T in range(5):
            a.I('buffer_load_dwordx2', V(RES+2*T,2), V(TMP), S(8,4), 's58', mods='offen sc1'); vm.op('res')
            if T < 4: a.I('s_add_u32', 's58', 's58', str(GS))
    nb = g.run(late=late, st=st, tag='C:g2')
    st.stamp('C:loop2end')
    a.I('s_waitcnt', 'lgkmcnt(0)'); a.I('s_barrier')
    lane(a, 3); a.I('v_lshlrev_b32', 'v3', '4', 'v3')
    a.I('s_mul_i32', 's57', 's24', '5120'); a.I('v_add_u32', V(TMP+1), 's57', 'v3')
    a.I('s_xor_b32', 's59', 's24', '2'); a.I('s_mul_i32', 's59', 's59', '5120'); a.I('v_add_u32', V(TMP+2), 's59', 'v3')
    K = WB[0]
    l0, l1 = uid('KH0'), uid('RED')
    a.I('s_cmp_eq_u32', 's53', '0'); a.I('s_cbranch_scc1', l0)
    for T in range(5):
        a.I('ds_write_b128', V(TMP+1), V(ACC+8*T,4), mods=f'offset:{1024*T}')
        for r in range(4): a.I('v_mov_b32', V(K+4*T+r), V(ACC+8*T+4+r))
    a.I('s_branch', l1)
    a.L(l0)
    for T in range(5):
        a.I('ds_write_b128', V(TMP+1), V(ACC+8*T+4,4), mods=f'offset:{1024*T}')
        for r in range(4): a.I('v_mov_b32', V(K+4*T+r), V(ACC+8*T+r))
    a.L(l1)
    a.I('s_waitcnt', 'lgkmcnt(0)'); a.I('s_barrier')
    R = WB[1]
    for T in range(5): a.I('ds_read_b128', V(R+4*T,4), V(TMP+2), mods=f'offset:{1024*T}')
    srd(a, 16, P['out'], 2048*1280)
    a.I('v_mul_u32_u24', V(TMP), '2560', 'v6'); a.I('v_mul_u32_u24', V(TMP+3), '40', 'v7'); a.I('v_add_u32', V(TMP), V(TMP), V(TMP+3))
    a.I('s_add_u32', 's58', 's55', 's53'); a.I('s_mul_i32', 's58', 's58', '1280'); a.I('s_mul_i32', 's59', 's51', '160'); a.I('s_add_u32', 's58', 's58', 's59')
    vm.wait(['res'])
    X = WB[2]
    for T in range(5):
        a.I('s_waitcnt', f'lgkmcnt({4-T})')
        r0, r1 = RES+2*T, RES+2*T+1
        a.I('v_lshlrev_b32', V(X+4*T), '16', V(r0)); a.I('v_and_b32', V(X+4*T+1), '0xffff0000', V(r0))
        a.I('v_lshlrev_b32', V(X+4*T+2), '16', V(r1)); a.I('v_and_b32', V(X+4*T+3), '0xffff0000', V(r1))
        for r in range(4):
            a.I('v_add_f32', V(K+4*T+r), V(K+4*T+r), V(R+4*T+r)); a.I('v_add_f32', V(X+4*T+r), V(X+4*T+r), V(K+4*T+r))
        a.I('v_cvt_pk_bf16_f32', V(r0), V(X+4*T), V(X+4*T+1)); a.I('v_cvt_pk_bf16_f32', V(r1), V(X+4*T+2), V(X+4*T+3))
        a.I('buffer_store_dwordx2', V(r0,2), V(TMP), S(16,4), 's58', mods=f'offen offset:{8*T}'); vm.op('out')
    return nb + 2

W1R = 96
def l_w1_issue(a, vm, throttle=None):
    lane(a, 1)
    a.I('v_mul_u32_u24', 'v2', '4682', 'v1'); a.I('v_lshrrev_b32', 'v2', '16', 'v2')
    a.I('v_mul_u32_u24', 'v3', '14', 'v2'); a.I('v_sub_u32', 'v3', 'v1', 'v3'); a.I('v_lshlrev_b32', 'v3', '4', 'v3')
    a.I('s_mul_i32', 's25', 's23', '224'); a.I('v_add_u32', 'v3', 's25', 'v3'); a.I('v_min_u32', 'v3', '3440', 'v3')
    a.I('v_mul_u32_u24', 'v2', '3456', 'v2'); a.I('v_add_u32', 'v2', 'v2', 'v3')
    srd(a, 12, P['w1'], 640*3456)
    a.I('s_mul_i32', 's26', 's24', '13824')
    a.I('s_mov_b32', 'exec_lo', '-1'); a.I('s_mov_b32', 'exec_hi', '0x00ffffff')
    for i in range(40):
        a.I('s_add_u32', 's27', 's26', str(i*4*13824))
        a.I('buffer_load_dwordx4', V(W1R+4*i,4), 'v2', S(12,4), 's27', mods='offen'); vm.op(('w1', i))
        if throttle and i >= throttle: vm.wait([('w1', i-throttle)])
    a.I('s_mov_b64', 'exec', '-1')
def l_w1_write(a, vm):
    lane(a, 1)
    a.I('s_mul_i32', 's26', 's24', '896'); a.I('v_lshlrev_b32', 'v3', '4', 'v1'); a.I('v_add_u32', 'v3', 's26', 'v3')
    a.I('v_add_u32', 'v4', '0x10000', 'v3'); a.I('v_add_u32', 'v5', '0x20000', 'v3')
    a.I('s_mov_b32', 'exec_lo', '-1'); a.I('s_mov_b32', 'exec_hi', '0x00ffffff')
    for i in range(40):
        if vm: vm.wait([('w1', i)])
        k, o = divmod(i*3584, 65536)
        a.I('ds_write_b128', V(3+k), V(W1R+4*i,4), mods=f'offset:{o}')
    a.I('s_mov_b64', 'exec', '-1')
    a.I('s_waitcnt', 'lgkmcnt(0)')

W2R = 16
def w2reg(n): return W2R + 4*(n % 60)
def l_w2_setup(a, keep_w1=False):
    g2_params(a)
    lane(a, 1); a.I('v_lshlrev_b32', 'v6', '4', 'v1')
    a.I('s_lshl_b32', 's27', 's24', '10')
    a.I('s_mul_i32', 's46', 's51', str(270*1024)); a.I('s_add_u32', 's46', 's46', hex(WS_W2F))
    a.I('s_mul_i32', 's44', 's45', '10240'); a.I('s_add_u32', 's44', 's44', 's27')
    a.I('v_add_u32', 'v12', 's27', 'v6'); a.I('v_add_u32', 'v13', '0x10000', 'v12'); a.I('v_add_u32', 'v14', '0x20000', 'v12')
def l_w2_issue(a, vm, lo, hi, throttle=None):
    for n in range(lo, hi):
        a.I('s_add_u32', 's27', 's44', str(4*n*1024)); a.I('s_sub_u32', 's35', 's27', str(270*1024))
        a.I('s_cmp_ge_u32', 's27', str(270*1024)); a.I('s_cselect_b32', 's27', 's35', 's27'); a.I('s_add_u32', 's27', 's27', 's46')
        a.I('buffer_load_dwordx4', V(w2reg(n),4), 'v6', S(8,4), 's27', mods='offen sc1'); vm.op(('w2', n))
        if throttle and n-lo >= throttle: vm.wait([('w2', n-throttle)])
def l_w2_write(a, vm, ns):
    for n in ns:
        vm.wait([('w2', n)])
        kk, o = divmod(((4*n) % 140)*1024, 65536)
        a.I('ds_write_b128', V(12+kk), V(w2reg(n),4), mods=f'offset:{o}')
def l_gemm2(a, vm, nbar_total):
    for v in range(1, 14):
        a.I('s_barrier')
        if v + 6 <= 13:
            l_w2_write(a, vm, [n for n in range(5*(v+6), 5*(v+6)+5) if n <= 67])
            a.I('s_waitcnt', 'lgkmcnt(0)')
    for _ in range(nbar_total - 13): a.I('s_barrier')
```

```python
from common import *

def l_stats(a, vm, st):
    a.I('v_lshrrev_b32', 'v8', '5', 'v1'); a.I('v_and_b32', 'v9', '31', 'v1')
    a.I('v_mul_u32_u24', 'v10', '1280', 'v8'); a.I('v_lshl_add_u32', 'v10', 'v9', '4', 'v10')
    a.I('v_mov_b32', 'v11', '0x7ffffff0'); a.I('v_cmp_gt_u32', 'vcc', '16', 'v9'); a.I('v_cndmask_b32', 'v11', 'v11', 'v10', 'vcc')
    a.I('s_lshl_b32', 's25', 's2', '3'); a.I('s_lshl_b32', 's26', 's24', '1'); a.I('s_add_u32', 's25', 's25', 's26')
    a.I('s_mul_i32', 's26', 's25', '1280')
    srd(a, 12, P['x'], 2621440)
    a.I('buffer_load_dwordx4', V(12,4), 'v10', S(12,4), 's26', mods='offen')
    a.I('buffer_load_dwordx4', V(16,4), 'v10', S(12,4), 's26', mods='offen offset:512')
    a.I('buffer_load_dwordx4', V(20,4), 'v11', S(12,4), 's26', mods='offen offset:1024')
    sk = uid('NP')
    a.I('s_cmp_lg_u32', 's2', '0'); a.I('s_cbranch_scc1', sk); a.I('s_cmp_lg_u32', 's24', '0'); a.I('s_cbranch_scc1', sk)
    a.I('v_mov_b32', 'v48', '0'); a.I('s_mov_b32', 's27', hex(WS_NONCE))
    a.I('buffer_load_dword', 'v49', 'v48', S(8,4), 's27', mods='offen sc1'); a.I('s_waitcnt', 'vmcnt(0)')
    a.I('v_add_u32', 'v49', '1', 'v49'); a.I('v_or_b32', 'v49', '0x80000000', 'v49')
    a.I('s_mov_b64', 'exec', '1')
    a.I('buffer_store_dword', 'v49', 'v48', S(60,4), '0', mods='offen sc1')
    a.I('buffer_store_dword', 'v49', 'v48', S(8,4), 's27', mods='offen sc1')
    a.I('s_mov_b64', 'exec', '-1')
    a.L(sk)
    a.I('s_waitcnt', 'vmcnt(0)')
    st.stamp('L:xrow')
    U = 24
    for k in range(12):
        a.I('v_lshlrev_b32', V(U+2*k), '16', V(12+k)); a.I('v_and_b32', V(U+2*k+1), '0xffff0000', V(12+k))
    a.I('v_pk_add_f32', V(12,2), V(U,2), V(U+2,2))
    for k in range(2, 12): a.I('v_pk_add_f32', V(12,2), V(12,2), V(U+2*k,2))
    a.I('v_add_f32', 'v12', 'v12', 'v13')
    def red32(r):
        for sh in (8, 4, 2, 1): a.I('v_add_f32_dpp', V(r), V(r), V(r), mods=f'row_ror:{sh} row_mask:0xf bank_mask:0xf')
        a.I('v_mov_b32', 'v15', V(r)); a.I('v_permlane16_swap_b32', V(r), 'v15'); a.I('v_add_f32', V(r), V(r), 'v15')
    red32(12)
    a.I('v_mul_f32', 'v12', '0x3acccccd', 'v12')
    a.I('v_cmp_gt_u32', 'vcc', '16', 'v9')
    for k in range(16, 24): a.I('v_cndmask_b32', V(U+k), 'v12', V(U+k), 'vcc')
    a.I('v_mov_b32', 'v13', 'v12')
    for k in range(12): a.I('v_pk_add_f32', V(U+2*k,2), V(U+2*k,2), V(12,2), mods='neg_lo:[0,1] neg_hi:[0,1]')
    a.I('v_pk_mul_f32', V(14,2), V(U,2), V(U,2))
    for k in range(1, 12): a.I('v_pk_fma_f32', V(14,2), V(U+2*k,2), V(U+2*k,2), V(14,2))
    a.I('v_add_f32', 'v14', 'v14', 'v15')
    red32(14)
    a.I('v_mov_b32', 'v13', '0x3727c5ac'); a.I('v_fmac_f32', 'v13', '0x3acccccd', 'v14'); a.I('v_rsq_f32', 'v13', 'v13')
    a.I('v_lshlrev_b32', 'v8', '3', 'v8')
    a.I('s_lshl_b32', 's26', 's25', '3'); a.I('s_add_u32', 's26', 's26', hex(WS_STAT))
    a.I('s_mov_b32', 'exec_lo', '1'); a.I('s_mov_b32', 'exec_hi', '1')
    a.I('buffer_store_dwordx2', V(12,2), 'v8', S(8,4), 's26', mods='offen sc1')
    a.I('s_mov_b64', 'exec', '-1')
    get_nonce(a, 16)
    a.I('s_lshl_b32', 's27', 's2', '6'); a.I('s_add_u32', 's27', 's27', hex(WS_FS))
    publish_last(a, LSYNC, 24, 4, 's27', 16)
    st.stamp('L:statpub')

XR, SR, UR = 64, 80, 96
def l_gather_u(a, vm, st):
    a.I('s_lshl_b32', 's25', 's24', '8'); a.I('v_add_u32', 'v8', 's25', 'v1')
    a.I('v_mul_u32_u24', 'v9', '2560', 'v8')
    a.I('s_lshl_b32', 's26', 's48', '3')
    for i in range(4):
        a.I('s_add_u32', 's27', 's26', str(i*64*2560))
        a.I('buffer_load_dwordx2', V(XR+4*i,2), 'v9', S(12,4), 's27', mods='offen')
        a.I('buffer_load_dwordx2', V(XR+4*i+2,2), 'v9', S(12,4), 's27', mods='offen offset:1280')
    st.stamp('L:gissued')
    a.I('s_lshl_b32', 's27', 's48', '3'); a.I('s_add_u32', 's6', S(P['D']), 's27'); a.I('s_addc_u32', 's7', S(P['D']+1), '0')
    a.I('s_load_dwordx2', S(36,2), S(6,2), '0')
    a.I('s_mul_i32', 's27', 's24', '4608'); a.I('s_add_u32', 's27', 's27', str(UB))
    a.I('v_lshlrev_b32', 'v10', '3', 'v1'); a.I('v_add_u32', 'v10', 's27', 'v10')
    a.I('v_mov_b32', 'v12', '0'); a.I('v_mov_b32', 'v13', '0'); a.I('ds_write_b64', 'v10', V(12,2))
    a.I('s_lshl_b32', 's27', 's24', '12'); a.I('s_add_u32', 's27', 's27', hex(WS_FS))
    a.I('v_lshlrev_b32', 'v11', '6', 'v1')
    poll_flags(a, [11], 's27', 14)
    st.stamp('L:B1')
    a.I('v_lshlrev_b32', 'v11', '4', 'v8')
    for i in range(4):
        a.I('s_mov_b32', 's27', hex(WS_STAT + i*1024))
        a.I('buffer_load_dwordx4', V(SR+4*i,4), 'v11', S(8,4), 's27', mods='offen sc1')
    a.I('v_lshlrev_b32', 'v10', '2', 'v8'); a.I('v_add_u32', 'v10', str(UB+512), 'v10')
    for i in range(4):
        a.I('s_waitcnt', f'vmcnt({3-i})')
        x, s_ = XR+4*i, SR+4*i
        T = 16
        for h in range(2):
            for dwi in range(2):
                r = x + 2*h + dwi
                a.I('v_lshlrev_b32', V(T+4*h+2*dwi), '16', V(r)); a.I('v_and_b32', V(T+4*h+2*dwi+1), '0xffff0000', V(r))
            for c in range(4):
                a.I('v_sub_f32', V(T+4*h+c), V(T+4*h+c), V(s_+2*h)); a.I('v_mul_f32', V(T+4*h+c), V(T+4*h+c), V(s_+2*h+1))
        for c in range(4):
            a.I('v_cvt_pk_bf16_f32', V(UR+4*i+c), V(T+c), V(T+4+c))
            a.I('ds_write_b32', 'v10', V(UR+4*i+c), mods=f'offset:{c*4608+256*i}')
    a.I('s_waitcnt', 'lgkmcnt(0)')
    st.stamp('L:udone')

def l_hstore(a, vm, st):
    a.I('v_subrev_u32', 'v10', '512', 'v10')
    B = 112
    for i in range(4):
        for c in range(4): a.I('ds_read_b32', V(B+4*i+c), 'v10', mods=f'offset:{c*4608+256*i}')
    a.I('s_lshl_b32', 's38', 's36', '16'); a.I('s_and_b32', 's39', 's36', '0xffff0000'); a.I('s_lshl_b32', 's40', 's37', '16'); a.I('s_and_b32', 's41', 's37', '0xffff0000')
    a.I('s_lshl_b32', 's27', 's48', '14'); a.I('s_add_u32', 's27', 's27', hex(WS_HT4))
    a.I('v_lshlrev_b32', 'v11', '4', 'v8')
    for i in range(4):
        a.I('s_waitcnt', f'lgkmcnt({4*(3-i)})')
        T = 16; H = 24; x = XR+4*i
        for c in range(4):
            u, y = UR+4*i+c, B+4*i+c
            a.I('v_lshlrev_b32', V(T), '16', V(u)); a.I('v_and_b32', V(T+1), '0xffff0000', V(u))
            a.I('v_lshlrev_b32', V(T+2), '16', V(y)); a.I('v_and_b32', V(T+3), '0xffff0000', V(y))
            a.I('v_fmac_f32', V(T+2), S(38+c), V(T)); a.I('v_fmac_f32', V(T+3), S(38+c), V(T+1))
            xl, xh = x + c//2, x + 2 + c//2
            if c % 2 == 0:
                a.I('v_lshlrev_b32', V(T), '16', V(xl)); a.I('v_lshlrev_b32', V(T+1), '16', V(xh))
            else:
                a.I('v_and_b32', V(T), '0xffff0000', V(xl)); a.I('v_and_b32', V(T+1), '0xffff0000', V(xh))
            a.I('v_add_f32', V(H+c), V(T), V(T+2)); a.I('v_add_f32', V(H+4+c), V(T+1), V(T+3))
        O = 128 + 4*i
        a.I('v_cvt_pk_bf16_f32', V(O), V(H), V(H+1)); a.I('v_cvt_pk_bf16_f32', V(O+1), V(H+2), V(H+3))
        a.I('v_cvt_pk_bf16_f32', V(O+2), V(H+4), V(H+5)); a.I('v_cvt_pk_bf16_f32', V(O+3), V(H+6), V(H+7))
        a.I('s_add_u32', 's28', 's27', str(1024*i))
        a.I('buffer_store_dwordx4', V(O,4), 'v11', S(8,4), 's28', mods='offen sc1'); vm.op('hst')

def c_kgen(a, st):
    a.I('s_lshl_b32', 's25', 's48', '2'); a.I('s_add_u32', 's25', 's25', 's24')
    a.I('s_lshl_b32', 's26', 's25', '8')
    a.I('v_lshlrev_b32', 'v3', '1', 'v1')
    names = ['Are', 'Aim', 'Bre', 'Bim', 'Cre', 'Cim']
    for i, n in enumerate(names):
        srd(a, 12, P[n], 640*128*2)
        a.I('buffer_load_ushort', V(10+i), 'v3', S(12,4), 's26', mods='offen')
        a.I('buffer_load_ushort', V(56+i), 'v3', S(12,4), 's26', mods='offen offset:128')
    srd(a, 12, P['logdt'], 1280)
    a.I('s_lshl_b32', 's27', 's25', '1'); a.I('v_mov_b32', 'v4', 's27')
    a.I('buffer_load_ushort', 'v16', 'v4', S(12,4), '0', mods='offen')
    a.I('s_mul_i32', 's28', 's24', str(EREG))
    a.I('v_lshlrev_b32', 'v6', '2', 'v1'); a.I('v_add_u32', 'v6', 's28', 'v6')
    a.I('v_add_u32', 'v5', str(E1O), 'v6')
    a.I('s_waitcnt', 'vmcnt(0)')
    st.stamp('C:params')
    a.I('v_lshlrev_b32', 'v16', '16', 'v16')
    a.I('v_mul_f32', 'v16', hex(LOG2E), 'v16'); a.I('v_exp_f32', 'v16', 'v16')
    a.I('v_cvt_pk_bf16_f32', 'v16', 'v16', 'v16'); a.I('v_lshlrev_b32', 'v62', '16', 'v16')
    for half in range(2):
        src = 10 if half == 0 else 56
        off = 256*half
        for i in range(6): a.I('v_lshlrev_b32', V(10+i), '16', V(src+i))
        a.I('v_mul_f32', 'v10', 'v62', 'v10'); a.I('v_mul_f32', 'v11', 'v62', 'v11')
        a.I('v_mul_f32', 'v10', hex(LOG2E), 'v10'); a.I('v_mul_f32', 'v11', hex(INV2PI), 'v11')
        a.I('v_mul_f32', 'v12', 'v62', 'v12'); a.I('v_mul_f32', 'v13', 'v62', 'v13')
        T = 18
        cmul(a, 20, 14, 12, T)
        def cis(d, v):
            a.I('v_mul_f32', V(d), hex(f2u(float(v))), 'v10'); a.I('v_mul_f32', V(d+1), hex(f2u(float(v))), 'v11')
            a.I('v_exp_f32', V(d), V(d)); a.I('v_fract_f32', V(d+1), V(d+1))
            a.I('v_cos_f32', V(T), V(d+1)); a.I('v_sin_f32', V(d+1), V(d+1))
            a.I('v_mul_f32', V(d+1), V(d), V(d+1)); a.I('v_mul_f32', V(d), V(d), V(T))
        g1, g2, g3, g4, g5, g6, g7, g8 = 22, 24, 26, 28, 30, 32, 34, 36
        g256, g512, g1024, g768, tmp = 38, 40, 42, 44, 46
        cis(g1, 1); cis(g8, 8); cis(g256, 256); cis(g512, 512); cis(g1024, 1024)
        cmul(a, g2, g1, g1, T); cmul(a, g3, g2, g1, T); cmul(a, g4, g2, g2, T); cmul(a, g5, g4, g1, T); cmul(a, g6, g3, g3, T); cmul(a, g7, g4, g3, T)
        cmul(a, g768, g512, g256, T)
        pk = 48; cnt = [0]
        def st2(row, s_):
            r = pk + (cnt[0] & 3); cnt[0] += 1
            a.I('v_cvt_pk_bf16_f32', V(r), V(s_), '-'+V(s_+1))
            a.I('ds_write_b32', 'v6', V(r), mods=f'offset:{row*ROW+off}')
        a.I('v_mov_b32', V(pk), '0x3f80'); a.I('ds_write_b32', 'v6', V(pk), mods=f'offset:{off}'); cnt[0] = 1
        for row, g in zip(range(1, 8), (g1, g2, g3, g4, g5, g6, g7)): st2(row, g)
        st2(8, g256)
        for row, (p, q) in zip((9, 10, 11), ((g256, g2), (g256, g4), (g256, g6))): cmul(a, tmp, p, q, T); st2(row, tmp)
        st2(12, g512); cmul(a, tmp, g512, g4, T); st2(13, tmp)
        st2(14, g768); cmul(a, tmp, g768, g4, T); st2(15, tmp)
        st2(16, g1024)
        for row, (p, q) in zip((17, 18, 19, 20), ((g1024, g256), (g1024, g512), (g1024, g768), (g1024, g1024))): cmul(a, tmp, p, q, T); st2(row, tmp)
        for row in range(32):
            r = pk + (cnt[0] & 3); cnt[0] += 1
            a.I('v_cvt_pk_bf16_f32', V(r), 'v20', 'v21')
            a.I('ds_write_b32', 'v5', V(r), mods=f'offset:{row*ROW+off}')
            if row < 31: cmul(a, 20, 20, g8, T)
    st.stamp('C:egen')
    a.I('v_and_b32', 'v8', '15', 'v1'); a.I('v_lshrrev_b32', 'v9', '4', 'v1')
    a.I('v_mul_u32_u24', 'v13', str(ROW), 'v8'); a.I('v_lshl_add_u32', 'v13', 'v9', '4', 'v13'); a.I('v_add_u32', 'v13', 's28', 'v13')
    a.I('v_add_u32', 'v12', str(E1O), 'v13')
    a.I('v_mov_b32', 'v14', 'v8'); a.I('v_mov_b32', 'v15', '8')
    a.I('v_add_u32', 'v16', '248', 'v8')
    a.I('v_cmp_le_u32', 'vcc', '8', 'v8'); a.I('v_cndmask_b32', 'v14', 'v14', 'v16', 'vcc'); a.I('v_mov_b32', 'v17', '4'); a.I('v_cndmask_b32', 'v15', 'v15', 'v17', 'vcc')
    a.I('v_add_u32', 'v16', '372', 'v8')
    a.I('v_cmp_le_u32', 'vcc', '12', 'v8'); a.I('v_cndmask_b32', 'v14', 'v14', 'v16', 'vcc'); a.I('v_mov_b32', 'v17', '2'); a.I('v_cndmask_b32', 'v15', 'v15', 'v17', 'vcc')
    a.I('v_add_u32', 'v16', '434', 'v8')
    a.I('v_cmp_le_u32', 'vcc', '14', 'v8'); a.I('v_cndmask_b32', 'v14', 'v14', 'v16', 'vcc')
    a.I('v_lshlrev_b32', 'v16', '5', 'v8'); a.I('v_add_u32', 'v16', '512', 'v16'); a.I('v_mov_b32', 'v17', '672')
    a.I('v_cmp_lt_u32', 'vcc', '4', 'v8'); a.I('v_cndmask_b32', 'v16', 'v16', 'v17', 'vcc')
    a.I('v_lshlrev_b32', 'v17', '2', 'v9')
    a.I('v_mul_u32_u24', 'v18', 'v15', 'v17'); a.I('v_add_u32', 'v14', 'v14', 'v18'); a.I('v_add_u32', 'v16', 'v16', 'v17')
    a.I('s_add_u32', 's29', 's28', str(KDO)); a.I('v_mov_b32', 'v18', 's29')
    a.I('v_lshl_add_u32', 'v14', 'v14', '2', 'v18'); a.I('v_lshl_add_u32', 'v16', 'v16', '2', 'v18')
    a.I('v_lshlrev_b32', 'v15', '2', 'v15')
    D = 24
    for k in range(16): a.I('v_mov_b32', V(D+k), '0')
    a.I('s_waitcnt', 'lgkmcnt(0)')
    F = 64
    def ld(s):
        b = F + 16*(s % 4)
        a.I('ds_read_b128', V(b,4), 'v12', mods=f'offset:{s*64}'); a.I('ds_read_b128', V(b+4,4), 'v12', mods=f'offset:{s*64+16*ROW}')
        a.I('ds_read_b128', V(b+8,4), 'v13', mods=f'offset:{s*64}'); a.I('ds_read_b128', V(b+12,4), 'v13', mods=f'offset:{s*64+16*ROW}')
    for s in range(3): ld(s)
    for s in range(8):
        a.I('s_waitcnt', f'lgkmcnt({4*min(2, 7-s)})')
        b = F + 16*(s % 4)
        for mt in range(2):
            for nt in range(2):
                a.I('v_mfma_f32_16x16x32_bf16', V(D+8*mt+4*nt,4), V(b+4*mt,4), V(b+8+4*nt,4), V(D+8*mt+4*nt,4))
        if s+3 < 8: ld(s+3)
    for mt in range(2):
        for r in range(4):
            k = 16*mt + r
            if k == 0: a.I('ds_write_b32', 'v14', V(D+8*mt+r))
            else:
                a.I('v_mul_u32_u24', 'v19', str(k), 'v15'); a.I('v_add_u32', 'v19', 'v14', 'v19'); a.I('ds_write_b32', 'v19', V(D+8*mt+r))
            a.I('ds_write_b32', 'v16', V(D+8*mt+4+r), mods=f'offset:{4*k}')
    st.stamp('C:kd')
    a.I('v_lshlrev_b32', 'v2', '3', 'v1'); a.I('v_sub_u32', 'v2', '2047', 'v2')
    a.I('v_lshlrev_b32', 'v7', '4', 'v1'); a.I('v_add_u32', 'v7', 's28', 'v7')
    a.I('s_sub_u32', 's30', 's29', str(17024*4))
    a.I('v_mov_b32', 'v3', '0')
    a.I('v_and_b32', 'v19', '15', 'v1'); a.I('v_lshrrev_b32', 'v20', '2', 'v19'); a.I('v_and_b32', 'v19', '3', 'v19')
    a.I('v_mul_u32_u24', 'v20', str(ZST), 'v20'); a.I('v_lshl_add_u32', 'v19', 'v19', '3', 'v20'); a.I('v_add_u32', 'v19', 's28', 'v19')
    a.I('v_mov_b32', 'v20', '0'); a.I('v_mov_b32', 'v21', '0')
    a.I('s_waitcnt', 'lgkmcnt(0)')
    a.I('ds_write_b64', 'v19', V(20,2), mods='offset:4096')
    for i in range(4):
        J, Ff, G = 24, 40, 64+16*i
        for e in range(11):
            a.I('v_subrev_u32', V(J+e), str(512*i + e), 'v2')
            if i == 3: a.I('v_max_i32', V(J+e), '0', V(J+e))
            a.I('v_cvt_f32_u32', V(Ff+e), V(J+e))
        for e in range(0, 11, 2):
            if e+1 < 11:
                a.I('v_cvt_pk_bf16_f32', V(Ff+e), V(Ff+e), V(Ff+e+1))
                a.I('v_lshrrev_b32', V(Ff+e+1), '16', V(Ff+e)); a.I('v_and_b32', V(Ff+e), '0xffff', V(Ff+e))
            else:
                a.I('v_cvt_pk_bf16_f32', V(Ff+e), V(Ff+e), V(Ff+e)); a.I('v_and_b32', V(Ff+e), '0xffff', V(Ff+e))
        for e in range(11):
            a.I('v_lshl_add_u32', V(Ff+e), V(Ff+e), '2', 's30')
            if i == 3:
                a.I('v_lshl_add_u32', V(J+11), V(J+e), '2', 's29')
                a.I('v_cmp_gt_u32', 'vcc', '128', V(J+e)); a.I('v_cndmask_b32', V(Ff+e), V(Ff+e), V(J+11), 'vcc')
            a.I('ds_read_b32', V(G+e), V(Ff+e))
    for i in range(4):
        G = 64+16*i; O = 128+16*i
        a.I('s_waitcnt', f'lgkmcnt({min(15, 11*(3-i))})')
        if i == 3:
            a.I('v_cmp_eq_u32', 'vcc', '63', 'v1')
            for e in (8, 9, 10): a.I('v_cndmask_b32', V(G+e), V(G+e), 'v3', 'vcc')
        for c in range(4):
            for k in range(4): a.I('v_cvt_pk_bf16_f32', V(O+4*c+k), V(G+c+2*k), V(G+c+2*k+1))
            a.I('ds_write_b128', 'v7', V(O+4*c,4), mods=f'offset:{1024*i+c*ZST}')
    st.stamp('C:zdone')

ACC, A0, B0, A1, B1 = 96, 128, 160, 192, 224
def load_set(a, Areg, Breg, k):
    m, r = divmod(k, 3)
    if r == 0: a.I('ds_read_b64', V(Areg+4*m, 2), 'v4', mods=f'offset:{512*(7-m)}')
    elif r == 1: a.I('ds_read_b64', V(Areg+4*m+2, 2), 'v4', mods=f'offset:{512*(7-m)+8}')
    else: a.I('ds_read_b128', V(Breg+4*m, 4), 'v5', mods=f'offset:{512*m}')
def conv_class(a, Ac, Bc, An, Bn, prefetch):
    a.I('s_waitcnt', 'lgkmcnt(0)')
    if prefetch:
        a.I('v_subrev_u32', 'v4', '64', 'v4'); a.I('v_subrev_u32', 'v5', '64', 'v5')
    k = 0
    for m in range(8):
        for t in range(m, 8):
            a.I('v_mfma_f32_16x16x32_bf16', V(ACC+4*t,4), V(Ac+4*m,4), V(Bc+4*(t-m),4), V(ACC+4*t,4))
            if prefetch and k < 24: load_set(a, An, Bn, k); k += 1
def c_conv_setup(a):
    a.I('v_and_b32', 'v7', '15', 'v1'); a.I('v_lshrrev_b32', 'v8', '4', 'v1'); a.I('v_lshrrev_b32', 'v9', '1', 'v8'); a.I('v_and_b32', 'v8', '1', 'v8')
    a.I('v_sub_u32', 'v5', 'v7', 'v9'); a.I('v_lshlrev_b32', 'v5', '5', 'v5'); a.I('v_lshl_add_u32', 'v5', 'v8', '4', 'v5')
    a.I('s_mul_i32', 's29', 's24', '4608'); a.I('s_add_u32', 's29', 's29', str(UB+512)); a.I('v_add_u32', 'v5', 's29', 'v5')
    a.I('v_and_b32', 'v10', '3', 'v7'); a.I('v_sub_u32', 'v10', '3', 'v10'); a.I('v_mul_u32_u24', 'v4', str(ZST), 'v10')
    a.I('v_lshrrev_b32', 'v10', '2', 'v7'); a.I('v_lshlrev_b32', 'v10', '3', 'v10'); a.I('v_sub_u32', 'v4', 'v4', 'v10')
    a.I('v_lshlrev_b32', 'v10', '5', 'v9'); a.I('v_sub_u32', 'v4', 'v4', 'v10')
    a.I('v_lshl_add_u32', 'v4', 'v8', '4', 'v4'); a.I('s_add_u32', 's30', 's28', str(4088-3584)); a.I('v_add_u32', 'v4', 's30', 'v4')
    for k in range(32): a.I('v_mov_b32', V(ACC+k), '0')
    a.I('s_waitcnt', 'lgkmcnt(0)')
def c_conv(a, st):
    for k in range(24): load_set(a, A0, B0, k)
    a.I('s_mov_b32', 's30', '0')
    L = uid('CONV')
    a.L(L)
    conv_class(a, A0, B0, A1, B1, True); conv_class(a, A1, B1, A0, B0, True)
    a.I('s_add_u32', 's30', 's30', '1'); a.I('s_cmp_lt_u32', 's30', '3'); a.I('s_cbranch_scc1', L)
    conv_class(a, A0, B0, A1, B1, True); conv_class(a, A1, B1, A0, B0, False)
    st.stamp('C:convend')
    a.I('v_lshrrev_b32', 'v8', '4', 'v1'); a.I('v_lshlrev_b32', 'v8', '3', 'v8'); a.I('v_lshl_add_u32', 'v8', 'v7', '5', 'v8')
    a.I('s_sub_u32', 's29', 's29', '512'); a.I('v_add_u32', 'v8', 's29', 'v8')
    for t in range(8):
        a.I('v_cvt_pk_bf16_f32', V(A0+2*t), V(ACC+4*t), V(ACC+4*t+1)); a.I('v_cvt_pk_bf16_f32', V(A0+2*t+1), V(ACC+4*t+2), V(ACC+4*t+3))
        a.I('ds_write_b64', 'v8', V(A0+2*t,2), mods=f'offset:{512*t}')
    a.I('s_waitcnt', 'lgkmcnt(0)')
```

```python
from common import *
KD = lambda: 115328
def stats_task(a, st):
    a.I('v_lshrrev_b32', 'v8', '4', 'v1'); a.I('v_and_b32', 'v9', '15', 'v1')
    a.I('v_mul_u32_u24', 'v10', '1280', 'v8'); a.I('v_lshl_add_u32', 'v10', 'v9', '4', 'v10')
    a.I('s_lshl_b32', 's25', 's48', '5'); a.I('s_lshl_b32', 's26', 's3', '2'); a.I('s_add_u32', 's25', 's25', 's26')
    a.I('s_mul_i32', 's26', 's25', '1280')
    srd(a, 12, P['x'], 2621440)
    for i in range(5): a.I('buffer_load_dwordx4', V(12+4*i,4), 'v10', S(12,4), 's26', mods=f'offen offset:{256*i}')
    nonce_publish(a)
    a.I('s_waitcnt', 'vmcnt(0)')
    st.stamp('N:xrow')
    U = 40
    for k in range(20):
        a.I('v_lshlrev_b32', V(U+2*k), '16', V(12+k)); a.I('v_and_b32', V(U+2*k+1), '0xffff0000', V(12+k))
    a.I('v_pk_add_f32', V(12,2), V(U,2), V(U+2,2))
    for k in range(2, 20): a.I('v_pk_add_f32', V(12,2), V(12,2), V(U+2*k,2))
    a.I('v_add_f32', 'v12', 'v12', 'v13')
    def red16(r):
        for sh in (8, 4, 2, 1): a.I('v_add_f32_dpp', V(r), V(r), V(r), mods=f'row_ror:{sh} row_mask:0xf bank_mask:0xf')
    red16(12)
    a.I('v_mul_f32', 'v12', '0x3acccccd', 'v12'); a.I('v_mov_b32', 'v13', 'v12')
    for k in range(20): a.I('v_pk_add_f32', V(U+2*k,2), V(U+2*k,2), V(12,2), mods='neg_lo:[0,1] neg_hi:[0,1]')
    a.I('v_pk_mul_f32', V(14,2), V(U,2), V(U,2))
    for k in range(1, 20): a.I('v_pk_fma_f32', V(14,2), V(U+2*k,2), V(U+2*k,2), V(14,2))
    a.I('v_add_f32', 'v14', 'v14', 'v15')
    red16(14)
    a.I('v_mov_b32', 'v13', '0x3727c5ac'); a.I('v_fmac_f32', 'v13', '0x3acccccd', 'v14'); a.I('v_rsq_f32', 'v13', 'v13')
    a.I('v_lshlrev_b32', 'v8', '3', 'v8')
    a.I('s_lshl_b32', 's26', 's25', '3'); a.I('s_add_u32', 's26', 's26', hex(WS_STAT))
    a.I('s_mov_b32', 'exec_lo', '0x00010001'); a.I('s_mov_b32', 'exec_hi', '0x00010001')
    a.I('buffer_store_dwordx2', V(12,2), 'v8', S(8,4), 's26', mods='offen sc1')
    a.I('s_mov_b64', 'exec', '-1')
    get_nonce(a, 16)
    a.I('s_lshl_b32', 's27', 's48', '6'); a.I('s_add_u32', 's27', 's27', hex(WS_FS))
    publish_last(a, LSYNC, 3, 8, 's27', 16)
    st.stamp('N:statpub')

def nonce_publish(a):
    sk = uid('NP')
    a.I('s_cmp_lg_u32', 's48', '95'); a.I('s_cbranch_scc1', sk); a.I('s_cmp_lg_u32', 's3', '7'); a.I('s_cbranch_scc1', sk)
    a.I('v_mov_b32', 'v36', '0'); a.I('s_mov_b32', 's27', hex(WS_NONCE))
    a.I('v_lshlrev_b32', 'v38', '7', 'v1'); a.I('v_mov_b32', 'v39', '0'); a.I('s_mov_b32', 's28', hex(WS_RC))
    a.I('s_mov_b64', 'exec', '0xffff')
    a.I('buffer_store_dword', 'v39', 'v38', S(8,4), 's28', mods='offen sc1')
    a.I('s_mov_b64', 'exec', '1')
    a.I('buffer_load_dword', 'v37', 'v36', S(8,4), 's27', mods='offen sc1'); a.I('s_waitcnt', 'vmcnt(0)')
    a.I('v_add_u32', 'v37', '1', 'v37'); a.I('v_or_b32', 'v37', '0x80000000', 'v37')
    a.I('buffer_store_dword', 'v37', 'v36', S(60,4), '0', mods='offen sc1')
    a.I('buffer_store_dword', 'v37', 'v36', S(8,4), 's27', mods='offen sc1')
    a.I('s_mov_b64', 'exec', '-1')
    a.L(sk)

def colsum_task(a, st):
    done = uid('CSD')
    nonce_publish(a)
    a.I('s_sub_u32', 's27', 's48', '64'); a.I('s_lshl_b32', 's27', 's27', '3'); a.I('s_add_u32', 's27', 's27', 's3')
    a.I('s_cmp_ge_u32', 's27', '108'); a.I('s_cbranch_scc1', done)
    srd(a, 12, P['w1'], 640*3456)
    a.I('s_lshl_b32', 's28', 's27', '5')
    a.I('v_lshrrev_b32', 'v8', '1', 'v1'); a.I('v_mul_u32_u24', 'v8', '3456', 'v8'); a.I('v_and_b32', 'v9', '1', 'v1'); a.I('v_lshl_add_u32', 'v8', 'v9', '4', 'v8')
    for i in range(20):
        a.I('buffer_load_dwordx4', V(64+4*i,4), 'v8', S(12,4), 's28', mods='offen')
        if i < 19: a.I('s_add_u32', 's28', 's28', str(32*3456))
    for k in range(8): a.I('v_mov_b32', V(20+k), '0')
    for i in range(20):
        a.I('s_waitcnt', f'vmcnt({19-i})')
        for k in range(4):
            a.I('v_lshlrev_b32', 'v30', '16', V(64+4*i+k)); a.I('v_and_b32', 'v31', '0xffff0000', V(64+4*i+k))
            a.I('v_pk_add_f32', V(20+2*k,2), V(20+2*k,2), V(30,2))
    for k in range(8):
        for sh in (8, 4, 2): a.I('v_add_f32_dpp', V(20+k), V(20+k), V(20+k), mods=f'row_ror:{sh} row_mask:0xf bank_mask:0xf')
    for sw in ('v_permlane16_swap_b32', 'v_permlane32_swap_b32'):
        for k in range(8): a.I('v_mov_b32', V(32+k), V(20+k))
        for k in range(8): a.I(sw, V(20+k), V(32+k))
        for k in range(8): a.I('v_add_f32', V(20+k), V(20+k), V(32+k))
    a.I('s_lshl_b32', 's28', 's27', '6'); a.I('s_add_u32', 's28', 's28', hex(WS_CS))
    a.I('v_lshlrev_b32', 'v9', '5', 'v9')
    a.I('s_mov_b64', 'exec', '3')
    a.I('buffer_store_dwordx4', V(20,4), 'v9', S(8,4), 's28', mods='offen sc1')
    a.I('buffer_store_dwordx4', V(24,4), 'v9', S(8,4), 's28', mods='offen offset:16 sc1')
    a.I('s_mov_b64', 'exec', '-1')
    a.L(done)
    get_nonce(a, 16)

def nonconv_ready(a):
    a.I('s_and_b32', 's27', 's2', '15'); a.I('s_lshl_b32', 's27', 's27', '7'); a.I('s_add_u32', 's27', 's27', hex(WS_RC))
    arrive_last(a, LSYNC+32, 3, 8, 's27', 20)

XR, UR, SR = 112, 128, 144
def kgen_params(a):
    a.I('s_lshl_b32', 's25', 's48', '2'); a.I('s_add_u32', 's25', 's25', 's24')
    a.I('s_lshl_b32', 's26', 's25', '8'); a.I('s_lshl_b32', 's27', 's47', '7'); a.I('s_add_u32', 's26', 's26', 's27')
    a.I('v_lshlrev_b32', 'v3', '1', 'v1')
    for i, n in enumerate(['Are', 'Aim', 'Bre', 'Bim', 'Cre', 'Cim']):
        srd(a, 12, P[n], 640*128*2)
        a.I('buffer_load_ushort', V(10+i), 'v3', S(12,4), 's26', mods='offen')
    srd(a, 12, P['logdt'], 1280)
    a.I('s_lshl_b32', 's27', 's25', '1'); a.I('v_mov_b32', 'v4', 's27')
    a.I('buffer_load_ushort', 'v16', 'v4', S(12,4), '0', mods='offen')

def gather_issue(a):
    a.I('s_lshl_b32', 's25', 's24', '8'); a.I('v_add_u32', 'v100', 's25', 'v1')
    a.I('v_mul_u32_u24', 'v101', '2560', 'v100')
    srd(a, 12, P['x'], 2621440)
    a.I('s_lshl_b32', 's26', 's48', '3')
    for i in range(4):
        a.I('s_add_u32', 's27', 's26', str(i*64*2560))
        a.I('buffer_load_dwordx2', V(XR+4*i,2), 'v101', S(12,4), 's27', mods='offen')
        a.I('buffer_load_dwordx2', V(XR+4*i+2,2), 'v101', S(12,4), 's27', mods='offen offset:1280')
    a.I('s_add_u32', 's6', S(P['D']), 's26'); a.I('s_addc_u32', 's7', S(P['D']+1), '0')
    a.I('s_load_dwordx2', S(36,2), S(6,2), '0')

def kgen_body(a, st):
    a.I('s_mul_i32', 's28', 's24', str(EREG))
    a.I('s_lshl_b32', 's27', 's47', '8'); a.I('s_add_u32', 's27', 's27', 's28')
    a.I('v_lshlrev_b32', 'v6', '2', 'v1'); a.I('v_add_u32', 'v6', 's27', 'v6')
    a.I('v_add_u32', 'v5', str(E1O), 'v6')
    a.I('v_lshlrev_b32', 'v16', '16', 'v16')
    a.I('v_mul_f32', 'v16', hex(LOG2E), 'v16'); a.I('v_exp_f32', 'v16', 'v16')
    a.I('v_cvt_pk_bf16_f32', 'v16', 'v16', 'v16'); a.I('v_lshlrev_b32', 'v16', '16', 'v16')
    for i in range(6): a.I('v_lshlrev_b32', V(10+i), '16', V(10+i))
    a.I('v_mul_f32', 'v10', 'v16', 'v10'); a.I('v_mul_f32', 'v11', 'v16', 'v11')
    a.I('v_mul_f32', 'v10', hex(LOG2E), 'v10'); a.I('v_mul_f32', 'v11', hex(INV2PI), 'v11')
    a.I('v_mul_f32', 'v12', 'v16', 'v12'); a.I('v_mul_f32', 'v13', 'v16', 'v13')
    T = 18
    cmul(a, 20, 14, 12, T)
    def cis(d, v):
        a.I('v_mul_f32', V(d), hex(f2u(float(v))), 'v10'); a.I('v_mul_f32', V(d+1), hex(f2u(float(v))), 'v11')
        a.I('v_exp_f32', V(d), V(d)); a.I('v_fract_f32', V(d+1), V(d+1))
        a.I('v_cos_f32', V(T), V(d+1)); a.I('v_sin_f32', V(d+1), V(d+1))
        a.I('v_mul_f32', V(d+1), V(d), V(d+1)); a.I('v_mul_f32', V(d), V(d), V(T))
    g1, g2, g3, g4, g5, g6, g7, g8 = 22, 24, 26, 28, 30, 32, 34, 36
    g256, g512, g1024, g768, tmp = 38, 40, 42, 44, 46
    cis(g1, 1); cis(g8, 8); cis(g256, 256); cis(g512, 512); cis(g1024, 1024)
    cmul(a, g2, g1, g1, T); cmul(a, g3, g2, g1, T); cmul(a, g4, g2, g2, T); cmul(a, g5, g4, g1, T); cmul(a, g6, g3, g3, T); cmul(a, g7, g4, g3, T)
    cmul(a, g768, g512, g256, T)
    pk = 48; cnt = [0]
    def st2(row, s_):
        r = pk + (cnt[0] & 3); cnt[0] += 1
        a.I('v_cvt_pk_bf16_f32', V(r), V(s_), '-'+V(s_+1)); a.I('ds_write_b32', 'v6', V(r), mods=f'offset:{row*ROW}')
    a.I('v_mov_b32', V(pk), '0x3f80'); a.I('ds_write_b32', 'v6', V(pk)); cnt[0] = 1
    for row, g in zip(range(1, 8), (g1, g2, g3, g4, g5, g6, g7)): st2(row, g)
    st2(8, g256)
    for row, (p, q) in zip((9, 10, 11), ((g256, g2), (g256, g4), (g256, g6))): cmul(a, tmp, p, q, T); st2(row, tmp)
    st2(12, g512); cmul(a, tmp, g512, g4, T); st2(13, tmp)
    st2(14, g768); cmul(a, tmp, g768, g4, T); st2(15, tmp)
    st2(16, g1024)
    for row, (p, q) in zip((17, 18, 19, 20), ((g1024, g256), (g1024, g512), (g1024, g768), (g1024, g1024))): cmul(a, tmp, p, q, T); st2(row, tmp)
    for row in range(32):
        r = pk + (cnt[0] & 3); cnt[0] += 1
        a.I('v_cvt_pk_bf16_f32', V(r), 'v20', 'v21'); a.I('ds_write_b32', 'v5', V(r), mods=f'offset:{row*ROW}')
        if row < 31: cmul(a, 20, 20, g8, T)
    a.I('v_and_b32', 'v8', '15', 'v1'); a.I('v_lshrrev_b32', 'v9', '4', 'v1')
    a.I('v_mul_u32_u24', 'v13', str(ROW), 'v8'); a.I('v_lshl_add_u32', 'v13', 'v9', '4', 'v13'); a.I('v_add_u32', 'v13', 's28', 'v13')
    a.I('s_mul_i32', 's27', 's47', str(16*ROW)); a.I('s_add_u32', 's27', 's27', str(E1O)); a.I('v_add_u32', 'v12', 's27', 'v13')
    a.I('v_mov_b32', 'v14', 'v8'); a.I('v_mov_b32', 'v15', '8')
    a.I('v_add_u32', 'v16', '248', 'v8')
    a.I('v_cmp_le_u32', 'vcc', '8', 'v8'); a.I('v_cndmask_b32', 'v14', 'v14', 'v16', 'vcc'); a.I('v_mov_b32', 'v17', '4'); a.I('v_cndmask_b32', 'v15', 'v15', 'v17', 'vcc')
    a.I('v_add_u32', 'v16', '372', 'v8')
    a.I('v_cmp_le_u32', 'vcc', '12', 'v8'); a.I('v_cndmask_b32', 'v14', 'v14', 'v16', 'vcc'); a.I('v_mov_b32', 'v17', '2'); a.I('v_cndmask_b32', 'v15', 'v15', 'v17', 'vcc')
    a.I('v_add_u32', 'v16', '434', 'v8')
    a.I('v_cmp_le_u32', 'vcc', '14', 'v8'); a.I('v_cndmask_b32', 'v14', 'v14', 'v16', 'vcc')
    a.I('v_lshlrev_b32', 'v16', '5', 'v8'); a.I('v_add_u32', 'v16', '512', 'v16'); a.I('v_mov_b32', 'v17', '672')
    a.I('v_cmp_lt_u32', 'vcc', '4', 'v8'); a.I('v_cndmask_b32', 'v16', 'v16', 'v17', 'vcc')
    a.I('s_lshl_b32', 's27', 's47', '4'); a.I('v_lshlrev_b32', 'v17', '2', 'v9'); a.I('v_add_u32', 'v17', 's27', 'v17')
    a.I('v_mul_u32_u24', 'v18', 'v15', 'v17'); a.I('v_add_u32', 'v14', 'v14', 'v18'); a.I('v_add_u32', 'v16', 'v16', 'v17')
    a.I('s_mul_i32', 's29', 's24', '2816'); a.I('s_add_u32', 's29', 's29', str(KD())); a.I('v_mov_b32', 'v18', 's29')
    a.I('v_lshl_add_u32', 'v14', 'v14', '2', 'v18'); a.I('v_lshl_add_u32', 'v16', 'v16', '2', 'v18')
    a.I('v_lshlrev_b32', 'v15', '2', 'v15')
    a.I('v_add_u32', 'v19', 'v14', 'v15'); a.I('v_add_u32', 'v20', 'v19', 'v15'); a.I('v_add_u32', 'v21', 'v20', 'v15')
    D = 24
    for k in range(8): a.I('v_mov_b32', V(D+k), '0')
    a.I('s_waitcnt', 'lgkmcnt(0)')
    st.stamp('K:egen')
    a.I('s_barrier')
    F = 32
    def ld(s):
        b = F + 12*(s % 4)
        a.I('ds_read_b128', V(b,4), 'v12', mods=f'offset:{s*64}')
        a.I('ds_read_b128', V(b+4,4), 'v13', mods=f'offset:{s*64}'); a.I('ds_read_b128', V(b+8,4), 'v13', mods=f'offset:{s*64+16*ROW}')
    for s in range(4): ld(s)
    for s in range(8):
        a.I('s_waitcnt', f'lgkmcnt({3*min(3, 7-s)})')
        b = F + 12*(s % 4)
        a.I('v_mfma_f32_16x16x32_bf16', V(D,4), V(b,4), V(b+4,4), V(D,4)); a.I('v_mfma_f32_16x16x32_bf16', V(D+4,4), V(b,4), V(b+8,4), V(D+4,4))
        if s+4 < 8: ld(s+4)
    a.I('s_lshl_b32', 's27', 's47', '10')
    a.I('v_lshlrev_b32', 'v2', '3', 'v1'); a.I('v_sub_u32', 'v2', '2047', 'v2'); a.I('v_subrev_u32', 'v2', 's27', 'v2')
    a.I('s_sub_u32', 's30', 's29', str(17024*4))
    for r, ad in enumerate(('v14', 'v19', 'v20', 'v21')): a.I('ds_write_b32', ad, V(D+r))
    for r in range(4): a.I('ds_write_b32', 'v16', V(D+4+r), mods=f'offset:{4*r}')
    J, Ff = 32, 56
    for i in range(2):
        for e in range(11):
            j = J+12*i+e; f = Ff+12*i+e
            a.I('v_subrev_u32', V(j), str(512*i + e), 'v2')
            if i == 1: a.I('v_max_i32', V(j), '0', V(j))
            a.I('v_cvt_f32_u32', V(f), V(j))
        for e in range(0, 11, 2):
            f = Ff+12*i+e
            if e+1 < 11:
                a.I('v_cvt_pk_bf16_f32', V(f), V(f), V(f+1)); a.I('v_lshrrev_b32', V(f+1), '16', V(f)); a.I('v_and_b32', V(f), '0xffff', V(f))
            else:
                a.I('v_cvt_pk_bf16_f32', V(f), V(f), V(f)); a.I('v_and_b32', V(f), '0xffff', V(f))
        for e in range(11):
            j = J+12*i+e; f = Ff+12*i+e
            a.I('v_lshl_add_u32', V(f), V(f), '2', 's30')
            if i == 1:
                a.I('v_lshl_add_u32', V(j), V(j), '2', 's29')
    a.I('s_add_u32', 's31', 's29', '512'); a.I('v_mov_b32', 'v80', 's31')
    for e in range(11):
        j = J+12+e; f = Ff+12+e
        a.I('v_cmp_lt_u32', 'vcc', V(j), 'v80'); a.I('v_cndmask_b32', V(f), V(f), V(j), 'vcc')
    a.I('v_lshlrev_b32', 'v7', '4', 'v1'); a.I('s_lshl_b32', 's27', 's47', '11'); a.I('s_add_u32', 's27', 's27', 's28'); a.I('v_add_u32', 'v7', 's27', 'v7')
    a.I('s_waitcnt', 'lgkmcnt(0)')
    st.stamp('K:kd')
    a.I('s_barrier')
    G = 84
    G = 32
    for i in range(2):
        for e in range(11): a.I('ds_read_b32', V(G+12*i+e), V(Ff+12*i+e))
    a.I('v_and_b32', 'v19', '15', 'v1'); a.I('v_lshrrev_b32', 'v20', '2', 'v19'); a.I('v_and_b32', 'v19', '3', 'v19')
    a.I('v_mul_u32_u24', 'v20', str(ZST), 'v20'); a.I('v_lshl_add_u32', 'v19', 'v19', '3', 'v20'); a.I('v_add_u32', 'v19', 's28', 'v19')
    a.I('v_mov_b32', 'v20', '0'); a.I('v_mov_b32', 'v21', '0')
    a.I('ds_write_b64', 'v19', V(20,2), mods='offset:4096')
    a.I('s_lshl_b32', 's31', 's47', '31'); a.I('s_mov_b32', 'vcc_lo', '0'); a.I('s_mov_b32', 'vcc_hi', 's31')
    a.I('s_waitcnt', 'lgkmcnt(1)')
    for e in (8, 9, 10): a.I('v_cndmask_b32', V(G+12+e), V(G+12+e), 'v20', 'vcc')
    O = 80
    for i in range(2):
        for c in range(4):
            o = O + 4*((4*i+c) % 4)
            for k in range(4): a.I('v_cvt_pk_bf16_f32', V(o+k), V(G+12*i+c+2*k), V(G+12*i+c+2*k+1))
            a.I('ds_write_b128', 'v7', V(o,4), mods=f'offset:{1024*i+c*ZST}')
    st.stamp('K:z')

def l_u(a, st):
    a.I('s_mul_i32', 's27', 's24', '4608'); a.I('s_add_u32', 's27', 's27', str(UB))
    a.I('v_lshlrev_b32', 'v10', '3', 'v1'); a.I('v_add_u32', 'v10', 's27', 'v10')
    a.I('v_mov_b32', 'v12', '0'); a.I('v_mov_b32', 'v13', '0'); a.I('ds_write_b64', 'v10', V(12,2))
    get_nonce(a, 14)
    a.I('s_lshl_b32', 's27', 's24', '10'); a.I('s_add_u32', 's27', 's27', hex(WS_FS))
    a.I('v_and_b32', 'v11', '15', 'v1'); a.I('v_lshlrev_b32', 'v11', '6', 'v11')
    poll_flags(a, [11], 's27', 14)
    st.stamp('L:B1')
    a.I('v_lshlrev_b32', 'v11', '4', 'v100')
    for i in range(4):
        a.I('s_mov_b32', 's27', hex(WS_STAT + i*1024))
        a.I('buffer_load_dwordx4', V(SR+4*i,4), 'v11', S(8,4), 's27', mods='offen sc1')
    a.I('v_lshlrev_b32', 'v102', '2', 'v100'); a.I('v_add_u32', 'v102', str(UB+512), 'v102')
    for i in range(4):
        a.I('s_waitcnt', f'vmcnt({3-i})')
        x, s_ = XR+4*i, SR+4*i
        T = 16
        for h in range(2):
            for dwi in range(2):
                r = x + 2*h + dwi
                a.I('v_lshlrev_b32', V(T+4*h+2*dwi), '16', V(r)); a.I('v_and_b32', V(T+4*h+2*dwi+1), '0xffff0000', V(r))
            for c in range(4):
                a.I('v_sub_f32', V(T+4*h+c), V(T+4*h+c), V(s_+2*h)); a.I('v_mul_f32', V(T+4*h+c), V(T+4*h+c), V(s_+2*h+1))
        for c in range(4):
            a.I('v_cvt_pk_bf16_f32', V(UR+4*i+c), V(T+c), V(T+4+c))
            a.I('ds_write_b32', 'v102', V(UR+4*i+c), mods=f'offset:{c*4608+256*i}')
    for k in range(16): a.I('v_mov_b32', V(64+k), V(XR+k))
    for k in range(16): a.I('v_mov_b32', V(80+k), V(UR+k))
    a.I('v_mov_b32', 'v8', 'v100'); a.I('v_mov_b32', 'v10', 'v102')
    a.I('s_waitcnt', 'lgkmcnt(0)')
    st.stamp('L:udone')

def l_hstore(a, vm):
    X_, U_ = 64, 80
    a.I('v_subrev_u32', 'v10', '512', 'v10')
    B = 32
    for i in range(4):
        for c in range(4): a.I('ds_read_b32', V(B+4*i+c), 'v10', mods=f'offset:{c*4608+256*i}')
    a.I('s_lshl_b32', 's38', 's36', '16'); a.I('s_and_b32', 's39', 's36', '0xffff0000'); a.I('s_lshl_b32', 's40', 's37', '16'); a.I('s_and_b32', 's41', 's37', '0xffff0000')
    a.I('s_lshl_b32', 's27', 's48', '14'); a.I('s_add_u32', 's27', 's27', hex(WS_HT4))
    a.I('v_lshlrev_b32', 'v11', '4', 'v8')
    for i in range(4):
        a.I('s_waitcnt', f'lgkmcnt({4*(3-i)})')
        T = 16; H = 24; x = X_+4*i
        for c in range(4):
            u, y = U_+4*i+c, B+4*i+c
            a.I('v_lshlrev_b32', V(T), '16', V(u)); a.I('v_and_b32', V(T+1), '0xffff0000', V(u))
            a.I('v_lshlrev_b32', V(T+2), '16', V(y)); a.I('v_and_b32', V(T+3), '0xffff0000', V(y))
            a.I('v_fmac_f32', V(T+2), S(38+c), V(T)); a.I('v_fmac_f32', V(T+3), S(38+c), V(T+1))
            xl, xh = x + c//2, x + 2 + c//2
            if c % 2 == 0:
                a.I('v_lshlrev_b32', V(T), '16', V(xl)); a.I('v_lshlrev_b32', V(T+1), '16', V(xh))
            else:
                a.I('v_and_b32', V(T), '0xffff0000', V(xl)); a.I('v_and_b32', V(T+1), '0xffff0000', V(xh))
            a.I('v_add_f32', V(H+c), V(T), V(T+2)); a.I('v_add_f32', V(H+4+c), V(T+1), V(T+3))
        O = 48 + 4*i
        a.I('v_cvt_pk_bf16_f32', V(O), V(H), V(H+1)); a.I('v_cvt_pk_bf16_f32', V(O+1), V(H+2), V(H+3))
        a.I('v_cvt_pk_bf16_f32', V(O+2), V(H+4), V(H+5)); a.I('v_cvt_pk_bf16_f32', V(O+3), V(H+6), V(H+7))
        a.I('s_add_u32', 's28', 's27', str(1024*i))
        a.I('buffer_store_dwordx4', V(O,4), 'v11', S(8,4), 's28', mods='offen sc1'); vm.op('hst')
```

```python
from common import *
import ph2
from ph2 import XR, UR, SR, KD, kgen_params, l_hstore, nonce_publish, colsum_task, nonconv_ready

def gather_setup(a):
    a.I('s_lshl_b32', 's25', 's24', '8'); a.I('v_add_u32', 'v100', 's25', 'v1')
    a.I('v_mul_u32_u24', 'v101', '2560', 'v100')
    srd(a, 16, P['x'], 2621440)
    a.I('s_lshl_b32', 's42', 's48', '3')
    a.I('s_add_u32', 's6', S(P['D']), 's42'); a.I('s_addc_u32', 's7', S(P['D']+1), '0')
    a.I('s_load_dwordx2', S(36,2), S(6,2), '0')
def gather_load(a, k):
    i, h = divmod(k, 2)
    a.I('s_add_u32', 's43', 's42', str(i*64*2560))
    a.I('buffer_load_dwordx2', V(XR+4*i+2*h,2), 'v101', S(16,4), 's43', mods='offen' + (' offset:1280' if h else ''))

def egen(a, st):
    gk = [2]
    def sprinkle():
        if gk[0] >= 8: return
        sk = uid('GS')
        a.I('s_cmp_eq_u32', 's47', '0'); a.I('s_cbranch_scc1', sk)
        gather_load(a, gk[0]); gk[0] += 1
        a.L(sk)
    a.I('s_mul_i32', 's28', 's24', str(EREG))
    a.I('s_lshl_b32', 's27', 's47', '8'); a.I('s_add_u32', 's27', 's27', 's28')
    a.I('v_lshlrev_b32', 'v6', '2', 'v1'); a.I('v_add_u32', 'v6', 's27', 'v6')
    a.I('v_add_u32', 'v5', str(E1O), 'v6')
    a.I('v_lshlrev_b32', 'v16', '16', 'v16')
    a.I('v_mul_f32', 'v16', hex(LOG2E), 'v16'); a.I('v_exp_f32', 'v16', 'v16')
    a.I('v_cvt_pk_bf16_f32', 'v16', 'v16', 'v16'); a.I('v_lshlrev_b32', 'v16', '16', 'v16')
    for i in range(6): a.I('v_lshlrev_b32', V(10+i), '16', V(10+i))
    a.I('v_mul_f32', 'v10', 'v16', 'v10'); a.I('v_mul_f32', 'v11', 'v16', 'v11')
    a.I('v_mul_f32', 'v10', hex(LOG2E), 'v10'); a.I('v_mul_f32', 'v11', hex(INV2PI), 'v11')
    a.I('v_mul_f32', 'v12', 'v16', 'v12'); a.I('v_mul_f32', 'v13', 'v16', 'v13')
    T = 18
    cmul(a, 20, 14, 12, T)
    def cis(d, v):
        a.I('v_mul_f32', V(d), hex(f2u(float(v))), 'v10'); a.I('v_mul_f32', V(d+1), hex(f2u(float(v))), 'v11')
        a.I('v_exp_f32', V(d), V(d)); a.I('v_fract_f32', V(d+1), V(d+1))
        a.I('v_cos_f32', V(T), V(d+1)); a.I('v_sin_f32', V(d+1), V(d+1))
        a.I('v_mul_f32', V(d+1), V(d), V(d+1)); a.I('v_mul_f32', V(d), V(d), V(T))
    g1, g2, g3, g4, g5, g6, g7, g8 = 22, 24, 26, 28, 30, 32, 34, 36
    g256, g512, g1024, g768, tmp = 38, 40, 42, 44, 46
    cis(g8, 8)
    pk = 48; cnt = [0]
    cis(g1, 1); sprinkle()
    cis(g256, 256); cis(g512, 512); sprinkle(); cis(g1024, 1024)
    cmul(a, g2, g1, g1, T); cmul(a, g3, g2, g1, T); cmul(a, g4, g2, g2, T); cmul(a, g5, g4, g1, T); cmul(a, g6, g3, g3, T); cmul(a, g7, g4, g3, T)
    cmul(a, g768, g512, g256, T)
    sprinkle()
    def st2(row, s_):
        r = pk + (cnt[0] & 3); cnt[0] += 1
        a.I('v_cvt_pk_bf16_f32', V(r), V(s_), '-'+V(s_+1)); a.I('ds_write_b32', 'v6', V(r), mods=f'offset:{row*ROW}')
    a.I('v_mov_b32', V(pk), '0x3f80'); a.I('ds_write_b32', 'v6', V(pk)); cnt[0] = 1
    for row, g in zip(range(1, 8), (g1, g2, g3, g4, g5, g6, g7)): st2(row, g)
    st2(8, g256)
    for row, (p, q) in zip((9, 10, 11), ((g256, g2), (g256, g4), (g256, g6))): cmul(a, tmp, p, q, T); st2(row, tmp)
    st2(12, g512); cmul(a, tmp, g512, g4, T); st2(13, tmp)
    sprinkle()
    st2(14, g768); cmul(a, tmp, g768, g4, T); st2(15, tmp)
    st2(16, g1024)
    for row, (p, q) in zip((17, 18, 19, 20), ((g1024, g256), (g1024, g512), (g1024, g768), (g1024, g1024))): cmul(a, tmp, p, q, T); st2(row, tmp)
    for row in range(32):
        r = pk + (cnt[0] & 3); cnt[0] += 1
        a.I('v_cvt_pk_bf16_f32', V(r), 'v20', 'v21'); a.I('ds_write_b32', 'v5', V(r), mods=f'offset:{row*ROW}')
        if row < 31: cmul(a, 20, 20, g8, T)
        if row in (4, 14): sprinkle()
    assert gk[0] == 8

def c_kfinish(a, st):
    a.I('s_mul_i32', 's29', 's24', '2816'); a.I('s_add_u32', 's29', 's29', str(KD()))
    a.I('s_sub_u32', 's30', 's29', str(17024*4))
    a.I('v_lshlrev_b32', 'v2', '3', 'v1'); a.I('v_sub_u32', 'v2', '2047', 'v2'); a.I('v_cvt_f32_u32', 'v3', 'v2')
    AD = 112
    a.I('v_mov_b32', 'v4', '4')
    a.I('v_mov_b32', 'v7', 's30')
    for i in range(4):
        F = 64
        for e in range(11): a.I('v_add_f32', V(F+e), hex(f2u(-float(512*i+e))), 'v3')
        if i == 3:
            for e in range(8, 11): a.I('v_max_f32', V(F+e), '0', V(F+e))
            for e in range(11): a.I('v_cvt_u32_f32', V(80+e), V(F+e))
        for e in range(0, 11, 2):
            hi = F+e+1 if e+1 < 11 else F+e
            a.I('v_cvt_pk_bf16_f32', V(F+e), V(F+e), V(hi))
            a.I('v_mad_u32_u16', V(AD+11*i+e), V(F+e), 'v4', 'v7', mods='op_sel:[0,0,0,0]')
            if e+1 < 11: a.I('v_mad_u32_u16', V(AD+11*i+e+1), V(F+e), 'v4', 'v7', mods='op_sel:[1,0,0,0]')
        if i == 3:
            for e in range(11):
                a.I('v_cmp_gt_u32', 'vcc', '128', V(80+e)); a.I('v_lshl_add_u32', V(80+e), V(80+e), '2', 's29')
                a.I('v_cndmask_b32', V(AD+33+e), V(AD+33+e), V(80+e), 'vcc')
    a.I('v_and_b32', 'v8', '15', 'v1'); a.I('v_lshrrev_b32', 'v9', '4', 'v1')
    a.I('v_mul_u32_u24', 'v13', str(ROW), 'v8'); a.I('v_lshl_add_u32', 'v13', 'v9', '4', 'v13'); a.I('v_add_u32', 'v13', 's28', 'v13')
    a.I('v_add_u32', 'v12', str(E1O), 'v13')
    a.I('v_mov_b32', 'v14', 'v8'); a.I('v_mov_b32', 'v15', '8')
    a.I('v_add_u32', 'v16', '248', 'v8')
    a.I('v_cmp_le_u32', 'vcc', '8', 'v8'); a.I('v_cndmask_b32', 'v14', 'v14', 'v16', 'vcc'); a.I('v_mov_b32', 'v17', '4'); a.I('v_cndmask_b32', 'v15', 'v15', 'v17', 'vcc')
    a.I('v_add_u32', 'v16', '372', 'v8')
    a.I('v_cmp_le_u32', 'vcc', '12', 'v8'); a.I('v_cndmask_b32', 'v14', 'v14', 'v16', 'vcc'); a.I('v_mov_b32', 'v17', '2'); a.I('v_cndmask_b32', 'v15', 'v15', 'v17', 'vcc')
    a.I('v_add_u32', 'v16', '434', 'v8')
    a.I('v_cmp_le_u32', 'vcc', '14', 'v8'); a.I('v_cndmask_b32', 'v14', 'v14', 'v16', 'vcc')
    a.I('v_lshlrev_b32', 'v16', '5', 'v8'); a.I('v_add_u32', 'v16', '512', 'v16'); a.I('v_mov_b32', 'v17', '672')
    a.I('v_cmp_lt_u32', 'vcc', '4', 'v8'); a.I('v_cndmask_b32', 'v16', 'v16', 'v17', 'vcc')
    a.I('v_lshlrev_b32', 'v17', '2', 'v9')
    a.I('v_mul_u32_u24', 'v18', 'v15', 'v17'); a.I('v_add_u32', 'v14', 'v14', 'v18'); a.I('v_add_u32', 'v16', 'v16', 'v17')
    a.I('v_mov_b32', 'v18', 's29')
    a.I('v_lshl_add_u32', 'v14', 'v14', '2', 'v18'); a.I('v_lshl_add_u32', 'v16', 'v16', '2', 'v18')
    a.I('v_lshlrev_b32', 'v15', '2', 'v15')
    SA = 100
    a.I('v_lshlrev_b32', 'v19', '4', 'v15')
    a.I('v_mov_b32', V(SA), 'v14')
    for r in range(1, 4): a.I('v_add_u32', V(SA+r), V(SA+r-1), 'v15')
    for r in range(4): a.I('v_add_u32', V(SA+4+r), V(SA+r), 'v19')
    D = 24
    for k in range(16): a.I('v_mov_b32', V(D+k), '0')
    a.I('v_lshlrev_b32', 'v7', '4', 'v1'); a.I('v_add_u32', 'v7', 's28', 'v7')
    a.I('s_waitcnt', 'lgkmcnt(0)')
    st.stamp('K:egen')
    a.I('s_barrier')
    F = 40
    def ld(s):
        b = F + 16*(s % 3)
        a.I('ds_read_b128', V(b,4), 'v12', mods=f'offset:{s*64}'); a.I('ds_read_b128', V(b+4,4), 'v12', mods=f'offset:{s*64+16*ROW}')
        a.I('ds_read_b128', V(b+8,4), 'v13', mods=f'offset:{s*64}'); a.I('ds_read_b128', V(b+12,4), 'v13', mods=f'offset:{s*64+16*ROW}')
    for s in range(3): ld(s)
    for s in range(8):
        a.I('s_waitcnt', f'lgkmcnt({4*min(2, 7-s)})')
        b = F + 16*(s % 3)
        for mt in range(2):
            for nt in range(2): a.I('v_mfma_f32_16x16x32_bf16', V(D+8*mt+4*nt,4), V(b+4*mt,4), V(b+8+4*nt,4), V(D+8*mt+4*nt,4))
        if s+3 < 8: ld(s+3)
    for mt in range(2):
        for r in range(4):
            a.I('ds_write_b32', V(SA+4*mt+r), V(D+8*mt+r))
            a.I('ds_write_b32', 'v16', V(D+8*mt+4+r), mods=f'offset:{4*(16*mt+r)}')
    a.I('v_and_b32', 'v19', '15', 'v1'); a.I('v_lshrrev_b32', 'v20', '2', 'v19'); a.I('v_and_b32', 'v19', '3', 'v19')
    a.I('v_mul_u32_u24', 'v20', str(ZST), 'v20'); a.I('v_lshl_add_u32', 'v19', 'v19', '3', 'v20'); a.I('v_add_u32', 'v19', 's28', 'v19')
    a.I('v_mov_b32', 'v20', '0'); a.I('v_mov_b32', 'v21', '0')
    a.I('s_waitcnt', 'lgkmcnt(0)')
    st.stamp('K:kd')
    a.I('ds_write_b64', 'v19', V(20,2), mods='offset:4096')
    G = 160
    for i in range(4):
        for e in range(11): a.I('ds_read_b32', V(G+11*i+e), V(AD+11*i+e))
    a.I('v_cmp_eq_u32', 'vcc', '63', 'v1')
    for i in range(4):
        a.I('s_waitcnt', f'lgkmcnt({min(15, 11*(3-i))})')
        if i == 3:
            for e in (8, 9, 10): a.I('v_cndmask_b32', V(G+33+e), V(G+33+e), 'v20', 'vcc')
        for c in range(4):
            o = 64 + 4*((4*i+c) % 8)
            for k in range(4): a.I('v_cvt_pk_bf16_f32', V(o+k), V(G+11*i+c+2*k), V(G+11*i+c+2*k+1))
            a.I('ds_write_b128', 'v7', V(o,4), mods=f'offset:{1024*i+c*ZST}')
    st.stamp('K:z')

def stats_task(a, st, w2_first):
    a.I('v_lshrrev_b32', 'v8', '4', 'v1'); a.I('v_and_b32', 'v9', '15', 'v1')
    a.I('v_mul_u32_u24', 'v10', '1280', 'v8'); a.I('v_lshl_add_u32', 'v10', 'v9', '4', 'v10')
    a.I('s_lshl_b32', 's25', 's48', '5'); a.I('s_lshl_b32', 's26', 's3', '2'); a.I('s_add_u32', 's25', 's25', 's26')
    a.I('s_mul_i32', 's26', 's25', '1280')
    srd(a, 12, P['x'], 2621440)
    for i in range(5): a.I('buffer_load_dwordx4', V(12+4*i,4), 'v10', S(12,4), 's26', mods=f'offen offset:{256*i}')
    a.I('s_waitcnt', 'vmcnt(0)')
    st.stamp('N:xrow')
    U = 40
    for k in range(20):
        a.I('v_lshlrev_b32', V(U+2*k), '16', V(12+k)); a.I('v_and_b32', V(U+2*k+1), '0xffff0000', V(12+k))
    a.I('v_pk_add_f32', V(12,2), V(U,2), V(U+2,2))
    for k in range(2, 20): a.I('v_pk_add_f32', V(12,2), V(12,2), V(U+2*k,2))
    a.I('v_add_f32', 'v12', 'v12', 'v13')
    def red16(r):
        for sh in (8, 4, 2, 1): a.I('v_add_f32_dpp', V(r), V(r), V(r), mods=f'row_ror:{sh} row_mask:0xf bank_mask:0xf')
    red16(12)
    a.I('v_mul_f32', 'v12', '0x3acccccd', 'v12'); a.I('v_mov_b32', 'v13', 'v12')
    for k in range(20): a.I('v_pk_add_f32', V(U+2*k,2), V(U+2*k,2), V(12,2), mods='neg_lo:[0,1] neg_hi:[0,1]')
    a.I('v_pk_mul_f32', V(14,2), V(U,2), V(U,2))
    for k in range(1, 20): a.I('v_pk_fma_f32', V(14,2), V(U+2*k,2), V(U+2*k,2), V(14,2))
    a.I('v_add_f32', 'v14', 'v14', 'v15')
    red16(14)
    a.I('v_mov_b32', 'v13', '0x3727c5ac'); a.I('v_fmac_f32', 'v13', '0x3acccccd', 'v14'); a.I('v_rsq_f32', 'v13', 'v13')
    a.I('v_lshlrev_b32', 'v8', '3', 'v8')
    a.I('s_lshl_b32', 's26', 's25', '3'); a.I('s_add_u32', 's26', 's26', hex(WS_STAT))
    a.I('s_mov_b32', 'exec_lo', '0x00010001'); a.I('s_mov_b32', 'exec_hi', '0x00010001')
    a.I('buffer_store_dwordx2', V(12,2), 'v8', S(8,4), 's26', mods='offen sc1')
    a.I('s_mov_b64', 'exec', '-1')
    get_nonce(a, 16)
    a.I('s_lshl_b32', 's27', 's48', '6'); a.I('s_add_u32', 's27', 's27', hex(WS_FS))
    publish_last(a, LSYNC, 3, 8, 's27', 16)
    st.stamp('N:statpub')
    w2_first()

def w2_issue(a):
    a.I('s_lshl_b32', 's38', 's48', '3'); a.I('s_add_u32', 's38', 's38', 's3')
    a.I('s_cmp_lt_u32', 's38', '432'); a.I('s_cselect_b32', 's38', 's38', 's3')
    a.I('s_mul_i32', 's39', 's3', '5120')
    for c in range(5):
        a.I('v_add_u32', 'v88', str(64*c), 'v1'); a.I('v_mul_u32_u24', 'v89', '6554', 'v88'); a.I('v_lshrrev_b32', 'v89', '16', 'v89')
        a.I('v_mul_u32_u24', V(90+c), '10', 'v89'); a.I('v_sub_u32', V(90+c), 'v88', V(90+c)); a.I('v_lshlrev_b32', V(90+c), '4', V(90+c))
        a.I('v_mul_u32_u24', 'v89', '1280', 'v89'); a.I('v_add_u32', V(90+c), V(90+c), 'v89')
    srd(a, 16, P['w2'], 1728*1280)
    a.I('s_lshr_b32', 's40', 's38', '3'); a.I('s_and_b32', 's41', 's38', '7')
    a.I('s_mul_i32', 's42', 's40', str(32*1280)); a.I('s_mul_i32', 's43', 's41', '160'); a.I('s_add_u32', 's42', 's42', 's43')
    for c in range(5):
        a.I('s_add_u32', 'm0', 's39', str(c*1024))
        a.I('buffer_load_dwordx4', V(90+c), S(16,4), 's42', mods='offen lds')
    a.I('s_mul_i32', 's43', 's41', '54'); a.I('s_add_u32', 's43', 's43', 's40'); a.I('s_mul_i32', 's43', 's43', '5120'); a.I('s_add_u32', 's42', 's43', hex(WS_W2F))
def w2_finish(a, st):
    a.I('s_waitcnt', 'vmcnt(0)')
    a.I('v_and_b32', 'v8', '15', 'v1'); a.I('v_lshrrev_b32', 'v9', '4', 'v1'); a.I('v_lshrrev_b32', 'v15', '2', 'v8'); a.I('v_lshl_add_u32', 'v15', 'v9', '2', 'v15')
    a.I('v_and_b32', 'v8', '3', 'v8')
    a.I('v_mul_u32_u24', 'v17', '160', 'v15'); a.I('v_mul_u32_u24', 'v8', '40', 'v8'); a.I('v_add_u32', 'v17', 'v17', 'v8'); a.I('v_add_u32', 'v17', 's39', 'v17')
    a.I('v_lshlrev_b32', 'v5', '4', 'v1')
    R = 24
    for T in range(5):
        a.I('ds_read_b64_tr_b16', V(R+4*T,2), 'v17', mods=f'offset:{8*T}'); a.I('ds_read_b64_tr_b16', V(R+4*T+2,2), 'v17', mods=f'offset:{8*T+2560}')
    a.I('s_waitcnt', 'lgkmcnt(0)')
    for T in range(5):
        a.I('buffer_store_dwordx4', V(R+4*T,4), 'v5', S(8,4), 's42', mods=(f'offen offset:{1024*T} sc1' if T < 4 else 'offen sc1'))
        if T == 3: a.I('s_add_u32', 's42', 's42', '4096')
    a.I('s_waitcnt', 'vmcnt(0)')
    a.I('s_lshl_b32', 's27', 's48', '6'); a.I('s_add_u32', 's27', 's27', hex(WS_FT))
    publish_last(a, LSYNC+64, 3, 8, 's27', 48)
    st.stamp('N:w2pub')
```

```python
from common import *
import ph1, ph2, ph3, ffn
KNAME = 'sequential_preLN__ssm_conv_s4__dense_activation_mish__prompt_kernel'

W1_THROTTLE = None
W2_THROTTLE = 8
W2_FIRST = 36
def kernel_p(prof=False):
    a = Asm(); st = St(a, prof)
    a.I('s_cmp_ge_u32', 's2', '256'); a.I('s_cbranch_scc1', 'P_END')
    a.I('s_load_dwordx16', S(64,16), S(0,2), '0'); a.I('s_load_dwordx16', S(80,16), S(0,2), '64')
    a.I('v_and_b32', 'v1', '63', 'v0'); a.I('v_lshrrev_b32', 'v2', '6', 'v0')
    a.I('v_readfirstlane_b32', 's3', 'v2')
    a.I('v_lshlrev_b32', 'v3', '2', 'v1'); a.I('v_add_u32', 'v3', str(LSYNC), 'v3'); a.I('v_mov_b32', 'v4', '0')
    a.I('ds_write_b32', 'v3', 'v4')
    if prof: a.I('v_mov_b32', 'v0', '0')
    st.stamp('start')
    a.I('s_and_b32', 's24', 's3', '3')
    a.I('s_and_b32', 's20', 's2', '7'); a.I('s_lshr_b32', 's21', 's2', '3')
    a.I('s_lshr_b32', 's22', 's20', '1'); a.I('s_lshl_b32', 's22', 's22', '2'); a.I('s_and_b32', 's23', 's21', '3'); a.I('s_add_u32', 's22', 's22', 's23')
    a.I('s_and_b32', 's23', 's20', '1'); a.I('s_lshl_b32', 's23', 's23', '3'); a.I('s_lshr_b32', 's25', 's21', '2'); a.I('s_add_u32', 's23', 's23', 's25')
    a.I('s_mul_i32', 's48', 's20', '20'); a.I('s_add_u32', 's48', 's48', 's21')
    a.I('s_mul_i32', 's25', 's20', '12'); a.I('s_add_u32', 's25', 's25', 's21'); a.I('s_sub_u32', 's25', 's25', '20')
    a.I('s_cmp_ge_u32', 's21', '20'); a.I('s_cselect_b32', 's48', 's25', 's48')
    a.I('s_waitcnt', 'lgkmcnt(0)')
    a.I('s_barrier')
    srd(a, 8, P['ws'], WS_SIZE); srd(a, 60, P['dbg'], 256)
    a.I('s_lshr_b32', 's47', 's3', '2')
    vc = VmLog(a); vl = VmLog(a)
    a.I('s_cmp_ge_u32', 's21', '20'); a.I('s_cbranch_scc1', 'NONCONV')
    ph2.kgen_params(a)
    a.I('s_cmp_eq_u32', 's47', '0'); a.I('s_cbranch_scc1', 'KG_C')
    ph3.gather_setup(a); ph3.gather_load(a, 0); ph3.gather_load(a, 1)
    a.I('s_waitcnt', 'vmcnt(2)')
    a.I('s_branch', 'KG_GO')
    a.L('KG_C')
    a.I('s_waitcnt', 'vmcnt(0)')
    a.L('KG_GO')
    st.stamp('K:params')
    ph3.egen(a, st)
    a.I('s_cmp_eq_u32', 's47', '1'); a.I('s_cbranch_scc1', 'L_CONV')
    ph3.c_kfinish(a, st)
    ph1.c_conv_setup(a)
    a.I('s_barrier')
    st.stamp('C:bar1')
    ph1.c_conv(a, st)
    a.I('s_barrier')
    get_nonce(a, 8)
    a.I('s_branch', 'C_FFN')
    a.L('L_CONV')
    a.I('s_waitcnt', 'lgkmcnt(0)')
    st.stamp('K:egen')
    a.I('s_barrier')
    ph2.l_u(a, st)
    a.I('s_barrier')
    ffn.l_w1_issue(a, vl, throttle=W1_THROTTLE)
    st.stamp('L:w1issued')
    lane(a, 1); a.I('v_min_u32', 'v12', '53', 'v1'); a.I('v_lshlrev_b32', 'v12', '6', 'v12')
    a.I('s_mov_b32', 's27', hex(WS_FT))
    poll_flags(a, [12], 's27', 14)
    vl.log = []
    st.stamp('L:tready')
    a.I('s_barrier')
    st.stamp('L:bar2')
    ph2.l_hstore(a, vl)
    vl.wait(['hst'])
    st.stamp('L:hdrained')
    a.I('s_and_b32', 's27', 's2', '15'); a.I('s_lshl_b32', 's27', 's27', '7'); a.I('s_add_u32', 's27', 's27', hex(WS_RC))
    arrive_last(a, LSYNC+64, 24, 4, 's27', 16)
    ffn.l_w1_write(a, None)
    lds_signal(a, HS_W1W, 8)
    st.stamp('L:w1landed')
    a.I('s_branch', 'L_G1B')
    a.L('NONCONV')
    a.I('s_cmp_ge_u32', 's48', '64'); a.I('s_cbranch_scc1', 'NC_CS')
    ph3.stats_task(a, st, lambda: ph3.w2_issue(a))
    ph2.nonconv_ready(a)
    ph3.w2_finish(a, st)
    a.I('s_branch', 'NC_RDY2')
    a.L('NC_CS')
    ph2.colsum_task(a, st)
    ph2.nonconv_ready(a)
    a.L('NC_RDY2')
    a.I('s_barrier')
    st.stamp('N:ready')
    a.I('s_cmp_eq_u32', 's47', '0'); a.I('s_cbranch_scc1', 'C_FFN')
    vl2 = VmLog(a)
    ffn.l_w1_issue(a, vl2)
    ffn.l_w1_write(a, vl2)
    a.I('s_branch', 'L_G1')
    a.L('C_FFN')
    a.I('s_cmp_lg_u32', 's24', '0'); a.I('s_cbranch_scc1', 'C_RDY')
    lane(a, 1); a.I('v_and_b32', 'v8', '15', 'v1'); a.I('v_lshlrev_b32', 'v8', '7', 'v8')
    a.I('s_mov_b32', 's27', hex(WS_RC))
    poll_count(a, 8, 's27', 16, 10)
    lds_signal(a, HS_RDY, 8)
    a.L('C_RDY')
    st.stamp('C:ready')
    ffn.c_gemm1(a, vc, st, 'C_G1DONE')
    a.L('C_G1DONE')
    vc.wait_all()
    st.stamp('C:actdrained')
    a.I('s_lshl_b32', 's37', 's22', '4'); a.I('s_add_u32', 's27', 's37', 's23'); a.I('s_lshl_b32', 's27', 's27', '6'); a.I('s_add_u32', 's27', 's27', hex(WS_FA))
    publish_last(a, LSYNC+96, 24, 4, 's27', 8)
    a.I('s_cmp_lg_u32', 's24', '0'); a.I('s_cbranch_scc1', 'C_ARDY')
    a.I('v_lshlrev_b32', 'v8', '6', 'v6')
    a.I('s_lshl_b32', 's37', 's37', '6'); a.I('s_add_u32', 's37', 's37', hex(WS_FA))
    poll_flags(a, [8], 's37', 10)
    lds_signal(a, HS_ARDY, 8)
    a.L('C_ARDY')
    lds_wait(a, HS_ARDY, 1, 8)
    st.stamp('C:actready')
    ffn.c_common_regs(a)
    nb2 = ffn.c_gemm2(a, vc, st)
    if prof:
        a.I('s_waitcnt', 'vmcnt(0)'); st.stamp('end'); st.dump()
    a.I('s_endpgm')
    a.L('L_G1')
    lds_signal(a, HS_W1W, 8)
    st.stamp('L:w1landed')
    lane(a, 1); a.I('v_min_u32', 'v8', '53', 'v1'); a.I('v_lshlrev_b32', 'v8', '6', 'v8')
    a.I('s_mov_b32', 's27', hex(WS_FT))
    poll_flags(a, [8], 's27', 10)
    a.L('L_G1B')
    ffn.l_w2_setup(a)
    vl.log = []
    lds_wait(a, HS_GO, 4, 8)
    ffn.l_w2_issue(a, vl, 0, 60, throttle=W2_THROTTLE)
    st.stamp('L:w2a2')
    lds_wait(a, HS_G1D, 4, 8)
    ffn.l_w2_write(a, vl, range(0, 35))
    a.I('s_waitcnt', 'lgkmcnt(0)')
    lds_signal(a, HS_W2W, 8)
    ffn.l_w2_issue(a, vl, 60, 68)
    st.stamp('L:w2b')
    ffn.l_gemm2(a, vl, nb2)
    if prof:
        st.stamp('end'); st.dump()
    a.L('P_END')
    a.I('s_endpgm')
    return a, dict(name=KNAME, grid=256, block=512, lds=LDS_TOTAL, vgpr=256, sgpr=102, stamps=st.names)

if __name__ == '__main__':
    import json
    sys.path.insert(0, 'dev')
    out = sys.argv[1]; prof = len(sys.argv) > 2 and sys.argv[2] == 'p'
    for kv in sys.argv[3:]:
        k, v = kv.split('=')
        if k == 'sleep': RC_SLEEP[0] = int(v)
        if k == 'rot': ffn.ROT[0] = bool(int(v))
        if k == 'thr': globals()['W2_THROTTLE'] = int(v)
    a, m = kernel_p(prof)
    n = a.pad_hazards()
    HEADER = open('sequential_preLN__ssm_conv_s4__dense_activation_mish__prompt.s.ref').read().split('; Override launch')[0]
    o = [HEADER.rstrip(), f"; @launch grid=({m['grid']},1,1) block=({m['block']},1,1) lds={m['lds']}", '.amdgcn_target "amdgcn-amd-amdhsa--gfx950"', '.text',
         f".globl {m['name']}", '.p2align 8', f".type {m['name']},@function", f"{m['name']}:", a.text().rstrip(),
         '.section .rodata,"a"', '.p2align 6', f".amdhsa_kernel {m['name']}", f"  .amdhsa_next_free_vgpr {m['vgpr']}", f"  .amdhsa_next_free_sgpr {m['sgpr']}",
         f"  .amdhsa_accum_offset {m['vgpr']}", "  .amdhsa_group_segment_fixed_size 0", "  .amdhsa_kernarg_size 128", "  .amdhsa_user_sgpr_count 2",
         "  .amdhsa_user_sgpr_kernarg_segment_ptr 1", "  .amdhsa_system_sgpr_workgroup_id_x 1", ".end_amdhsa_kernel"]
    open(out, 'w').write('\n'.join(o)+'\n')
    json.dump(m['stamps'], open(out.replace('.s', '.json'), 'w'))
    print('nops inserted', n, 'instrs', len(a.items))
```

```python
import sys; sys.path.insert(0, 'dev')
from asmlib import *
import struct
def f2u(f): return struct.unpack('<I', struct.pack('<f', f))[0]
LOG2E = 0x3fb8aa3b; INV2PI = 0x3e22f983; LN2 = 0x3f317218
WS_STAT = 0x000000
WS_NONCE = 0x008000
WS_FS = 0x010000; WS_FT = 0x01C000
WS_FR = 0x030000; WS_FA = 0x038000
WS_FH = 0xDD0000
WS_RC = 0x00C000
WS_GC = 0x00C800
WS_FG = 0x024000; WS_GO = 0x028000
WS_FP = 0xDD0000
WS_AG = 0x02C000
WS_CS = 0x020000
WS_HT4 = 0x040000
WS_W1F = 0x2C0000
WS_W2F = 0x4F0000
WS_ACT = 0x710000
WS_SIZE = 0xDF0000
GS = 16384
P = dict(x=64, Are=66, Aim=68, Bre=70, Bim=72, Cre=74, Cim=76, logdt=78, D=80, bx=82, w1=84, b1=86, w2=88, out=90, dbg=92, ws=94)
ROW = 544
EREG = 53*ROW
E1O = 21*ROW
KDO = 16640
ZST = 4160
UB = 143360
UOFF = lambda c: UB + c*4608
LSYNC = UB + 4*4608
LDS_TOTAL = 163840
S_NONCE = 49
SPIN_MAX = 200000
RC_SLEEP = [0]
NONCE_LDS = LSYNC + 192

def srd(a, sb, p, size, off=0):
    if off:
        a.I('s_add_u32', S(sb), S(p), hex(off)); a.I('s_addc_u32', S(sb+1), S(p+1), '0')
    else:
        a.I('s_mov_b32', S(sb), S(p)); a.I('s_mov_b32', S(sb+1), S(p+1))
    a.I('s_mov_b32', S(sb+2), hex(size)); a.I('s_mov_b32', S(sb+3), '0x20000')

def cmul(a, d, x, y, t):
    a.I('v_pk_mul_f32', V(t,2), V(x,2), V(y,2), mods='op_sel:[1,1] op_sel_hi:[1,0] neg_lo:[1,0]')
    a.I('v_pk_fma_f32', V(d,2), V(x,2), V(y,2), V(t,2), mods='op_sel:[0,0,0] op_sel_hi:[0,1,1]')

class VmLog:
    def __init__(self, a): self.a = a; self.log = []
    def op(self, tag=None): self.log.append(tag)
    def wait(self, tags):
        tags = set(tags); pos = -1
        for i, t in enumerate(self.log):
            if t in tags: pos = i
        if pos < 0: return
        n = len(self.log) - 1 - pos
        self.a.I('s_waitcnt', f'vmcnt({min(n, 63)})')
    def wait_all(self):
        self.a.I('s_waitcnt', 'vmcnt(0)'); self.log = []

_uid = [0]
def uid(p):
    _uid[0] += 1; return f'{p}_{_uid[0]}'

def get_nonce(a, vt):
    L = uid('NONCE'); E = uid('NONCEX')
    a.I('v_mov_b32', V(vt), '0'); a.I('s_mov_b32', 's101', '0')
    a.L(L)
    a.I('s_add_u32', 's101', 's101', '1'); a.I('s_cmp_gt_u32', 's101', str(SPIN_MAX)); a.I('s_cbranch_scc1', E)
    a.I('buffer_load_dword', V(vt+1), V(vt), S(60,4), '0', mods='offen sc1'); a.I('s_waitcnt', 'vmcnt(0)')
    a.I('v_readfirstlane_b32', S(S_NONCE), V(vt+1)); a.I('s_cmp_eq_u32', S(S_NONCE), '0'); a.I('s_cbranch_scc1', L)
    a.L(E)

def nonce_early_issue(a, vt):
    a.I('v_mov_b32', V(vt), '0')
    a.I('buffer_load_dword', V(vt+1), V(vt), S(60,4), '0', mods='offen sc1')
def get_nonce_keep(a, vt, vearly):
    ok = uid('NOK')
    a.I('v_readfirstlane_b32', S(S_NONCE), V(vearly+1)); a.I('s_cmp_lg_u32', S(S_NONCE), '0'); a.I('s_cbranch_scc1', ok)
    get_nonce(a, vt)
    a.L(ok)
def get_nonce_both(a, vt):
    L = uid('NB'); E = uid('NBX')
    a.I('v_mov_b32', V(vt), '0'); a.I('s_mov_b32', 's101', '0')
    a.L(L)
    a.I('s_add_u32', 's101', 's101', '1'); a.I('s_cmp_gt_u32', 's101', str(SPIN_MAX)); a.I('s_cbranch_scc1', E)
    a.I('buffer_load_dword', V(vt+1), V(vt), S(60,4), '0', mods='offen sc1')
    a.I('buffer_load_dword', V(vt+2), V(vt), S(60,4), '0', mods='offen offset:128 sc1'); a.I('s_waitcnt', 'vmcnt(0)')
    a.I('v_readfirstlane_b32', S(S_NONCE), V(vt+1)); a.I('v_readfirstlane_b32', 's34', V(vt+2))
    a.I('s_cmp_eq_u32', 's34', '0'); a.I('s_cbranch_scc1', L)
    a.L(E)
def get_nonce2(a, vt):
    L = uid('N2'); E = uid('N2X')
    a.I('v_mov_b32', V(vt), '0'); a.I('s_mov_b32', 's101', '0')
    a.L(L)
    a.I('s_add_u32', 's101', 's101', '1'); a.I('s_cmp_gt_u32', 's101', str(SPIN_MAX)); a.I('s_cbranch_scc1', E)
    a.I('buffer_load_dword', V(vt+1), V(vt), S(60,4), '0', mods='offen offset:128 sc1'); a.I('s_waitcnt', 'vmcnt(0)')
    a.I('v_readfirstlane_b32', 's34', V(vt+1)); a.I('s_cmp_eq_u32', 's34', '0'); a.I('s_cbranch_scc1', L)
    a.L(E)

def poll_flags(a, voffs, soff, vt):
    L = uid('POLL'); E = uid('POLLX')
    a.I('s_mov_b32', 's101', '0')
    a.L(L)
    a.I('s_add_u32', 's101', 's101', '1'); a.I('s_cmp_gt_u32', 's101', str(SPIN_MAX)); a.I('s_cbranch_scc1', E)
    for k, vo in enumerate(voffs): a.I('buffer_load_dword', V(vt+k), V(vo), S(8,4), soff, mods='offen sc1')
    a.I('s_waitcnt', 'vmcnt(0)')
    a.I('v_cmp_ne_u32', 'vcc', S(S_NONCE), V(vt))
    for k in range(1, len(voffs)):
        a.I('v_cmp_ne_u32', S(34,2), S(S_NONCE), V(vt+k)); a.I('s_or_b64', 'vcc', 'vcc', S(34,2))
    a.I('s_cbranch_vccnz', L)
    a.L(E)

def publish_last(a, slot_base, myslot_sgpr, nslots, flag_soff, vt):
    skip = uid('PUB')
    a.I('s_lshl_b32', 's34', S(myslot_sgpr), '2'); a.I('s_add_u32', 's34', 's34', str(slot_base))
    a.I('v_mov_b32', V(vt), 's34'); a.I('v_mov_b32', V(vt+1), '1')
    a.I('ds_write_b32', V(vt), V(vt+1))
    a.I('v_mov_b32', V(vt), str(slot_base))
    a.I('s_waitcnt', 'lgkmcnt(0)')
    for k in range(nslots//4): a.I('ds_read_b128', V(vt+2+4*k,4), V(vt), mods=f'offset:{16*k}')
    a.I('s_waitcnt', 'lgkmcnt(0)')
    a.I('v_cmp_ne_u32', 'vcc', '1', V(vt+2))
    for k in range(1, nslots):
        a.I('v_cmp_ne_u32', S(34,2), '1', V(vt+2+k)); a.I('s_or_b64', 'vcc', 'vcc', S(34,2))
    a.I('s_cbranch_vccnz', skip)
    a.I('v_mov_b32', V(vt), '0'); a.I('v_mov_b32', V(vt+1), S(S_NONCE))
    a.I('s_mov_b64', 'exec', '1')
    a.I('buffer_store_dword', V(vt+1), V(vt), S(8,4), flag_soff, mods='offen sc1')
    a.I('s_mov_b64', 'exec', '-1')
    a.L(skip)

def lane(a, d):
    a.I('v_mbcnt_lo_u32_b32', V(d), '-1', '0'); a.I('v_mbcnt_hi_u32_b32', V(d), '-1', V(d))

class St:
    def __init__(self, a, enable): self.a = a; self.enable = enable; self.names = []
    def stamp(self, name):
        if not self.enable: return
        if name in self.names: i = self.names.index(name)
        else: self.names.append(name); i = len(self.names)-1
        a = self.a
        a.I('s_memtime', S(96,2))
        if name == 'start': a.I('s_memrealtime', S(98,2))
        a.I('s_waitcnt', 'lgkmcnt(0)'); a.I('v_writelane_b32', 'v0', 's96', str(i))
        if name == 'start': a.I('v_writelane_b32', 'v0', 's98', '63')
    def dump(self):
        if not self.enable: return
        a = self.a
        a.I('s_add_u32', 's96', S(P['ws']), hex(WS_DBG)); a.I('s_addc_u32', 's97', S(P['ws']+1), '0'); a.I('s_mov_b32', 's98', '0x100000'); a.I('s_mov_b32', 's99', '0x20000')
        lane(a, 254); a.I('v_lshlrev_b32', 'v254', '2', 'v254')
        a.I('s_lshl_b32', 's100', 's2', '3'); a.I('s_add_u32', 's100', 's100', 's3'); a.I('s_lshl_b32', 's100', 's100', '8')
        a.I('buffer_store_dword', 'v0', 'v254', S(96,4), 's100', mods='offen')

def arrive_last(a, slot_base, myslot_sgpr, nslots, ctr_soff, vt):
    skip = uid('ARR')
    a.I('v_mov_b32', V(vt), str(slot_base)); a.I('v_mov_b32', V(vt+1), '1')
    a.I('s_mov_b64', 'exec', '1')
    a.I('ds_add_rtn_u32', V(vt+2), V(vt), V(vt+1))
    a.I('s_waitcnt', 'lgkmcnt(0)')
    a.I('v_readfirstlane_b32', 's34', V(vt+2))
    a.I('s_cmp_lg_u32', 's34', str(nslots-1)); a.I('s_cbranch_scc1', skip)
    a.I('v_mov_b32', V(vt), '0')
    a.I('buffer_atomic_add', V(vt+1), V(vt), S(8,4), ctr_soff, mods='offen sc1')
    a.L(skip)
    a.I('s_mov_b64', 'exec', '-1')

def poll_count(a, voff, soff, target, vt):
    L = uid('PC'); E = uid('PCX')
    a.I('s_mov_b32', 's101', '0')
    a.L(L)
    a.I('s_add_u32', 's101', 's101', '1'); a.I('s_cmp_gt_u32', 's101', str(SPIN_MAX)); a.I('s_cbranch_scc1', E)
    if RC_SLEEP[0]: a.I('s_sleep', str(RC_SLEEP[0]))
    a.I('buffer_load_dword', V(vt), V(voff), S(8,4), soff, mods='offen sc1'); a.I('s_waitcnt', 'vmcnt(0)')
    a.I('v_cmp_ne_u32', 'vcc', str(target), V(vt)); a.I('s_cbranch_vccnz', L)
    a.L(E)

HS_W1W, HS_RDY, HS_G1D, HS_ARDY, HS_W2W, HS_B1I, HS_GO, HS_GC, HS_CS, HS_CSL, HS_PAR, HS_KRDY, HS_HAND = [LSYNC+128+4*i for i in range(13)]
KQ = LSYNC + 256
def lds_signal(a, slot, vt):
    a.I('v_mov_b32', V(vt), str(slot)); a.I('v_mov_b32', V(vt+1), '1')
    a.I('s_mov_b64', 'exec', '1'); a.I('ds_add_u32', V(vt), V(vt+1)); a.I('s_mov_b64', 'exec', '-1')
def lds_wait(a, slot, target, vt):
    L = uid('LW'); E = uid('LWX')
    a.I('v_mov_b32', V(vt), str(slot)); a.I('s_mov_b32', 's101', '0')
    a.L(L)
    a.I('s_add_u32', 's101', 's101', '1'); a.I('s_cmp_gt_u32', 's101', str(SPIN_MAX*20)); a.I('s_cbranch_scc1', E)
    a.I('ds_read_b32', V(vt+1), V(vt)); a.I('s_waitcnt', 'lgkmcnt(0)')
    a.I('v_readfirstlane_b32', 's34', V(vt+1)); a.I('s_cmp_lt_u32', 's34', str(target)); a.I('s_cbranch_scc1', L)
    a.L(E)
def poll_dbg_count(a, soff_imm_sgpr, target, vt):
    L = uid('PD'); E = uid('PDX')
    a.I('v_mov_b32', V(vt), '0'); a.I('s_mov_b32', 's101', '0')
    a.L(L)
    a.I('s_add_u32', 's101', 's101', '1'); a.I('s_cmp_gt_u32', 's101', str(SPIN_MAX)); a.I('s_cbranch_scc1', E)
    a.I('buffer_load_dword', V(vt+1), V(vt), S(60,4), soff_imm_sgpr, mods='offen sc1'); a.I('s_waitcnt', 'vmcnt(0)')
    a.I('v_readfirstlane_b32', 's34', V(vt+1)); a.I('s_cmp_lt_u32', 's34', str(target)); a.I('s_cbranch_scc1', L)
    a.L(E)
def arrive_last_dbg(a, slot_base, nslots, soff_sgpr, vt):
    skip = uid('ARD')
    a.I('v_mov_b32', V(vt), str(slot_base)); a.I('v_mov_b32', V(vt+1), '1')
    a.I('s_mov_b64', 'exec', '1')
    a.I('ds_add_rtn_u32', V(vt+2), V(vt), V(vt+1))
    a.I('s_waitcnt', 'lgkmcnt(0)')
    a.I('v_readfirstlane_b32', 's34', V(vt+2))
    a.I('s_cmp_lg_u32', 's34', str(nslots-1)); a.I('s_cbranch_scc1', skip)
    a.I('v_mov_b32', V(vt), '0')
    a.I('buffer_atomic_add', V(vt+1), V(vt), S(60,4), soff_sgpr, mods='offen sc1')
    a.L(skip)
    a.I('s_mov_b64', 'exec', '-1')
```

```python
from common import *

ROT=[False]
BM=['offen sc1']
SLOWG=[]
OUTM=['']
STAG=[0]
STEPST=[False]
GO_STEP=[1]
LPOS=[1, 4]
DB1=[8]
DB2=[5]
class GemmC:
    def __init__(self, a, vm, NT, own, KSPLIT, RK, KSB, HS, TS, DB, s_boff, ACC, WB, BB, VWL, s_tmp, bmods, SKo=None, rot=None, dyn=None):
        self.__dict__.update(locals()); self.bi = 0; self.NB = DB+1; self.slow = []
    def breg(self, i): return self.BB + 8*(i % self.NB)
    def issue_b(self, upto, part=None):
        a = self.a
        while self.bi < min(upto, self.own):
            i = self.bi; r = self.breg(i)
            if part == 1:
                a.I('buffer_load_dwordx4', V(r+4,4), 'v5', S(8,4), S(self.s_tmp), mods=self.bmods); self.vm.op(('B', id(self), i))
                self.bi += 1
                continue
            if self.dyn is not None:
                self.dyn_need(i)
                a.I('v_readlane_b32', S(self.s_tmp), V(self.dyn), str(i))
                a.I('s_lshl_b32', S(self.s_tmp), S(self.s_tmp), '17'); a.I('s_add_u32', S(self.s_tmp), S(self.s_tmp), S(self.s_boff))
            elif self.rot is None:
                a.I('s_add_u32', S(self.s_tmp), S(self.s_boff), str(i*self.KSPLIT*8*GS))
            else:
                a.I('s_add_u32', S(self.s_tmp), S(self.rot), str(i)); a.I('s_sub_u32', 's35', S(self.s_tmp), str(self.own))
                a.I('s_cmp_ge_u32', S(self.s_tmp), str(self.own)); a.I('s_cselect_b32', S(self.s_tmp), 's35', S(self.s_tmp))
                a.I('s_mul_i32', S(self.s_tmp), S(self.s_tmp), str(self.KSPLIT*8*GS)); a.I('s_add_u32', S(self.s_tmp), S(self.s_tmp), S(self.s_boff))
            a.I('buffer_load_dwordx4', V(r,4), 'v4', S(8,4), S(self.s_tmp), mods=self.bmods); self.vm.op(('B', id(self), i))
            if part == 0: return
            a.I('buffer_load_dwordx4', V(r+4,4), 'v5', S(8,4), S(self.s_tmp), mods=self.bmods); self.vm.op(('B', id(self), i))
            self.bi += 1
    def dyn_need(self, i):
        a = self.a
        back, slow = uid('DQB'), uid('DQS')
        a.I('s_cmp_le_u32', 's31', str(i)); a.I('s_cbranch_scc1', slow)
        a.L(back)
        self.slow.append((slow, back, i))
    def emit_slow(self):
        a = self.a
        for slow, back, i in self.slow:
            L = uid('DQL')
            a.L(slow)
            a.I('s_mov_b32', 's101', '0')
            a.L(L)
            a.I('s_add_u32', 's101', 's101', '1'); a.I('s_cmp_gt_u32', 's101', str(SPIN_MAX*20)); a.I('s_cbranch_scc1', back)
            a.I('ds_read_b32', V(self.dyn), V(self.dyn+1)); a.I('s_waitcnt', 'lgkmcnt(0)')
            a.I('v_readlane_b32', 's31', V(self.dyn), '20'); a.I('s_cmp_gt_u32', 's31', str(i)); a.I('s_cbranch_scc0', L)
            a.I('s_branch', back)
        self.slow = []
    def wbase(self, i):
        a = self.a
        a.I('v_readlane_b32', 's35', V(self.dyn), str(i)); a.I('s_mul_i32', 's35', 's35', str(self.KSB))
        a.I('v_add_u32', V(self.dyn+2+(i & 1)), 's35', V(self.VWL[0]))
    def wread(self, Wn, i, T2):
        if self.dyn is not None:
            T, h = divmod(T2, 2)
            if T2 == 0: self.wbase(i)
            self.a.I('ds_read_b64_tr_b16', V(Wn+4*T+2*h,2), V(self.dyn+2+(i & 1)), mods=f'offset:{h*self.HS + T*self.TS}')
            return
        if self.HS is None:
            off = ((self.KSPLIT*i) % self.RK)*self.KSB + T2*1024
            k, o = divmod(off, 65536)
            self.a.I('ds_read_b128', V(Wn+4*T2,4), V(self.VWL[k]), mods=f'offset:{o}')
            return
        T, h = divmod(T2, 2)
        off = ((self.KSPLIT*i) % self.RK)*self.KSB + h*self.HS + T*self.TS
        k, o = divmod(off, 65536)
        self.a.I('ds_read_b64_tr_b16', V(Wn+4*T+2*h,2), V(self.VWL[k]), mods=f'offset:{o}')
    def run(self, extra=None, late=None, st=None, tag=''):
        a, vm, NT = self.a, self.vm, self.NT
        nwb = len(self.WB); pre = nwb-1
        NR = NT if self.HS is None else 2*NT
        nbar = 0
        visible = 0
        def ensure(i):
            nonlocal visible, nbar
            if self.SKo is None: return False
            s = i//self.SKo
            did = False
            while visible < s:
                visible += 1
                a.I('s_waitcnt', 'lgkmcnt(0)'); a.I('s_barrier'); nbar += 1; did = True
            return did
        def swap(i):
            r = self.breg(i)
            a.I('v_swap_b32', V(r+2), V(r+4)); a.I('v_swap_b32', V(r+3), V(r+5))
        for p in range(pre):
            ensure(p)
            for T in range(NR): self.wread(self.WB[p % nwb], p, T)
        vm.wait([('B', id(self), 0)]); swap(0)
        if STAG[0]:
            for k in (1, 2, 3):
                sk = uid('STG')
                a.I('s_cmp_lt_u32', 's24', str(k)); a.I('s_cbranch_scc1', sk); a.I('s_sleep', str(STAG[0])); a.L(sk)
        if st: st.stamp(tag+'b0')
        for i in range(self.own):
            nxt = i + pre; vn = nxt < self.own
            did = ensure(nxt) if vn else False
            if not did:
                n_out = NR*min(pre-1, self.own-1-i)
                a.I('s_waitcnt', f'lgkmcnt({min(15, n_out)})')
            if late: late(i)
            r = self.breg(i)
            Wc = self.WB[i % nwb]; Wn = self.WB[nxt % nwb]
            ins = []
            for T in range(NT):
                for lt in range(2):
                    ins.append(('v_mfma_f32_16x16x32_bf16', V(self.ACC+4*(2*T+lt),4), V(Wc+4*T,4), V(r+4*lt,4), V(self.ACC+4*(2*T+lt),4)))
            if extra: ins += extra(i, [r, r+4])
            rd = 0
            mid = len(ins)//2
            for idx, m in enumerate(ins):
                a.I(*m)
                if vn and rd < NR: self.wread(Wn, nxt, rd); rd += 1
                if idx == LPOS[0]: self.issue_b(i+1+self.DB, part=0)
                if idx == LPOS[1]: self.issue_b(i+1+self.DB, part=1)
                if idx == mid and i+1 < self.own:
                    vm.wait([('B', id(self), i+1)]); swap(i+1)
            while vn and rd < NR: self.wread(Wn, nxt, rd); rd += 1
            if st and i == self.own//2: st.stamp(tag+'mid')
            if st and STEPST[0] and i % 2 == 1: st.stamp(tag+f's{i}')
        return nbar

CSL = UB
def l_csb1(a):
    lds_wait(a, HS_RDY, 1, 8)
    lane(a, 1)
    srd(a, 16, P['b1'], 3456)
    a.I('s_mul_i32', 's34', 's23', '448'); a.I('s_add_u32', 's34', 's34', hex(WS_CS))
    a.I('v_lshlrev_b32', 'v8', '4', 'v1')
    a.I('s_mul_i32', 's35', 's23', '224'); a.I('v_lshlrev_b32', 'v9', '2', 'v1'); a.I('v_add_u32', 'v9', 's35', 'v9')
    a.I('buffer_load_dwordx4', V(16,4), 'v8', S(8,4), 's34', mods='offen sc1')
    a.I('buffer_load_dword', 'v20', 'v9', S(16,4), '0', mods='offen')
    a.I('v_add_u32', 'v8', str(CSL), 'v8'); a.I('v_lshlrev_b32', 'v9', '2', 'v1'); a.I('v_add_u32', 'v9', str(CSL+448), 'v9')
    a.I('s_waitcnt', 'vmcnt(0)')
    a.I('s_mov_b32', 'exec_lo', '0x0fffffff'); a.I('s_mov_b32', 'exec_hi', '0')
    a.I('ds_write_b128', 'v8', V(16,4))
    a.I('s_mov_b32', 'exec_lo', '-1'); a.I('s_mov_b32', 'exec_hi', '0x00ffffff')
    a.I('ds_write_b32', 'v9', 'v20')
    a.I('s_mov_b64', 'exec', '-1')
    a.I('s_waitcnt', 'lgkmcnt(0)')
    lds_signal(a, HS_CSL, 8)

def haggregate(a, st, vb):
    v = lambda k: V(vb+k)
    lane(a, vb)
    a.I('v_lshlrev_b32', v(1), '7', v(0)); a.I('v_add_u32', v(2), '8192', v(1)); a.I('v_and_b32', v(3), '31', v(0)); a.I('v_lshlrev_b32', v(3), '7', v(3)); a.I('v_add_u32', v(3), '16384', v(3))
    a.I('s_mov_b32', 's38', '0'); a.I('s_mov_b32', 's27', hex(WS_FR)); a.I('s_mov_b32', 's101', '0')
    a.I('s_lshl_b32', 's39', 's20', '7'); a.I('s_add_u32', 's39', 's39', hex(WS_AG))
    a.I('v_mov_b32', v(7), '0'); a.I('v_mov_b32', v(9), S(S_NONCE))
    L, E, N_ = uid('AG'), uid('AGX'), uid('AGN')
    a.L(L)
    a.I('s_add_u32', 's101', 's101', '1'); a.I('s_cmp_gt_u32', 's101', str(SPIN_MAX)); a.I('s_cbranch_scc1', E)
    a.I('buffer_load_dword', v(4), v(1), S(8,4), 's27', mods='offen sc1'); a.I('buffer_load_dword', v(5), v(2), S(8,4), 's27', mods='offen sc1'); a.I('buffer_load_dword', v(6), v(3), S(8,4), 's27', mods='offen sc1')
    a.I('s_waitcnt', 'vmcnt(0)')
    a.I('v_cmp_eq_u32', S(40,2), S(S_NONCE), v(4)); a.I('v_cmp_eq_u32', S(42,2), S(S_NONCE), v(5)); a.I('v_cmp_eq_u32', S(44,2), S(S_NONCE), v(6))
    a.I('s_mov_b32', 's34', '0')
    for g in range(20):
        w_, b_ = 40 + g//4, (g % 4)*8
        a.I('s_bfe_u32', 's35', S(w_), hex((8 << 16) | b_)); a.I('s_cmp_eq_u32', 's35', '0xff'); a.I('s_cselect_b32', 's35', hex(1 << g), '0'); a.I('s_or_b32', 's34', 's34', 's35')
    a.I('s_cmp_eq_u32', 's34', 's38'); a.I('s_cbranch_scc1', N_)
    a.I('s_mov_b32', 's38', 's34'); a.I('v_mov_b32', v(8), 's34')
    a.I('s_mov_b64', 'exec', '1')
    a.I('buffer_store_dwordx2', V(vb+8,2), v(7), S(8,4), 's39', mods='offen sc1')
    a.I('s_mov_b64', 'exec', '-1')
    a.L(N_)
    a.I('s_cmp_lg_u32', 's38', '0xfffff'); a.I('s_cbranch_scc1', L)
    a.L(E)
    st.stamp('L:aggdone')

def hpoller(a, st, phase, exit_count, vb):
    v = lambda k: V(vb+k)
    lane(a, vb)
    a.I('v_lshlrev_b32', v(1), '7', v(0)); a.I('v_add_u32', v(2), '8192', v(1)); a.I('v_and_b32', v(3), '31', v(0)); a.I('v_lshlrev_b32', v(3), '7', v(3)); a.I('v_add_u32', v(3), '16384', v(3))
    a.I('v_mov_b32', v(7), str(KQ)); a.I('v_mov_b32', v(8), str(KQ+80))
    if phase == 1:
        a.I('s_mov_b32', 's38', '0'); a.I('s_mov_b32', 's39', '0')
    else:
        lds_wait(a, HS_HAND, 1, vb+9)
        a.I('ds_read_b64', V(vb+10,2), v(8))
        a.I('s_waitcnt', 'lgkmcnt(0)'); a.I('v_readfirstlane_b32', 's39', v(10)); a.I('v_readfirstlane_b32', 's38', v(11))
    a.I('s_lshr_b32', 's27', 's22', '2'); a.I('s_mul_i32', 's27', 's27', str(160*128)); a.I('s_add_u32', 's27', 's27', hex(WS_FH)); a.I('s_mov_b32', 's101', '0')
    L, E, A_, N_ = uid('HP'), uid('HPX'), uid('HPA'), uid('HPN')
    a.I('s_cmp_ge_u32', 's39', str(exit_count)); a.I('s_cbranch_scc1', E)
    a.L(L)
    a.I('s_add_u32', 's101', 's101', '1'); a.I('s_cmp_gt_u32', 's101', str(SPIN_MAX)); a.I('s_cbranch_scc1', E)
    a.I('buffer_load_dword', v(4), v(1), S(8,4), 's27', mods='offen sc1'); a.I('buffer_load_dword', v(5), v(2), S(8,4), 's27', mods='offen sc1'); a.I('buffer_load_dword', v(6), v(3), S(8,4), 's27', mods='offen sc1')
    a.I('s_waitcnt', 'vmcnt(0)')
    a.I('v_cmp_eq_u32', S(40,2), S(S_NONCE), v(4)); a.I('v_cmp_eq_u32', S(42,2), S(S_NONCE), v(5)); a.I('v_cmp_eq_u32', S(44,2), S(S_NONCE), v(6))
    a.I('s_mov_b32', 's34', '0')
    for wi in range(5):
        a.I('s_lshr_b32', 's35', S(40+wi), '4'); a.I('s_and_b32', 's35', 's35', S(40+wi))
        a.I('s_lshr_b32', 's36', 's35', '2'); a.I('s_and_b32', 's35', 's35', 's36')
        a.I('s_lshr_b32', 's36', 's35', '1'); a.I('s_and_b32', 's35', 's35', 's36')
        a.I('s_and_b32', 's35', 's35', '0x01010101')
        a.I('s_mul_i32', 's35', 's35', '0x10204081' if False else '0x01020408'); a.I('s_lshr_b32', 's35', 's35', '24'); a.I('s_and_b32', 's35', 's35', '0xf')
        a.I('s_lshl_b32', 's35', 's35', str(4*wi)); a.I('s_or_b32', 's34', 's34', 's35')
    a.I('s_andn2_b32', 's34', 's34', 's38')
    a.I('s_cmp_eq_u32', 's34', '0'); a.I('s_cbranch_scc1', N_)
    a.I('s_or_b32', 's38', 's38', 's34')
    a.L(A_)
    a.I('s_ff1_i32_b32', 's35', 's34'); a.I('s_bitset0_b32', 's34', 's35')
    a.I('v_mov_b32', v(9), 's35'); a.I('s_lshl_b32', 's36', 's39', '2'); a.I('v_add_u32', v(10), 's36', v(7))
    a.I('ds_write_b32', v(10), v(9))
    a.I('s_add_u32', 's39', 's39', '1')
    a.I('s_cmp_lg_u32', 's34', '0'); a.I('s_cbranch_scc1', A_)
    a.I('v_mov_b32', v(9), 's39'); a.I('ds_write_b32', v(8), v(9))
    a.L(N_)
    a.I('s_cmp_lt_u32', 's39', str(exit_count)); a.I('s_cbranch_scc1', L)
    a.L(E)
    if phase == 1:
        a.I('v_mov_b32', v(9), 's38'); a.I('ds_write_b32', v(8), v(9), mods='offset:4'); a.I('s_waitcnt', 'lgkmcnt(0)')
        lds_signal(a, HS_HAND, vb+9)
        st.stamp('C:h8')
    else:
        st.stamp('L:hall')
        a.I('v_and_b32', v(2), '31', v(0)); a.I('v_lshlrev_b32', v(2), '7', v(2)); a.I('v_add_u32', v(2), '8192', v(2))
        a.I('s_mov_b32', 's27', hex(WS_FR + 160*128))
        poll_flags(a, [vb+1, vb+2], 's27', vb+4)
        lds_signal(a, HS_RDY, vb+9)

def c_common_regs(a):
    lane(a, 1)
    a.I('v_lshlrev_b32', 'v3', '4', 'v1'); a.I('v_lshrrev_b32', 'v7', '4', 'v1'); a.I('v_and_b32', 'v6', '15', 'v1')
    a.I('v_lshlrev_b32', 'v4', '14', 'v7'); a.I('v_lshl_add_u32', 'v4', 'v6', '4', 'v4'); a.I('v_add_u32', 'v5', '0x10000', 'v4')

def w_addr(a, rowb, colb, extra_sgpr=None):
    a.I('v_lshrrev_b32', 'v3', '2', 'v6'); a.I('v_lshl_add_u32', 'v3', 'v7', '2', 'v3'); a.I('v_mul_u32_u24', 'v3', str(rowb), 'v3')
    a.I('v_and_b32', 'v2', '3', 'v6'); a.I('v_mul_u32_u24', 'v2', str(colb), 'v2'); a.I('v_add_u32', 'v3', 'v3', 'v2')
    if extra_sgpr is not None: a.I('v_add_u32', 'v3', S(extra_sgpr), 'v3')
    a.I('v_add_u32', 'v2', '0x10000', 'v3'); a.I('v_add_u32', 'v1', '0x20000', 'v3')

def c_gemm1(a, vm, st, done_label, DB=None):
    DB = DB1[0]
    ACC, WB, SUM, GRAM, ONES, BB, CSR, B1R = 8, (64, 92, 120), 148, 156, 164, 168, 120, 240
    assert BB + 8*(DB+1) <= 252
    c_common_regs(a)
    w_addr(a, 224, 8)
    a.I('s_lshl_b32', 's30', 's22', '10'); a.I('s_lshl_b32', 's31', 's24', '8'); a.I('s_add_u32', 's30', 's30', 's31')
    a.I('s_add_u32', 's26', 's30', hex(WS_HT4))
    a.I('s_mul_i32', 's25', 's23', '224')
    for k in range(56): a.I('v_mov_b32', V(ACC+k), '0')
    for k in range(16): a.I('v_mov_b32', V(SUM+k), '0')
    for k in range(4): a.I('v_mov_b32', V(ONES+k), '0x3f803f80')
    srd(a, 12, P['b1'], 3456)
    g = GemmC(a, vm, 7, 20, 1, 20, 7168, 3584, 32, DB, 26, ACC, WB, BB, [3, 2, 1], 33, BM[0], dyn=252)
    a.I('s_mov_b32', 's31', '0'); lane(a, 253); a.I('v_min_u32', 'v253', '20', 'v253'); a.I('v_lshlrev_b32', 'v253', '2', 'v253'); a.I('v_add_u32', 'v253', str(KQ), 'v253')
    g.issue_b(DB)
    lds_wait(a, HS_W1W, 4, 1)
    st.stamp('C:bar3')
    def extra(i, b):
        r = []
        for lt in range(2):
            r.append(('v_mfma_f32_16x16x32_bf16', V(SUM+4*lt,4), V(ONES,4), V(b[lt],4), V(SUM+4*lt,4)))
            r.append(('v_mfma_f32_16x16x32_bf16', V(GRAM+4*lt,4), V(b[lt],4), V(b[lt],4), V(GRAM+4*lt,4)))
        return r
    def late(i):
        if i == GO_STEP[0]: lds_signal(a, HS_GO, 1)
    g.run(extra=extra, late=late, st=st, tag='C:g1')
    SLOWG.append(g)
    a.I('s_waitcnt', 'lgkmcnt(0)')
    lds_signal(a, HS_G1D, WB[0])
    st.stamp('C:loop1end')
    TMP = BB+64+12
    a.I('v_and_b32', V(WB[1]+1), '3', 'v6'); a.I('v_lshrrev_b32', V(WB[1]+2), '2', 'v6')
    RS, MR = WB[0], WB[0]+4
    Tm = WB[1]
    for lt in range(2):
        gg = GRAM+4*lt; d = Tm+4+lt
        a.I('v_mov_b32', V(d), V(gg))
        for r in (1, 2, 3):
            a.I('v_cmp_eq_u32', 'vcc', str(r), V(Tm+1)); a.I('v_cndmask_b32', V(d), V(d), V(gg+r), 'vcc')
        a.I('v_cmp_eq_u32', 'vcc', V(Tm+2), 'v7'); a.I('v_cndmask_b32', V(d), '0', V(d), 'vcc')
    for sw in ('v_permlane16_swap_b32', 'v_permlane32_swap_b32'):
        for lt in range(2): a.I('v_mov_b32', V(Tm+6+lt), V(Tm+4+lt))
        for lt in range(2): a.I(sw, V(Tm+4+lt), V(Tm+6+lt))
        for lt in range(2): a.I('v_add_f32', V(Tm+4+lt), V(Tm+4+lt), V(Tm+6+lt))
    for lt in range(2):
        m, qv = SUM+4*lt, Tm+4+lt
        a.I('v_mul_f32', V(m), '0x3acccccd', V(m)); a.I('v_mul_f32', V(qv), '0x3acccccd', V(qv))
        a.I('v_fma_f32', V(qv), '-'+V(m), V(m), V(qv)); a.I('v_add_f32', V(qv), '0x3727c5ac', V(qv)); a.I('v_rsq_f32', V(qv), V(qv))
        a.I('v_mul_f32', V(RS+2*lt), hex(LOG2E), V(qv)); a.I('v_mul_f32', V(MR+2*lt), V(m), V(RS+2*lt))
    a.I('s_add_u32', 's42', 's30', hex(WS_ACT)); a.I('s_mul_i32', 's43', 's23', '7')
    lds_wait(a, HS_CSL, 1, Tm)
    a.I('v_lshlrev_b32', V(Tm+8), '4', 'v7'); a.I('v_add_u32', V(Tm+8), str(CSL), V(Tm+8))
    a.I('v_lshlrev_b32', V(Tm+9), '3', 'v7'); a.I('v_add_u32', V(Tm+9), str(CSL+448), V(Tm+9))
    for T in range(7):
        a.I('ds_read_b128', V(CSR+4*T,4), V(Tm+8), mods=f'offset:{64*T}'); a.I('ds_read_b64', V(B1R+2*T,2), V(Tm+9), mods=f'offset:{32*T}')
    a.I('s_waitcnt', 'lgkmcnt(0)')
    work = BB
    L2P, LNP, B1, X = work, work+2, work+4, work+8
    a.I('s_mov_b32', 's38', hex(LOG2E)); a.I('s_mov_b32', 's39', hex(LOG2E))
    a.I('s_mov_b32', 's40', hex(f2u(-2.0))); a.I('s_mov_b32', 's41', hex(f2u(-2.0)))
    twoL = hex(f2u(2*1.4426950408889634))
    a.I('v_mov_b32', V(L2P), twoL); a.I('v_mov_b32', V(L2P+1), twoL); a.I('v_mov_b32', V(LNP), hex(LN2)); a.I('v_mov_b32', V(LNP+1), hex(LN2))
    for T in range(7):
        a.I('s_add_u32', 's36', 's43', str(T))
        a.I('s_cmp_ge_u32', 's36', '108'); a.I('s_cbranch_scc1', done_label)
        a.I('s_lshl_b32', 's36', 's36', '16'); a.I('s_add_u32', 's36', 's36', 's42')
        CS = CSR+4*T; b = B1R+2*T
        a.I('v_lshlrev_b32', V(B1), '16', V(b)); a.I('v_and_b32', V(B1+1), '0xffff0000', V(b))
        a.I('v_lshlrev_b32', V(B1+2), '16', V(b+1)); a.I('v_and_b32', V(B1+3), '0xffff0000', V(b+1))
        a.I('v_pk_mul_f32', V(B1,2), V(B1,2), S(38,2)); a.I('v_pk_mul_f32', V(B1+2,2), V(B1+2,2), S(38,2))
        base = X + 32*(T & 1)
        xs = [base, base+12]; O = base+24
        for lt in range(2):
            x = xs[lt]; ac = ACC+4*(2*T+lt)
            for p in range(2): a.I('v_pk_fma_f32', V(x+2*p,2), V(CS+2*p,2), V(MR+2*lt,2), V(B1+2*p,2), mods='op_sel_hi:[1,0,1] neg_lo:[0,1,0] neg_hi:[0,1,0]')
            for p in range(2): a.I('v_pk_fma_f32', V(x+2*p,2), V(ac+2*p,2), V(RS+2*lt,2), V(x+2*p,2), mods='op_sel_hi:[1,0,1]')
        for lt in range(2):
            for r in range(4): a.I('v_exp_f32', V(xs[lt]+4+r), V(xs[lt]+r))
        for lt in range(2):
            x = xs[lt]
            for p in range(2): a.I('v_pk_fma_f32', V(x+8+2*p,2), V(x+4+2*p,2), S(38,2), V(L2P,2))
            for p in range(2): a.I('v_pk_fma_f32', V(x+8+2*p,2), V(x+4+2*p,2), V(x+8+2*p,2), V(L2P,2))
        for lt in range(2):
            for r in range(4): a.I('v_rcp_f32', V(xs[lt]+8+r), V(xs[lt]+8+r))
        for lt in range(2):
            x = xs[lt]
            for p in range(2): a.I('v_pk_fma_f32', V(x+8+2*p,2), V(x+8+2*p,2), S(40,2), V(LNP,2))
            for p in range(2): a.I('v_pk_mul_f32', V(x+2*p,2), V(x+2*p,2), V(x+8+2*p,2))
            a.I('v_cvt_pk_bf16_f32', V(O+2*lt), V(x), V(x+1)); a.I('v_cvt_pk_bf16_f32', V(O+2*lt+1), V(x+2), V(x+3))
        a.I('buffer_store_dwordx4', V(O,4), 'v4', S(8,4), 's36', mods='offen sc1'); vm.op('st')

def g2_params(a):
    a.I('s_lshr_b32', 's50', 's23', '3'); a.I('s_lshl_b32', 's51', 's22', '1'); a.I('s_add_u32', 's50', 's50', 's51')
    a.I('s_and_b32', 's51', 's23', '7')
    a.I('s_mul_i32', 's45', 's51', '27'); a.I('s_lshr_b32', 's45', 's45', '3')
    if not ROT[0]: a.I('s_mov_b32', 's45', '0')
    a.I('s_and_b32', 's52', 's24', '1'); a.I('s_lshr_b32', 's53', 's24', '1')

def c_gemm2(a, vm, st, DB=None):
    DB = DB2[0]
    ACC, WB, BB, RES, TMP = 8, (48, 68, 88), 108, 228, 240
    g2_params(a)
    a.I('s_lshl_b32', 's55', 's50', '6'); a.I('s_lshl_b32', 's56', 's52', '5'); a.I('s_add_u32', 's55', 's55', 's56')
    a.I('s_lshl_b32', 's56', 's55', '3'); a.I('s_lshl_b32', 's57', 's53', '17'); a.I('s_add_u32', 's56', 's56', 's57'); a.I('s_add_u32', 's56', 's56', hex(WS_ACT))
    g = GemmC(a, vm, 5, 27, 2, 24, 5120, None, None, DB, 56, ACC, WB, BB, [3, 2, 1], 33, BM[0], SKo=6, rot=45)
    g.issue_b(DB)
    a.I('s_mul_i32', 's57', 's53', '5120')
    a.I('v_add_u32', 'v3', 's57', 'v3'); a.I('v_add_u32', 'v2', '0x10000', 'v3'); a.I('v_add_u32', 'v1', '0x20000', 'v3')
    for k in range(40): a.I('v_mov_b32', V(ACC+k), '0')
    lds_wait(a, HS_W2W, 4, TMP)
    st.stamp('C:bar5')
    def late(i):
        if i != 20: return
        a.I('v_mul_u32_u24', V(TMP), str(5*GS), 'v7'); a.I('v_lshl_add_u32', V(TMP), 'v6', '4', V(TMP))
        a.I('s_add_u32', 's58', 's55', 's53'); a.I('s_lshl_b32', 's58', 's58', '3'); a.I('s_mul_i32', 's59', 's51', str(20*GS)); a.I('s_add_u32', 's58', 's58', 's59'); a.I('s_add_u32', 's58', 's58', hex(WS_HT4))
        for T in range(5):
            a.I('buffer_load_dwordx2', V(RES+2*T,2), V(TMP), S(8,4), 's58', mods='offen sc1'); vm.op('res')
            if T < 4: a.I('s_add_u32', 's58', 's58', str(GS))
    nb = g.run(late=late, st=st, tag='C:g2')
    st.stamp('C:loop2end')
    a.I('s_waitcnt', 'lgkmcnt(0)'); a.I('s_barrier')
    lane(a, 3); a.I('v_lshlrev_b32', 'v3', '4', 'v3')
    a.I('s_mul_i32', 's57', 's24', '5120'); a.I('v_add_u32', V(TMP+1), 's57', 'v3')
    a.I('s_xor_b32', 's59', 's24', '2'); a.I('s_mul_i32', 's59', 's59', '5120'); a.I('v_add_u32', V(TMP+2), 's59', 'v3')
    K = WB[0]
    l0, l1 = uid('KH0'), uid('RED')
    a.I('s_cmp_eq_u32', 's53', '0'); a.I('s_cbranch_scc1', l0)
    for T in range(5):
        a.I('ds_write_b128', V(TMP+1), V(ACC+8*T,4), mods=f'offset:{1024*T}')
        for r in range(4): a.I('v_mov_b32', V(K+4*T+r), V(ACC+8*T+4+r))
    a.I('s_branch', l1)
    a.L(l0)
    for T in range(5):
        a.I('ds_write_b128', V(TMP+1), V(ACC+8*T+4,4), mods=f'offset:{1024*T}')
        for r in range(4): a.I('v_mov_b32', V(K+4*T+r), V(ACC+8*T+r))
    a.L(l1)
    a.I('s_waitcnt', 'lgkmcnt(0)'); a.I('s_barrier')
    R = WB[1]
    for T in range(5): a.I('ds_read_b128', V(R+4*T,4), V(TMP+2), mods=f'offset:{1024*T}')
    srd(a, 16, P['out'], 2048*1280)
    a.I('v_mul_u32_u24', V(TMP), '2560', 'v6'); a.I('v_mul_u32_u24', V(TMP+3), '40', 'v7'); a.I('v_add_u32', V(TMP), V(TMP), V(TMP+3))
    a.I('s_add_u32', 's58', 's55', 's53'); a.I('s_mul_i32', 's58', 's58', '1280'); a.I('s_mul_i32', 's59', 's51', '160'); a.I('s_add_u32', 's58', 's58', 's59')
    vm.wait(['res'])
    X = WB[2]
    for T in range(5):
        a.I('s_waitcnt', f'lgkmcnt({4-T})')
        r0, r1 = RES+2*T, RES+2*T+1
        a.I('v_lshlrev_b32', V(X+4*T), '16', V(r0)); a.I('v_and_b32', V(X+4*T+1), '0xffff0000', V(r0))
        a.I('v_lshlrev_b32', V(X+4*T+2), '16', V(r1)); a.I('v_and_b32', V(X+4*T+3), '0xffff0000', V(r1))
        for r in range(4):
            a.I('v_add_f32', V(K+4*T+r), V(K+4*T+r), V(R+4*T+r)); a.I('v_add_f32', V(X+4*T+r), V(X+4*T+r), V(K+4*T+r))
        a.I('v_cvt_pk_bf16_f32', V(r0), V(X+4*T), V(X+4*T+1)); a.I('v_cvt_pk_bf16_f32', V(r1), V(X+4*T+2), V(X+4*T+3))
        a.I('buffer_store_dwordx2', V(r0,2), V(TMP), S(16,4), 's58', mods=f'offen offset:{8*T}'+OUTM[0]); vm.op('out')
    return nb + 2

W1R = 96
def l_w1_issue(a, vm, throttle=None):
    lane(a, 1)
    a.I('v_mul_u32_u24', 'v2', '4682', 'v1'); a.I('v_lshrrev_b32', 'v2', '16', 'v2')
    a.I('v_mul_u32_u24', 'v3', '14', 'v2'); a.I('v_sub_u32', 'v3', 'v1', 'v3'); a.I('v_lshlrev_b32', 'v3', '4', 'v3')
    a.I('s_mul_i32', 's25', 's23', '224'); a.I('v_add_u32', 'v3', 's25', 'v3'); a.I('v_min_u32', 'v3', '3440', 'v3')
    a.I('v_mul_u32_u24', 'v2', '3456', 'v2'); a.I('v_add_u32', 'v2', 'v2', 'v3')
    srd(a, 12, P['w1'], 640*3456)
    a.I('s_mul_i32', 's26', 's24', '13824')
    a.I('s_mov_b32', 'exec_lo', '-1'); a.I('s_mov_b32', 'exec_hi', '0x00ffffff')
    for i in range(40):
        a.I('s_add_u32', 's27', 's26', str(i*4*13824))
        a.I('buffer_load_dwordx4', V(W1R+4*i,4), 'v2', S(12,4), 's27', mods='offen'); vm.op(('w1', i))
        if throttle and i >= throttle: vm.wait([('w1', i-throttle)])
    a.I('s_mov_b64', 'exec', '-1')
def l_w1_write(a, vm, lo=0, hi=40):
    lane(a, 1)
    a.I('s_mul_i32', 's26', 's24', '896'); a.I('v_lshlrev_b32', 'v3', '4', 'v1'); a.I('v_add_u32', 'v3', 's26', 'v3')
    a.I('v_add_u32', 'v4', '0x10000', 'v3'); a.I('v_add_u32', 'v5', '0x20000', 'v3')
    a.I('s_mov_b32', 'exec_lo', '-1'); a.I('s_mov_b32', 'exec_hi', '0x00ffffff')
    for i in range(lo, hi):
        if vm: vm.wait([('w1', i)])
        k, o = divmod(i*3584, 65536)
        a.I('ds_write_b128', V(3+k), V(W1R+4*i,4), mods=f'offset:{o}')
    a.I('s_mov_b64', 'exec', '-1')
    a.I('s_waitcnt', 'lgkmcnt(0)')

W2R = 16
def w2reg(n): return W2R + 4*(n % 60)
def l_w2_setup(a, keep_w1=False):
    g2_params(a)
    lane(a, 1); a.I('v_lshlrev_b32', 'v6', '4', 'v1')
    a.I('s_lshl_b32', 's27', 's24', '10')
    a.I('s_mul_i32', 's46', 's51', str(270*1024)); a.I('s_add_u32', 's46', 's46', hex(WS_W2F))
    a.I('s_mul_i32', 's44', 's45', '10240'); a.I('s_add_u32', 's44', 's44', 's27')
    a.I('v_add_u32', 'v12', 's27', 'v6'); a.I('v_add_u32', 'v13', '0x10000', 'v12'); a.I('v_add_u32', 'v14', '0x20000', 'v12')
def l_w2_issue(a, vm, lo, hi, throttle=None):
    for n in range(lo, hi):
        a.I('s_add_u32', 's27', 's44', str(4*n*1024)); a.I('s_sub_u32', 's35', 's27', str(270*1024))
        a.I('s_cmp_ge_u32', 's27', str(270*1024)); a.I('s_cselect_b32', 's27', 's35', 's27'); a.I('s_add_u32', 's27', 's27', 's46')
        a.I('buffer_load_dwordx4', V(w2reg(n),4), 'v6', S(8,4), 's27', mods='offen sc1'); vm.op(('w2', n))
        if throttle and n-lo >= throttle: vm.wait([('w2', n-throttle)])
def l_w2_write(a, vm, ns):
    for n in ns:
        vm.wait([('w2', n)])
        kk, o = divmod(((4*n) % 120)*1024, 65536)
        a.I('ds_write_b128', V(12+kk), V(w2reg(n),4), mods=f'offset:{o}')
def l_gemm2(a, vm, nbar_total):
    for v in range(1, 5):
        a.I('s_barrier')
        if v + 1 <= 4:
            l_w2_write(a, vm, [n for n in range(15*(v+1), 15*(v+2)) if n <= 67])
            a.I('s_waitcnt', 'lgkmcnt(0)')
    for _ in range(nbar_total - 4): a.I('s_barrier')
```

```python
from common import *
KD = lambda: 115328
def stats_task(a, st):
    a.I('v_lshrrev_b32', 'v8', '4', 'v1'); a.I('v_and_b32', 'v9', '15', 'v1')
    a.I('v_mul_u32_u24', 'v10', '1280', 'v8'); a.I('v_lshl_add_u32', 'v10', 'v9', '4', 'v10')
    a.I('s_lshl_b32', 's25', 's48', '5'); a.I('s_lshl_b32', 's26', 's3', '2'); a.I('s_add_u32', 's25', 's25', 's26')
    a.I('s_mul_i32', 's26', 's25', '1280')
    srd(a, 12, P['x'], 2621440)
    for i in range(5): a.I('buffer_load_dwordx4', V(12+4*i,4), 'v10', S(12,4), 's26', mods=f'offen offset:{256*i}')
    nonce_publish(a)
    a.I('s_waitcnt', 'vmcnt(0)')
    st.stamp('N:xrow')
    U = 40
    for k in range(20):
        a.I('v_lshlrev_b32', V(U+2*k), '16', V(12+k)); a.I('v_and_b32', V(U+2*k+1), '0xffff0000', V(12+k))
    a.I('v_pk_add_f32', V(12,2), V(U,2), V(U+2,2))
    for k in range(2, 20): a.I('v_pk_add_f32', V(12,2), V(12,2), V(U+2*k,2))
    a.I('v_add_f32', 'v12', 'v12', 'v13')
    def red16(r):
        for sh in (8, 4, 2, 1): a.I('v_add_f32_dpp', V(r), V(r), V(r), mods=f'row_ror:{sh} row_mask:0xf bank_mask:0xf')
    red16(12)
    a.I('v_mul_f32', 'v12', '0x3acccccd', 'v12'); a.I('v_mov_b32', 'v13', 'v12')
    for k in range(20): a.I('v_pk_add_f32', V(U+2*k,2), V(U+2*k,2), V(12,2), mods='neg_lo:[0,1] neg_hi:[0,1]')
    a.I('v_pk_mul_f32', V(14,2), V(U,2), V(U,2))
    for k in range(1, 20): a.I('v_pk_fma_f32', V(14,2), V(U+2*k,2), V(U+2*k,2), V(14,2))
    a.I('v_add_f32', 'v14', 'v14', 'v15')
    red16(14)
    a.I('v_mov_b32', 'v13', '0x3727c5ac'); a.I('v_fmac_f32', 'v13', '0x3acccccd', 'v14'); a.I('v_rsq_f32', 'v13', 'v13')
    a.I('v_lshlrev_b32', 'v8', '3', 'v8')
    a.I('s_lshl_b32', 's26', 's25', '3'); a.I('s_add_u32', 's26', 's26', hex(WS_STAT))
    a.I('s_mov_b32', 'exec_lo', '0x00010001'); a.I('s_mov_b32', 'exec_hi', '0x00010001')
    a.I('buffer_store_dwordx2', V(12,2), 'v8', S(8,4), 's26', mods='offen sc1')
    a.I('s_mov_b64', 'exec', '-1')
    get_nonce(a, 16)
    a.I('s_lshl_b32', 's27', 's48', '6'); a.I('s_add_u32', 's27', 's27', hex(WS_FS))
    publish_last(a, LSYNC, 3, 8, 's27', 16)
    st.stamp('N:statpub')

def nonce_publish(a):
    sk = uid('NP')
    a.I('s_cmp_lg_u32', 's48', '95'); a.I('s_cbranch_scc1', sk); a.I('s_cmp_lg_u32', 's3', '7'); a.I('s_cbranch_scc1', sk)
    a.I('s_memrealtime', S(34,2))
    a.I('v_mov_b32', 'v36', '0')
    a.I('s_waitcnt', 'lgkmcnt(0)')
    a.I('s_or_b32', S(S_NONCE), 's34', '0x80000000'); a.I('v_mov_b32', 'v37', S(S_NONCE))
    a.I('s_mov_b64', 'exec', '1')
    a.I('buffer_store_dword', 'v37', 'v36', S(60,4), '0', mods='offen sc1')
    a.I('s_mov_b64', 'exec', '-1')
    a.L(sk)

def nonce_aggregate(a):
    sk = uid('NA')
    a.I('s_cmp_lg_u32', 's48', '95'); a.I('s_cbranch_scc1', sk); a.I('s_cmp_lg_u32', 's3', '3'); a.I('s_cbranch_scc1', sk)
    a.I('v_lshlrev_b32', 'v8', '6', 'v1'); a.I('v_add_u32', 'v9', '4096', 'v8'); a.I('v_and_b32', 'v10', '31', 'v1'); a.I('v_lshlrev_b32', 'v10', '6', 'v10'); a.I('v_add_u32', 'v10', '8192', 'v10')
    a.I('s_mov_b32', 's27', hex(WS_FG))
    poll_flags(a, [8, 9, 10], 's27', 12)
    a.I('v_mov_b32', 'v36', '0'); a.I('v_mov_b32', 'v37', S(S_NONCE))
    a.I('s_mov_b32', 's27', hex(WS_GO))
    a.I('s_mov_b64', 'exec', '1')
    a.I('buffer_store_dword', 'v37', 'v36', S(8,4), 's27', mods='offen sc1')
    a.I('s_mov_b64', 'exec', '-1')
    a.L(sk)

def colsum_task(a, st):
    done = uid('CSD')
    a.I('s_sub_u32', 's27', 's48', '64')
    a.I('s_cmp_ge_u32', 's27', '27'); a.I('s_cbranch_scc1', done)
    srd(a, 12, P['w1'], 640*3456)
    a.I('s_mul_i32', 's28', 's3', str(80*3456)); a.I('s_lshl_b32', 's29', 's27', '7'); a.I('s_add_u32', 's28', 's28', 's29')
    a.I('v_lshrrev_b32', 'v8', '3', 'v1'); a.I('v_mul_u32_u24', 'v8', '3456', 'v8'); a.I('v_and_b32', 'v9', '7', 'v1'); a.I('v_lshl_add_u32', 'v8', 'v9', '4', 'v8')
    for i in range(10):
        a.I('buffer_load_dwordx4', V(64+4*i,4), 'v8', S(12,4), 's28', mods='offen')
        if i < 9: a.I('s_add_u32', 's28', 's28', str(8*3456))
    for k in range(8): a.I('v_mov_b32', V(20+k), '0')
    for i in range(10):
        a.I('s_waitcnt', f'vmcnt({9-i})')
        for k in range(4):
            a.I('v_lshlrev_b32', 'v30', '16', V(64+4*i+k)); a.I('v_and_b32', 'v31', '0xffff0000', V(64+4*i+k))
            a.I('v_pk_add_f32', V(20+2*k,2), V(20+2*k,2), V(30,2))
    for k in range(8): a.I('v_add_f32_dpp', V(20+k), V(20+k), V(20+k), mods='row_ror:8 row_mask:0xf bank_mask:0xf')
    for sw in ('v_permlane16_swap_b32', 'v_permlane32_swap_b32'):
        for k in range(8): a.I('v_mov_b32', V(32+k), V(20+k))
        for k in range(8): a.I(sw, V(20+k), V(32+k))
        for k in range(8): a.I('v_add_f32', V(20+k), V(20+k), V(32+k))
    a.I('s_lshl_b32', 's29', 's3', '8'); a.I('v_lshlrev_b32', 'v10', '5', 'v9'); a.I('v_add_u32', 'v10', 's29', 'v10')
    a.I('s_mov_b64', 'exec', '0xff')
    a.I('ds_write_b128', 'v10', V(20,4)); a.I('ds_write_b128', 'v10', V(24,4), mods='offset:16')
    a.I('s_mov_b64', 'exec', '-1')
    a.I('s_waitcnt', 'lgkmcnt(0)')
    lds_signal(a, HS_CS, 12)
    fin = uid('CSF')
    a.I('s_cmp_lg_u32', 's3', '0'); a.I('s_cbranch_scc1', done)
    lds_wait(a, HS_CS, 8, 12)
    a.I('v_lshlrev_b32', 'v10', '2', 'v1')
    for k in range(8): a.I('ds_read_b32', V(20+k), 'v10', mods=f'offset:{256*k}')
    a.I('s_waitcnt', 'lgkmcnt(0)')
    for k in range(1, 8): a.I('v_add_f32', 'v20', 'v20', V(20+k))
    a.I('s_lshl_b32', 's28', 's27', '8'); a.I('s_add_u32', 's28', 's28', hex(WS_CS))
    a.I('buffer_store_dword', 'v20', 'v10', S(8,4), 's28', mods='offen sc1')
    a.L(done)
    get_nonce(a, 16)

def nonconv_ready(a):
    a.I('s_waitcnt', 'vmcnt(0)')
    a.I('s_add_u32', 's27', 's48', '160'); a.I('s_lshl_b32', 's27', 's27', '7'); a.I('s_add_u32', 's27', 's27', hex(WS_FR))
    publish_last(a, LSYNC+32, 3, 8, 's27', 20)

XR, UR, SR = 112, 128, 144
SR2 = 144
def kgen_params(a):
    a.I('s_lshl_b32', 's25', 's48', '2'); a.I('s_add_u32', 's25', 's25', 's24')
    a.I('s_lshl_b32', 's26', 's25', '8'); a.I('s_lshl_b32', 's27', 's47', '7'); a.I('s_add_u32', 's26', 's26', 's27')
    a.I('v_lshlrev_b32', 'v3', '1', 'v1')
    for i, n in enumerate(['Are', 'Aim', 'Bre', 'Bim', 'Cre', 'Cim']):
        srd(a, 12, P[n], 640*128*2)
        a.I('buffer_load_ushort', V(10+i), 'v3', S(12,4), 's26', mods='offen')
    srd(a, 12, P['logdt'], 1280)
    a.I('s_lshl_b32', 's27', 's25', '1'); a.I('v_mov_b32', 'v4', 's27')
    a.I('buffer_load_ushort', 'v16', 'v4', S(12,4), '0', mods='offen')

def gather_issue(a):
    a.I('s_lshl_b32', 's25', 's24', '8'); a.I('v_add_u32', 'v100', 's25', 'v1')
    a.I('v_mul_u32_u24', 'v101', '2560', 'v100')
    srd(a, 12, P['x'], 2621440)
    a.I('s_lshl_b32', 's26', 's48', '3')
    for i in range(4):
        a.I('s_add_u32', 's27', 's26', str(i*64*2560))
        a.I('buffer_load_dwordx2', V(XR+4*i,2), 'v101', S(12,4), 's27', mods='offen')
        a.I('buffer_load_dwordx2', V(XR+4*i+2,2), 'v101', S(12,4), 's27', mods='offen offset:1280')
    a.I('s_add_u32', 's6', S(P['D']), 's26'); a.I('s_addc_u32', 's7', S(P['D']+1), '0')
    a.I('s_load_dwordx2', S(36,2), S(6,2), '0')

def kgen_body(a, st):
    a.I('s_mul_i32', 's28', 's24', str(EREG))
    a.I('s_lshl_b32', 's27', 's47', '8'); a.I('s_add_u32', 's27', 's27', 's28')
    a.I('v_lshlrev_b32', 'v6', '2', 'v1'); a.I('v_add_u32', 'v6', 's27', 'v6')
    a.I('v_add_u32', 'v5', str(E1O), 'v6')
    a.I('v_lshlrev_b32', 'v16', '16', 'v16')
    a.I('v_mul_f32', 'v16', hex(LOG2E), 'v16'); a.I('v_exp_f32', 'v16', 'v16')
    a.I('v_cvt_pk_bf16_f32', 'v16', 'v16', 'v16'); a.I('v_lshlrev_b32', 'v16', '16', 'v16')
    for i in range(6): a.I('v_lshlrev_b32', V(10+i), '16', V(10+i))
    a.I('v_mul_f32', 'v10', 'v16', 'v10'); a.I('v_mul_f32', 'v11', 'v16', 'v11')
    a.I('v_mul_f32', 'v10', hex(LOG2E), 'v10'); a.I('v_mul_f32', 'v11', hex(INV2PI), 'v11')
    a.I('v_mul_f32', 'v12', 'v16', 'v12'); a.I('v_mul_f32', 'v13', 'v16', 'v13')
    T = 18
    cmul(a, 20, 14, 12, T)
    def cis(d, v):
        a.I('v_mul_f32', V(d), hex(f2u(float(v))), 'v10'); a.I('v_mul_f32', V(d+1), hex(f2u(float(v))), 'v11')
        a.I('v_exp_f32', V(d), V(d)); a.I('v_fract_f32', V(d+1), V(d+1))
        a.I('v_cos_f32', V(T), V(d+1)); a.I('v_sin_f32', V(d+1), V(d+1))
        a.I('v_mul_f32', V(d+1), V(d), V(d+1)); a.I('v_mul_f32', V(d), V(d), V(T))
    g1, g2, g3, g4, g5, g6, g7, g8 = 22, 24, 26, 28, 30, 32, 34, 36
    g256, g512, g1024, g768, tmp = 38, 40, 42, 44, 46
    cis(g1, 1); cis(g8, 8); cis(g256, 256); cis(g512, 512); cis(g1024, 1024)
    cmul(a, g2, g1, g1, T); cmul(a, g3, g2, g1, T); cmul(a, g4, g2, g2, T); cmul(a, g5, g4, g1, T); cmul(a, g6, g3, g3, T); cmul(a, g7, g4, g3, T)
    cmul(a, g768, g512, g256, T)
    pk = 48; cnt = [0]
    def st2(row, s_):
        r = pk + (cnt[0] & 3); cnt[0] += 1
        a.I('v_cvt_pk_bf16_f32', V(r), V(s_), '-'+V(s_+1)); a.I('ds_write_b32', 'v6', V(r), mods=f'offset:{row*ROW}')
    a.I('v_mov_b32', V(pk), '0x3f80'); a.I('ds_write_b32', 'v6', V(pk)); cnt[0] = 1
    for row, g in zip(range(1, 8), (g1, g2, g3, g4, g5, g6, g7)): st2(row, g)
    st2(8, g256)
    for row, (p, q) in zip((9, 10, 11), ((g256, g2), (g256, g4), (g256, g6))): cmul(a, tmp, p, q, T); st2(row, tmp)
    st2(12, g512); cmul(a, tmp, g512, g4, T); st2(13, tmp)
    st2(14, g768); cmul(a, tmp, g768, g4, T); st2(15, tmp)
    st2(16, g1024)
    for row, (p, q) in zip((17, 18, 19, 20), ((g1024, g256), (g1024, g512), (g1024, g768), (g1024, g1024))): cmul(a, tmp, p, q, T); st2(row, tmp)
    for row in range(32):
        r = pk + (cnt[0] & 3); cnt[0] += 1
        a.I('v_cvt_pk_bf16_f32', V(r), 'v20', 'v21'); a.I('ds_write_b32', 'v5', V(r), mods=f'offset:{row*ROW}')
        if row < 31: cmul(a, 20, 20, g8, T)
    a.I('v_and_b32', 'v8', '15', 'v1'); a.I('v_lshrrev_b32', 'v9', '4', 'v1')
    a.I('v_mul_u32_u24', 'v13', str(ROW), 'v8'); a.I('v_lshl_add_u32', 'v13', 'v9', '4', 'v13'); a.I('v_add_u32', 'v13', 's28', 'v13')
    a.I('s_mul_i32', 's27', 's47', str(16*ROW)); a.I('s_add_u32', 's27', 's27', str(E1O)); a.I('v_add_u32', 'v12', 's27', 'v13')
    a.I('v_mov_b32', 'v14', 'v8'); a.I('v_mov_b32', 'v15', '8')
    a.I('v_add_u32', 'v16', '248', 'v8')
    a.I('v_cmp_le_u32', 'vcc', '8', 'v8'); a.I('v_cndmask_b32', 'v14', 'v14', 'v16', 'vcc'); a.I('v_mov_b32', 'v17', '4'); a.I('v_cndmask_b32', 'v15', 'v15', 'v17', 'vcc')
    a.I('v_add_u32', 'v16', '372', 'v8')
    a.I('v_cmp_le_u32', 'vcc', '12', 'v8'); a.I('v_cndmask_b32', 'v14', 'v14', 'v16', 'vcc'); a.I('v_mov_b32', 'v17', '2'); a.I('v_cndmask_b32', 'v15', 'v15', 'v17', 'vcc')
    a.I('v_add_u32', 'v16', '434', 'v8')
    a.I('v_cmp_le_u32', 'vcc', '14', 'v8'); a.I('v_cndmask_b32', 'v14', 'v14', 'v16', 'vcc')
    a.I('v_lshlrev_b32', 'v16', '5', 'v8'); a.I('v_add_u32', 'v16', '512', 'v16'); a.I('v_mov_b32', 'v17', '672')
    a.I('v_cmp_lt_u32', 'vcc', '4', 'v8'); a.I('v_cndmask_b32', 'v16', 'v16', 'v17', 'vcc')
    a.I('s_lshl_b32', 's27', 's47', '4'); a.I('v_lshlrev_b32', 'v17', '2', 'v9'); a.I('v_add_u32', 'v17', 's27', 'v17')
    a.I('v_mul_u32_u24', 'v18', 'v15', 'v17'); a.I('v_add_u32', 'v14', 'v14', 'v18'); a.I('v_add_u32', 'v16', 'v16', 'v17')
    a.I('s_mul_i32', 's29', 's24', '2816'); a.I('s_add_u32', 's29', 's29', str(KD())); a.I('v_mov_b32', 'v18', 's29')
    a.I('v_lshl_add_u32', 'v14', 'v14', '2', 'v18'); a.I('v_lshl_add_u32', 'v16', 'v16', '2', 'v18')
    a.I('v_lshlrev_b32', 'v15', '2', 'v15')
    a.I('v_add_u32', 'v19', 'v14', 'v15'); a.I('v_add_u32', 'v20', 'v19', 'v15'); a.I('v_add_u32', 'v21', 'v20', 'v15')
    D = 24
    for k in range(8): a.I('v_mov_b32', V(D+k), '0')
    a.I('s_waitcnt', 'lgkmcnt(0)')
    st.stamp('K:egen')
    a.I('s_barrier')
    F = 32
    def ld(s):
        b = F + 12*(s % 4)
        a.I('ds_read_b128', V(b,4), 'v12', mods=f'offset:{s*64}')
        a.I('ds_read_b128', V(b+4,4), 'v13', mods=f'offset:{s*64}'); a.I('ds_read_b128', V(b+8,4), 'v13', mods=f'offset:{s*64+16*ROW}')
    for s in range(4): ld(s)
    for s in range(8):
        a.I('s_waitcnt', f'lgkmcnt({3*min(3, 7-s)})')
        b = F + 12*(s % 4)
        a.I('v_mfma_f32_16x16x32_bf16', V(D,4), V(b,4), V(b+4,4), V(D,4)); a.I('v_mfma_f32_16x16x32_bf16', V(D+4,4), V(b,4), V(b+8,4), V(D+4,4))
        if s+4 < 8: ld(s+4)
    a.I('s_lshl_b32', 's27', 's47', '10')
    a.I('v_lshlrev_b32', 'v2', '3', 'v1'); a.I('v_sub_u32', 'v2', '2047', 'v2'); a.I('v_subrev_u32', 'v2', 's27', 'v2')
    a.I('s_sub_u32', 's30', 's29', str(17024*4))
    for r, ad in enumerate(('v14', 'v19', 'v20', 'v21')): a.I('ds_write_b32', ad, V(D+r))
    for r in range(4): a.I('ds_write_b32', 'v16', V(D+4+r), mods=f'offset:{4*r}')
    J, Ff = 32, 56
    for i in range(2):
        for e in range(11):
            j = J+12*i+e; f = Ff+12*i+e
            a.I('v_subrev_u32', V(j), str(512*i + e), 'v2')
            if i == 1: a.I('v_max_i32', V(j), '0', V(j))
            a.I('v_cvt_f32_u32', V(f), V(j))
        for e in range(0, 11, 2):
            f = Ff+12*i+e
            if e+1 < 11:
                a.I('v_cvt_pk_bf16_f32', V(f), V(f), V(f+1)); a.I('v_lshrrev_b32', V(f+1), '16', V(f)); a.I('v_and_b32', V(f), '0xffff', V(f))
            else:
                a.I('v_cvt_pk_bf16_f32', V(f), V(f), V(f)); a.I('v_and_b32', V(f), '0xffff', V(f))
        for e in range(11):
            j = J+12*i+e; f = Ff+12*i+e
            a.I('v_lshl_add_u32', V(f), V(f), '2', 's30')
            if i == 1:
                a.I('v_lshl_add_u32', V(j), V(j), '2', 's29')
    a.I('s_add_u32', 's31', 's29', '512'); a.I('v_mov_b32', 'v80', 's31')
    for e in range(11):
        j = J+12+e; f = Ff+12+e
        a.I('v_cmp_lt_u32', 'vcc', V(j), 'v80'); a.I('v_cndmask_b32', V(f), V(f), V(j), 'vcc')
    a.I('v_lshlrev_b32', 'v7', '4', 'v1'); a.I('s_lshl_b32', 's27', 's47', '11'); a.I('s_add_u32', 's27', 's27', 's28'); a.I('v_add_u32', 'v7', 's27', 'v7')
    a.I('s_waitcnt', 'lgkmcnt(0)')
    st.stamp('K:kd')
    a.I('s_barrier')
    G = 84
    G = 32
    for i in range(2):
        for e in range(11): a.I('ds_read_b32', V(G+12*i+e), V(Ff+12*i+e))
    a.I('v_and_b32', 'v19', '15', 'v1'); a.I('v_lshrrev_b32', 'v20', '2', 'v19'); a.I('v_and_b32', 'v19', '3', 'v19')
    a.I('v_mul_u32_u24', 'v20', str(ZST), 'v20'); a.I('v_lshl_add_u32', 'v19', 'v19', '3', 'v20'); a.I('v_add_u32', 'v19', 's28', 'v19')
    a.I('v_mov_b32', 'v20', '0'); a.I('v_mov_b32', 'v21', '0')
    a.I('ds_write_b64', 'v19', V(20,2), mods='offset:4096')
    a.I('s_lshl_b32', 's31', 's47', '31'); a.I('s_mov_b32', 'vcc_lo', '0'); a.I('s_mov_b32', 'vcc_hi', 's31')
    a.I('s_waitcnt', 'lgkmcnt(1)')
    for e in (8, 9, 10): a.I('v_cndmask_b32', V(G+12+e), V(G+12+e), 'v20', 'vcc')
    O = 80
    for i in range(2):
        for c in range(4):
            o = O + 4*((4*i+c) % 4)
            for k in range(4): a.I('v_cvt_pk_bf16_f32', V(o+k), V(G+12*i+c+2*k), V(G+12*i+c+2*k+1))
            a.I('ds_write_b128', 'v7', V(o,4), mods=f'offset:{1024*i+c*ZST}')
    st.stamp('K:z')

def l_u(a, st):
    a.I('s_mul_i32', 's27', 's24', '4608'); a.I('s_add_u32', 's27', 's27', str(UB))
    a.I('v_lshlrev_b32', 'v10', '3', 'v1'); a.I('v_add_u32', 'v10', 's27', 'v10')
    a.I('v_mov_b32', 'v12', '0'); a.I('v_mov_b32', 'v13', '0'); a.I('ds_write_b64', 'v10', V(12,2))
    get_nonce(a, 14)
    st.stamp('L:gdone')
    a.I('v_lshlrev_b32', 'v11', '5', 'v100')
    L = uid('SP'); E = uid('SPX')
    a.I('s_mov_b32', 's101', '0')
    a.L(L)
    a.I('s_add_u32', 's101', 's101', '1'); a.I('s_cmp_gt_u32', 's101', str(SPIN_MAX)); a.I('s_cbranch_scc1', E)
    for i in range(4):
        a.I('s_mov_b32', 's27', hex(WS_STAT + i*2048))
        a.I('buffer_load_dwordx4', V(SR2+8*i,4), 'v11', S(8,4), 's27', mods='offen sc1')
        a.I('buffer_load_dwordx4', V(SR2+8*i+4,4), 'v11', S(8,4), 's27', mods='offen offset:16 sc1')
    a.I('s_waitcnt', 'vmcnt(0)')
    a.I('v_cmp_ne_u32', 'vcc', S(S_NONCE), V(SR2+1))
    for k in range(3, 32, 2):
        a.I('v_cmp_ne_u32', S(34,2), S(S_NONCE), V(SR2+k)); a.I('s_or_b64', 'vcc', 'vcc', S(34,2))
    a.I('s_cbranch_vccnz', L)
    a.L(E)
    st.stamp('L:B1')
    a.I('v_lshlrev_b32', 'v102', '2', 'v100'); a.I('v_add_u32', 'v102', str(UB+512), 'v102')
    for i in range(4):
        x = XR+4*i
        T = 16
        for h in range(2):
            for dwi in range(2):
                r = x + 2*h + dwi
                a.I('v_lshlrev_b32', V(T+4*h+2*dwi), '16', V(r)); a.I('v_and_b32', V(T+4*h+2*dwi+1), '0xffff0000', V(r))
            for c in range(4):
                a.I('v_sub_f32', V(T+4*h+c), V(T+4*h+c), V(SR2+8*i+4*h)); a.I('v_mul_f32', V(T+4*h+c), V(T+4*h+c), V(SR2+8*i+4*h+2))
        for c in range(4):
            a.I('v_cvt_pk_bf16_f32', V(UR+4*i+c), V(T+c), V(T+4+c))
            a.I('ds_write_b32', 'v102', V(UR+4*i+c), mods=f'offset:{c*4608+256*i}')
    for k in range(16): a.I('v_mov_b32', V(64+k), V(XR+k))
    for k in range(16): a.I('v_mov_b32', V(80+k), V(UR+k))
    a.I('v_mov_b32', 'v8', 'v100'); a.I('v_mov_b32', 'v10', 'v102')
    a.I('s_waitcnt', 'lgkmcnt(0)')
    st.stamp('L:udone')

def l_hstore(a, vm):
    X_, U_ = 64, 80
    a.I('v_subrev_u32', 'v10', '512', 'v10')
    B = 32
    for i in range(4):
        for c in range(4): a.I('ds_read_b32', V(B+4*i+c), 'v10', mods=f'offset:{c*4608+256*i}')
    a.I('s_lshl_b32', 's38', 's36', '16'); a.I('s_and_b32', 's39', 's36', '0xffff0000'); a.I('s_lshl_b32', 's40', 's37', '16'); a.I('s_and_b32', 's41', 's37', '0xffff0000')
    a.I('s_lshl_b32', 's27', 's48', '14'); a.I('s_add_u32', 's27', 's27', hex(WS_HT4))
    a.I('v_lshlrev_b32', 'v11', '4', 'v8')
    for i in range(4):
        a.I('s_waitcnt', f'lgkmcnt({4*(3-i)})')
        T = 16; H = 24; x = X_+4*i
        for c in range(4):
            u, y = U_+4*i+c, B+4*i+c
            a.I('v_lshlrev_b32', V(T), '16', V(u)); a.I('v_and_b32', V(T+1), '0xffff0000', V(u))
            a.I('v_lshlrev_b32', V(T+2), '16', V(y)); a.I('v_and_b32', V(T+3), '0xffff0000', V(y))
            a.I('v_fmac_f32', V(T+2), S(38+c), V(T)); a.I('v_fmac_f32', V(T+3), S(38+c), V(T+1))
            xl, xh = x + c//2, x + 2 + c//2
            if c % 2 == 0:
                a.I('v_lshlrev_b32', V(T), '16', V(xl)); a.I('v_lshlrev_b32', V(T+1), '16', V(xh))
            else:
                a.I('v_and_b32', V(T), '0xffff0000', V(xl)); a.I('v_and_b32', V(T+1), '0xffff0000', V(xh))
            a.I('v_add_f32', V(H+c), V(T), V(T+2)); a.I('v_add_f32', V(H+4+c), V(T+1), V(T+3))
        O = 48 + 4*i
        a.I('v_cvt_pk_bf16_f32', V(O), V(H), V(H+1)); a.I('v_cvt_pk_bf16_f32', V(O+1), V(H+2), V(H+3))
        a.I('v_cvt_pk_bf16_f32', V(O+2), V(H+4), V(H+5)); a.I('v_cvt_pk_bf16_f32', V(O+3), V(H+6), V(H+7))
        a.I('s_add_u32', 's28', 's27', str(1024*i))
        a.I('buffer_store_dwordx4', V(O,4), 'v11', S(8,4), 's28', mods='offen sc1'); vm.op('hst')
```

```python
from common import *
import ph2
from ph2 import XR, UR, SR, KD, kgen_params, l_hstore, nonce_publish, colsum_task, nonconv_ready

def gather_setup(a):
    a.I('s_lshl_b32', 's25', 's24', '8'); a.I('v_add_u32', 'v100', 's25', 'v1')
    a.I('v_mul_u32_u24', 'v101', '2560', 'v100')
    srd(a, 16, P['x'], 2621440)
    a.I('s_lshl_b32', 's42', 's48', '3')
    a.I('s_add_u32', 's6', S(P['D']), 's42'); a.I('s_addc_u32', 's7', S(P['D']+1), '0')
    a.I('s_load_dwordx2', S(36,2), S(6,2), '0')
def gather_load(a, k):
    i, h = divmod(k, 2)
    a.I('s_add_u32', 's43', 's42', str(i*64*2560))
    a.I('buffer_load_dwordx2', V(XR+4*i+2*h,2), 'v101', S(16,4), 's43', mods='offen' + (' offset:1280' if h else ''))

def egen(a, st):
    gk = [2]
    def sprinkle():
        if gk[0] >= 8: return
        sk = uid('GS')
        a.I('s_cmp_eq_u32', 's47', '0'); a.I('s_cbranch_scc1', sk)
        gather_load(a, gk[0]); gk[0] += 1
        a.L(sk)
    a.I('s_mul_i32', 's28', 's24', str(EREG))
    a.I('s_lshl_b32', 's27', 's47', '8'); a.I('s_add_u32', 's27', 's27', 's28')
    a.I('v_lshlrev_b32', 'v6', '2', 'v1'); a.I('v_add_u32', 'v6', 's27', 'v6')
    a.I('v_add_u32', 'v5', str(E1O), 'v6')
    a.I('v_lshlrev_b32', 'v16', '16', 'v16')
    a.I('v_mul_f32', 'v16', hex(LOG2E), 'v16'); a.I('v_exp_f32', 'v16', 'v16')
    a.I('v_cvt_pk_bf16_f32', 'v16', 'v16', 'v16'); a.I('v_lshlrev_b32', 'v16', '16', 'v16')
    for i in range(6): a.I('v_lshlrev_b32', V(10+i), '16', V(10+i))
    a.I('v_mul_f32', 'v10', 'v16', 'v10'); a.I('v_mul_f32', 'v11', 'v16', 'v11')
    a.I('v_mul_f32', 'v10', hex(LOG2E), 'v10'); a.I('v_mul_f32', 'v11', hex(INV2PI), 'v11')
    a.I('v_mul_f32', 'v12', 'v16', 'v12'); a.I('v_mul_f32', 'v13', 'v16', 'v13')
    T = 18
    cmul(a, 20, 14, 12, T)
    def cis(d, v):
        a.I('v_mul_f32', V(d), hex(f2u(float(v))), 'v10'); a.I('v_mul_f32', V(d+1), hex(f2u(float(v))), 'v11')
        a.I('v_exp_f32', V(d), V(d)); a.I('v_fract_f32', V(d+1), V(d+1))
        a.I('v_cos_f32', V(T), V(d+1)); a.I('v_sin_f32', V(d+1), V(d+1))
        a.I('v_mul_f32', V(d+1), V(d), V(d+1)); a.I('v_mul_f32', V(d), V(d), V(T))
    g1, g2, g3, g4, g5, g6, g7, g8 = 22, 24, 26, 28, 30, 32, 34, 36
    g256, g512, g1024, g768, tmp = 38, 40, 42, 44, 46
    cis(g8, 8)
    pk = 48; cnt = [0]
    cis(g1, 1); sprinkle()
    cis(g256, 256); cis(g512, 512); sprinkle(); cis(g1024, 1024)
    cmul(a, g2, g1, g1, T); cmul(a, g3, g2, g1, T); cmul(a, g4, g2, g2, T); cmul(a, g5, g4, g1, T); cmul(a, g6, g3, g3, T); cmul(a, g7, g4, g3, T)
    cmul(a, g768, g512, g256, T)
    sprinkle()
    def st2(row, s_):
        r = pk + (cnt[0] & 3); cnt[0] += 1
        a.I('v_cvt_pk_bf16_f32', V(r), V(s_), '-'+V(s_+1)); a.I('ds_write_b32', 'v6', V(r), mods=f'offset:{row*ROW}')
    a.I('v_mov_b32', V(pk), '0x3f80'); a.I('ds_write_b32', 'v6', V(pk)); cnt[0] = 1
    for row, g in zip(range(1, 8), (g1, g2, g3, g4, g5, g6, g7)): st2(row, g)
    st2(8, g256)
    for row, (p, q) in zip((9, 10, 11), ((g256, g2), (g256, g4), (g256, g6))): cmul(a, tmp, p, q, T); st2(row, tmp)
    st2(12, g512); cmul(a, tmp, g512, g4, T); st2(13, tmp)
    sprinkle()
    st2(14, g768); cmul(a, tmp, g768, g4, T); st2(15, tmp)
    st2(16, g1024)
    for row, (p, q) in zip((17, 18, 19, 20), ((g1024, g256), (g1024, g512), (g1024, g768), (g1024, g1024))): cmul(a, tmp, p, q, T); st2(row, tmp)
    for row in range(32):
        r = pk + (cnt[0] & 3); cnt[0] += 1
        a.I('v_cvt_pk_bf16_f32', V(r), 'v20', 'v21'); a.I('ds_write_b32', 'v5', V(r), mods=f'offset:{row*ROW}')
        if row < 31: cmul(a, 20, 20, g8, T)
        if row in (4, 14): sprinkle()
    assert gk[0] == 8

def c_kfinish(a, st):
    a.I('s_mul_i32', 's29', 's24', '2816'); a.I('s_add_u32', 's29', 's29', str(KD()))
    a.I('s_sub_u32', 's30', 's29', str(17024*4))
    a.I('v_lshlrev_b32', 'v2', '3', 'v1'); a.I('v_sub_u32', 'v2', '2047', 'v2'); a.I('v_cvt_f32_u32', 'v3', 'v2')
    AD = 112
    a.I('v_mov_b32', 'v4', '4')
    a.I('v_mov_b32', 'v7', 's30')
    for i in range(4):
        F = 64
        for e in range(11): a.I('v_add_f32', V(F+e), hex(f2u(-float(512*i+e))), 'v3')
        if i == 3:
            for e in range(8, 11): a.I('v_max_f32', V(F+e), '0', V(F+e))
            for e in range(11): a.I('v_cvt_u32_f32', V(80+e), V(F+e))
        for e in range(0, 11, 2):
            hi = F+e+1 if e+1 < 11 else F+e
            a.I('v_cvt_pk_bf16_f32', V(F+e), V(F+e), V(hi))
            a.I('v_mad_u32_u16', V(AD+11*i+e), V(F+e), 'v4', 'v7', mods='op_sel:[0,0,0,0]')
            if e+1 < 11: a.I('v_mad_u32_u16', V(AD+11*i+e+1), V(F+e), 'v4', 'v7', mods='op_sel:[1,0,0,0]')
        if i == 3:
            for e in range(11):
                a.I('v_cmp_gt_u32', 'vcc', '128', V(80+e)); a.I('v_lshl_add_u32', V(80+e), V(80+e), '2', 's29')
                a.I('v_cndmask_b32', V(AD+33+e), V(AD+33+e), V(80+e), 'vcc')
    a.I('v_and_b32', 'v8', '15', 'v1'); a.I('v_lshrrev_b32', 'v9', '4', 'v1')
    a.I('v_mul_u32_u24', 'v13', str(ROW), 'v8'); a.I('v_lshl_add_u32', 'v13', 'v9', '4', 'v13'); a.I('v_add_u32', 'v13', 's28', 'v13')
    a.I('v_add_u32', 'v12', str(E1O), 'v13')
    a.I('v_mov_b32', 'v14', 'v8'); a.I('v_mov_b32', 'v15', '8')
    a.I('v_add_u32', 'v16', '248', 'v8')
    a.I('v_cmp_le_u32', 'vcc', '8', 'v8'); a.I('v_cndmask_b32', 'v14', 'v14', 'v16', 'vcc'); a.I('v_mov_b32', 'v17', '4'); a.I('v_cndmask_b32', 'v15', 'v15', 'v17', 'vcc')
    a.I('v_add_u32', 'v16', '372', 'v8')
    a.I('v_cmp_le_u32', 'vcc', '12', 'v8'); a.I('v_cndmask_b32', 'v14', 'v14', 'v16', 'vcc'); a.I('v_mov_b32', 'v17', '2'); a.I('v_cndmask_b32', 'v15', 'v15', 'v17', 'vcc')
    a.I('v_add_u32', 'v16', '434', 'v8')
    a.I('v_cmp_le_u32', 'vcc', '14', 'v8'); a.I('v_cndmask_b32', 'v14', 'v14', 'v16', 'vcc')
    a.I('v_lshlrev_b32', 'v16', '5', 'v8'); a.I('v_add_u32', 'v16', '512', 'v16'); a.I('v_mov_b32', 'v17', '672')
    a.I('v_cmp_lt_u32', 'vcc', '4', 'v8'); a.I('v_cndmask_b32', 'v16', 'v16', 'v17', 'vcc')
    a.I('v_lshlrev_b32', 'v17', '2', 'v9')
    a.I('v_mul_u32_u24', 'v18', 'v15', 'v17'); a.I('v_add_u32', 'v14', 'v14', 'v18'); a.I('v_add_u32', 'v16', 'v16', 'v17')
    a.I('v_mov_b32', 'v18', 's29')
    a.I('v_lshl_add_u32', 'v14', 'v14', '2', 'v18'); a.I('v_lshl_add_u32', 'v16', 'v16', '2', 'v18')
    a.I('v_lshlrev_b32', 'v15', '2', 'v15')
    SA = 100
    a.I('v_lshlrev_b32', 'v19', '4', 'v15')
    a.I('v_mov_b32', V(SA), 'v14')
    for r in range(1, 4): a.I('v_add_u32', V(SA+r), V(SA+r-1), 'v15')
    for r in range(4): a.I('v_add_u32', V(SA+4+r), V(SA+r), 'v19')
    D = 24
    for k in range(16): a.I('v_mov_b32', V(D+k), '0')
    a.I('v_lshlrev_b32', 'v7', '4', 'v1'); a.I('v_add_u32', 'v7', 's28', 'v7')
    a.I('s_waitcnt', 'lgkmcnt(0)')
    st.stamp('K:egen')
    a.I('s_barrier')
    F = 40
    def ld(s):
        b = F + 16*(s % 3)
        a.I('ds_read_b128', V(b,4), 'v12', mods=f'offset:{s*64}'); a.I('ds_read_b128', V(b+4,4), 'v12', mods=f'offset:{s*64+16*ROW}')
        a.I('ds_read_b128', V(b+8,4), 'v13', mods=f'offset:{s*64}'); a.I('ds_read_b128', V(b+12,4), 'v13', mods=f'offset:{s*64+16*ROW}')
    for s in range(3): ld(s)
    for s in range(8):
        a.I('s_waitcnt', f'lgkmcnt({4*min(2, 7-s)})')
        b = F + 16*(s % 3)
        for mt in range(2):
            for nt in range(2): a.I('v_mfma_f32_16x16x32_bf16', V(D+8*mt+4*nt,4), V(b+4*mt,4), V(b+8+4*nt,4), V(D+8*mt+4*nt,4))
        if s+3 < 8: ld(s+3)
    for mt in range(2):
        for r in range(4):
            a.I('ds_write_b32', V(SA+4*mt+r), V(D+8*mt+r))
            a.I('ds_write_b32', 'v16', V(D+8*mt+4+r), mods=f'offset:{4*(16*mt+r)}')
    a.I('v_and_b32', 'v19', '15', 'v1'); a.I('v_lshrrev_b32', 'v20', '2', 'v19'); a.I('v_and_b32', 'v19', '3', 'v19')
    a.I('v_mul_u32_u24', 'v20', str(ZST), 'v20'); a.I('v_lshl_add_u32', 'v19', 'v19', '3', 'v20'); a.I('v_add_u32', 'v19', 's28', 'v19')
    a.I('v_mov_b32', 'v20', '0'); a.I('v_mov_b32', 'v21', '0')
    a.I('s_waitcnt', 'lgkmcnt(0)')
    st.stamp('K:kd')
    a.I('ds_write_b64', 'v19', V(20,2), mods='offset:4096')
    G = 160
    for i in range(4):
        for e in range(11): a.I('ds_read_b32', V(G+11*i+e), V(AD+11*i+e))
    a.I('v_cmp_eq_u32', 'vcc', '63', 'v1')
    for i in range(4):
        a.I('s_waitcnt', f'lgkmcnt({min(15, 11*(3-i))})')
        if i == 3:
            for e in (8, 9, 10): a.I('v_cndmask_b32', V(G+33+e), V(G+33+e), 'v20', 'vcc')
        for c in range(4):
            o = 64 + 4*((4*i+c) % 8)
            for k in range(4): a.I('v_cvt_pk_bf16_f32', V(o+k), V(G+11*i+c+2*k), V(G+11*i+c+2*k+1))
            a.I('ds_write_b128', 'v7', V(o,4), mods=f'offset:{1024*i+c*ZST}')
    st.stamp('K:z')

def stats_task(a, st, w2_first):
    a.I('v_lshrrev_b32', 'v8', '4', 'v1'); a.I('v_and_b32', 'v9', '15', 'v1')
    a.I('v_mul_u32_u24', 'v10', '1280', 'v8'); a.I('v_lshl_add_u32', 'v10', 'v9', '4', 'v10')
    a.I('s_lshl_b32', 's25', 's48', '5'); a.I('s_lshl_b32', 's26', 's3', '2'); a.I('s_add_u32', 's25', 's25', 's26')
    a.I('s_mul_i32', 's26', 's25', '1280')
    srd(a, 12, P['x'], 2621440)
    for i in range(5): a.I('buffer_load_dwordx4', V(12+4*i,4), 'v10', S(12,4), 's26', mods=f'offen offset:{256*i}')
    nonce_early_issue(a, 34)
    a.I('s_waitcnt', 'vmcnt(0)')
    st.stamp('N:xrow')
    U = 40
    for k in range(20):
        a.I('v_lshlrev_b32', V(U+2*k), '16', V(12+k)); a.I('v_and_b32', V(U+2*k+1), '0xffff0000', V(12+k))
    a.I('v_pk_add_f32', V(12,2), V(U,2), V(U+2,2))
    for k in range(2, 20): a.I('v_pk_add_f32', V(12,2), V(12,2), V(U+2*k,2))
    a.I('v_add_f32', 'v12', 'v12', 'v13')
    def red16(r):
        for sh in (8, 4, 2, 1): a.I('v_add_f32_dpp', V(r), V(r), V(r), mods=f'row_ror:{sh} row_mask:0xf bank_mask:0xf')
    red16(12)
    a.I('v_mul_f32', 'v12', '0x3acccccd', 'v12'); a.I('v_mov_b32', 'v13', 'v12')
    for k in range(20): a.I('v_pk_add_f32', V(U+2*k,2), V(U+2*k,2), V(12,2), mods='neg_lo:[0,1] neg_hi:[0,1]')
    a.I('v_pk_mul_f32', V(14,2), V(U,2), V(U,2))
    for k in range(1, 20): a.I('v_pk_fma_f32', V(14,2), V(U+2*k,2), V(U+2*k,2), V(14,2))
    a.I('v_add_f32', 'v14', 'v14', 'v15')
    red16(14)
    a.I('v_mov_b32', 'v13', '0x3727c5ac'); a.I('v_fmac_f32', 'v13', '0x3acccccd', 'v14'); a.I('v_rsq_f32', 'v13', 'v13')
    get_nonce_keep(a, 16, 34)
    a.I('v_mov_b32', 'v14', 'v13'); a.I('v_mov_b32', 'v13', S(S_NONCE)); a.I('v_mov_b32', 'v15', S(S_NONCE))
    a.I('v_lshlrev_b32', 'v8', '4', 'v8')
    a.I('s_lshl_b32', 's26', 's25', '4'); a.I('s_add_u32', 's26', 's26', hex(WS_STAT))
    a.I('s_mov_b32', 'exec_lo', '0x00010001'); a.I('s_mov_b32', 'exec_hi', '0x00010001')
    a.I('buffer_store_dwordx4', V(12,4), 'v8', S(8,4), 's26', mods='offen sc1')
    a.I('s_mov_b64', 'exec', '-1')
    st.stamp('N:statpub')
    w2_first()

def w2_issue(a):
    a.I('s_lshl_b32', 's38', 's48', '3'); a.I('s_add_u32', 's38', 's38', 's3')
    a.I('s_cmp_lt_u32', 's38', '432'); a.I('s_cselect_b32', 's38', 's38', 's3')
    a.I('s_mul_i32', 's39', 's3', '5120')
    for c in range(5):
        a.I('v_add_u32', 'v88', str(64*c), 'v1'); a.I('v_mul_u32_u24', 'v89', '6554', 'v88'); a.I('v_lshrrev_b32', 'v89', '16', 'v89')
        a.I('v_mul_u32_u24', V(90+c), '10', 'v89'); a.I('v_sub_u32', V(90+c), 'v88', V(90+c)); a.I('v_lshlrev_b32', V(90+c), '4', V(90+c))
        a.I('v_mul_u32_u24', 'v89', '1280', 'v89'); a.I('v_add_u32', V(90+c), V(90+c), 'v89')
    srd(a, 16, P['w2'], 1728*1280)
    a.I('s_lshr_b32', 's40', 's38', '3'); a.I('s_and_b32', 's41', 's38', '7')
    a.I('s_mul_i32', 's42', 's40', str(32*1280)); a.I('s_mul_i32', 's43', 's41', '160'); a.I('s_add_u32', 's42', 's42', 's43')
    for c in range(5):
        a.I('s_add_u32', 'm0', 's39', str(c*1024))
        a.I('buffer_load_dwordx4', V(90+c), S(16,4), 's42', mods='offen lds')
    a.I('s_mul_i32', 's43', 's41', '54'); a.I('s_add_u32', 's43', 's43', 's40'); a.I('s_mul_i32', 's43', 's43', '5120'); a.I('s_add_u32', 's42', 's43', hex(WS_W2F))
def w2_finish(a, st):
    a.I('s_waitcnt', 'vmcnt(0)')
    a.I('v_and_b32', 'v8', '15', 'v1'); a.I('v_lshrrev_b32', 'v9', '4', 'v1'); a.I('v_lshrrev_b32', 'v15', '2', 'v8'); a.I('v_lshl_add_u32', 'v15', 'v9', '2', 'v15')
    a.I('v_and_b32', 'v8', '3', 'v8')
    a.I('v_mul_u32_u24', 'v17', '160', 'v15'); a.I('v_mul_u32_u24', 'v8', '40', 'v8'); a.I('v_add_u32', 'v17', 'v17', 'v8'); a.I('v_add_u32', 'v17', 's39', 'v17')
    a.I('v_lshlrev_b32', 'v5', '4', 'v1')
    R = 24
    for T in range(5):
        a.I('ds_read_b64_tr_b16', V(R+4*T,2), 'v17', mods=f'offset:{8*T}'); a.I('ds_read_b64_tr_b16', V(R+4*T+2,2), 'v17', mods=f'offset:{8*T+2560}')
    a.I('s_waitcnt', 'lgkmcnt(0)')
    for T in range(5):
        a.I('buffer_store_dwordx4', V(R+4*T,4), 'v5', S(8,4), 's42', mods=(f'offen offset:{1024*T} sc1' if T < 4 else 'offen sc1'))
        if T == 3: a.I('s_add_u32', 's42', 's42', '4096')
    a.I('s_waitcnt', 'vmcnt(0)')
    a.I('s_lshl_b32', 's27', 's48', '6'); a.I('s_add_u32', 's27', 's27', hex(WS_FT))
    publish_last(a, LSYNC+64, 3, 8, 's27', 48)
    st.stamp('N:w2pub')
```

```python
from common import *
from ph2 import KD, XR, UR
import ph3
PREFILL=[None]
GATE_PAR=[2]
AD = 112
SA = 100
def c_kgen(a, st):
    a.I('s_lshl_b32', 's25', 's48', '2'); a.I('s_add_u32', 's25', 's25', 's24')
    a.I('s_lshl_b32', 's26', 's25', '8')
    a.I('v_lshlrev_b32', 'v3', '1', 'v1')
    for i, n in enumerate(['Are', 'Aim', 'Bre', 'Bim', 'Cre', 'Cim']):
        srd(a, 12, P[n], 640*128*2)
        a.I('buffer_load_ushort', V(10+i), 'v3', S(12,4), 's26', mods='offen')
        a.I('buffer_load_ushort', V(56+i), 'v3', S(12,4), 's26', mods='offen offset:128')
    srd(a, 12, P['logdt'], 1280)
    a.I('s_lshl_b32', 's27', 's25', '1'); a.I('v_mov_b32', 'v4', 's27')
    a.I('buffer_load_ushort', 'v16', 'v4', S(12,4), '0', mods='offen')
    a.I('s_mul_i32', 's28', 's24', str(EREG))
    a.I('s_mul_i32', 's29', 's24', '2816'); a.I('s_add_u32', 's29', 's29', str(KD()))
    a.I('s_sub_u32', 's30', 's29', str(17024*4))
    a.I('v_lshlrev_b32', 'v2', '3', 'v1'); a.I('v_sub_u32', 'v2', '2047', 'v2'); a.I('v_cvt_f32_u32', 'v3', 'v2')
    a.I('v_mov_b32', 'v4', '4'); a.I('v_mov_b32', 'v7', 's30')
    for i in range(4):
        F = 64
        for e in range(11): a.I('v_add_f32', V(F+e), hex(f2u(-float(512*i+e))), 'v3')
        if i == 3:
            for e in range(8, 11): a.I('v_max_f32', V(F+e), '0', V(F+e))
            for e in range(11): a.I('v_cvt_u32_f32', V(80+e), V(F+e))
        for e in range(0, 11, 2):
            hi = F+e+1 if e+1 < 11 else F+e
            a.I('v_cvt_pk_bf16_f32', V(F+e), V(F+e), V(hi))
            a.I('v_mad_u32_u16', V(AD+11*i+e), V(F+e), 'v4', 'v7', mods='op_sel:[0,0,0,0]')
            if e+1 < 11: a.I('v_mad_u32_u16', V(AD+11*i+e+1), V(F+e), 'v4', 'v7', mods='op_sel:[1,0,0,0]')
        if i == 3:
            for e in range(11):
                a.I('v_cmp_gt_u32', 'vcc', '128', V(80+e)); a.I('v_lshl_add_u32', V(80+e), V(80+e), '2', 's29')
                a.I('v_cndmask_b32', V(AD+33+e), V(AD+33+e), V(80+e), 'vcc')
    a.I('v_and_b32', 'v8', '15', 'v1'); a.I('v_lshrrev_b32', 'v9', '4', 'v1')
    a.I('v_mul_u32_u24', 'v97', str(ROW), 'v8'); a.I('v_lshl_add_u32', 'v97', 'v9', '4', 'v97'); a.I('v_add_u32', 'v97', 's28', 'v97')
    a.I('v_add_u32', 'v96', str(E1O), 'v97')
    a.I('v_mov_b32', 'v64', 'v8'); a.I('v_mov_b32', 'v65', '8')
    a.I('v_add_u32', 'v66', '248', 'v8')
    a.I('v_cmp_le_u32', 'vcc', '8', 'v8'); a.I('v_cndmask_b32', 'v64', 'v64', 'v66', 'vcc'); a.I('v_mov_b32', 'v67', '4'); a.I('v_cndmask_b32', 'v65', 'v65', 'v67', 'vcc')
    a.I('v_add_u32', 'v66', '372', 'v8')
    a.I('v_cmp_le_u32', 'vcc', '12', 'v8'); a.I('v_cndmask_b32', 'v64', 'v64', 'v66', 'vcc'); a.I('v_mov_b32', 'v67', '2'); a.I('v_cndmask_b32', 'v65', 'v65', 'v67', 'vcc')
    a.I('v_add_u32', 'v66', '434', 'v8')
    a.I('v_cmp_le_u32', 'vcc', '14', 'v8'); a.I('v_cndmask_b32', 'v64', 'v64', 'v66', 'vcc')
    a.I('v_lshlrev_b32', 'v66', '5', 'v8'); a.I('v_add_u32', 'v66', '512', 'v66'); a.I('v_mov_b32', 'v67', '672')
    a.I('v_cmp_lt_u32', 'vcc', '4', 'v8'); a.I('v_cndmask_b32', 'v66', 'v66', 'v67', 'vcc')
    a.I('v_lshlrev_b32', 'v67', '2', 'v9')
    a.I('v_mul_u32_u24', 'v68', 'v65', 'v67'); a.I('v_add_u32', 'v64', 'v64', 'v68'); a.I('v_add_u32', 'v66', 'v66', 'v67')
    a.I('v_mov_b32', 'v68', 's29')
    a.I('v_lshl_add_u32', V(SA), 'v64', '2', 'v68'); a.I('v_lshl_add_u32', 'v98', 'v66', '2', 'v68')
    a.I('v_lshlrev_b32', 'v65', '2', 'v65'); a.I('v_lshlrev_b32', 'v69', '4', 'v65')
    for r in range(1, 4): a.I('v_add_u32', V(SA+r), V(SA+r-1), 'v65')
    for r in range(4): a.I('v_add_u32', V(SA+4+r), V(SA+r), 'v69')
    a.I('v_lshlrev_b32', 'v99', '4', 'v1'); a.I('v_add_u32', 'v99', 's28', 'v99')
    a.I('v_and_b32', 'v64', '15', 'v1'); a.I('v_lshrrev_b32', 'v65', '2', 'v64'); a.I('v_and_b32', 'v64', '3', 'v64')
    a.I('v_mul_u32_u24', 'v65', str(ZST), 'v65'); a.I('v_lshl_add_u32', 'v108', 'v64', '3', 'v65'); a.I('v_add_u32', 'v108', 's28', 'v108')
    a.I('v_lshlrev_b32', 'v6', '2', 'v1'); a.I('v_add_u32', 'v6', 's28', 'v6'); a.I('v_add_u32', 'v5', str(E1O), 'v6')
    a.I('s_waitcnt', 'vmcnt(0)')
    lds_signal(a, HS_PAR, 52)
    st.stamp('K:params')
    a.I('v_lshlrev_b32', 'v16', '16', 'v16')
    a.I('v_mul_f32', 'v16', hex(LOG2E), 'v16'); a.I('v_exp_f32', 'v16', 'v16')
    a.I('v_cvt_pk_bf16_f32', 'v16', 'v16', 'v16'); a.I('v_lshlrev_b32', 'v62', '16', 'v16')
    def half_regs(h): return dict(p=(10 if h == 0 else 64), T=(18 if h == 0 else 72), c=(20 if h == 0 else 74), g=(22 if h == 0 else 76))
    for i in range(6): a.I('v_lshlrev_b32', V(64+i), '16', V(56+i))
    for i in range(6): a.I('v_lshlrev_b32', V(10+i), '16', V(10+i))
    streams = []
    for h in range(2):
        b = Asm()
        R = half_regs(h); p, T, c = R['p'], R['T'], R['c']; off = 256*h
        if h == 0: g1, g2, g3, g4, g5, g6, g7, g8, g256, g512, g1024, g768, tmp, pk = 22, 24, 26, 28, 30, 32, 34, 36, 38, 40, 42, 44, 46, 48
        else:      g1, g2, g3, g4, g5, g6, g7, g8, g256, g512, g1024, g768, tmp, pk = 160, 162, 164, 166, 168, 170, 172, 174, 176, 178, 180, 182, 184, 186
        b.I('v_mul_f32', V(p), 'v62', V(p)); b.I('v_mul_f32', V(p+1), 'v62', V(p+1))
        b.I('v_mul_f32', V(p), hex(LOG2E), V(p)); b.I('v_mul_f32', V(p+1), hex(INV2PI), V(p+1))
        b.I('v_mul_f32', V(p+2), 'v62', V(p+2)); b.I('v_mul_f32', V(p+3), 'v62', V(p+3))
        cmul(b, c, p+4, p+2, T)
        def cis(d, v):
            b.I('v_mul_f32', V(d), hex(f2u(float(v))), V(p)); b.I('v_mul_f32', V(d+1), hex(f2u(float(v))), V(p+1))
            b.I('v_exp_f32', V(d), V(d)); b.I('v_fract_f32', V(d+1), V(d+1))
            b.I('v_cos_f32', V(T), V(d+1)); b.I('v_sin_f32', V(d+1), V(d+1))
            b.I('v_mul_f32', V(d+1), V(d), V(d+1)); b.I('v_mul_f32', V(d), V(d), V(T))
        cis(g8, 8); cis(g1, 1); cis(g256, 256); cis(g512, 512); cis(g1024, 1024)
        cmul(b, g2, g1, g1, T); cmul(b, g3, g2, g1, T); cmul(b, g4, g2, g2, T); cmul(b, g5, g4, g1, T); cmul(b, g6, g3, g3, T); cmul(b, g7, g4, g3, T)
        cmul(b, g768, g512, g256, T)
        cnt = [0]
        def st2(row, s_):
            r = pk + (cnt[0] & 3); cnt[0] += 1
            b.I('v_cvt_pk_bf16_f32', V(r), V(s_), '-'+V(s_+1)); b.I('ds_write_b32', 'v6', V(r), mods=f'offset:{row*ROW+off}')
        b.I('v_mov_b32', V(pk), '0x3f80'); b.I('ds_write_b32', 'v6', V(pk), mods=f'offset:{off}'); cnt[0] = 1
        for row, g in zip(range(1, 8), (g1, g2, g3, g4, g5, g6, g7)): st2(row, g)
        st2(8, g256)
        for row, (x, y) in zip((9, 10, 11), ((g256, g2), (g256, g4), (g256, g6))): cmul(b, tmp, x, y, T); st2(row, tmp)
        st2(12, g512); cmul(b, tmp, g512, g4, T); st2(13, tmp)
        st2(14, g768); cmul(b, tmp, g768, g4, T); st2(15, tmp)
        st2(16, g1024)
        for row, (x, y) in zip((17, 18, 19, 20), ((g1024, g256), (g1024, g512), (g1024, g768), (g1024, g1024))): cmul(b, tmp, x, y, T); st2(row, tmp)
        for row in range(32):
            r = pk + (cnt[0] & 3); cnt[0] += 1
            b.I('v_cvt_pk_bf16_f32', V(r), V(c), V(c+1)); b.I('ds_write_b32', 'v5', V(r), mods=f'offset:{row*ROW+off}')
            if row < 31: cmul(b, c, c, g8, T)
        streams.append(b.items)
    for x, y in zip(streams[0], streams[1]):
        a.items.append(x); a.items.append(y)
    D = 24
    for k in range(16): a.I('v_mov_b32', V(D+k), '0')
    a.I('s_waitcnt', 'lgkmcnt(0)')
    st.stamp('K:egen')
    F = 192
    def ld(s):
        b_ = F + 16*(s % 4)
        a.I('ds_read_b128', V(b_,4), 'v96', mods=f'offset:{s*64}'); a.I('ds_read_b128', V(b_+4,4), 'v96', mods=f'offset:{s*64+16*ROW}')
        a.I('ds_read_b128', V(b_+8,4), 'v97', mods=f'offset:{s*64}'); a.I('ds_read_b128', V(b_+12,4), 'v97', mods=f'offset:{s*64+16*ROW}')
    for s in range(3): ld(s)
    for s in range(8):
        a.I('s_waitcnt', f'lgkmcnt({4*min(2, 7-s)})')
        b_ = F + 16*(s % 4)
        if s+3 < 8: ld(s+3)
        for mt in range(2):
            for nt in range(2): a.I('v_mfma_f32_16x16x32_bf16', V(D+8*mt+4*nt,4), V(b_+4*mt,4), V(b_+8+4*nt,4), V(D+8*mt+4*nt,4))
    for mt in range(2):
        for r in range(4):
            a.I('ds_write_b32', V(SA+4*mt+r), V(D+8*mt+r))
            a.I('ds_write_b32', 'v98', V(D+8*mt+4+r), mods=f'offset:{4*(16*mt+r)}')
    a.I('v_mov_b32', 'v20', '0'); a.I('v_mov_b32', 'v21', '0')
    a.I('s_waitcnt', 'lgkmcnt(0)')
    st.stamp('K:kd')
    a.I('ds_write_b64', 'v108', V(20,2), mods='offset:4096')
    G = 160
    for i in range(4):
        for e in range(11): a.I('ds_read_b32', V(G+11*i+e), V(AD+11*i+e))
    a.I('v_cmp_eq_u32', 'vcc', '63', 'v1')
    for i in range(4):
        a.I('s_waitcnt', f'lgkmcnt({min(15, 11*(3-i))})')
        if i == 3:
            for e in (8, 9, 10): a.I('v_cndmask_b32', V(G+33+e), V(G+33+e), 'v20', 'vcc')
        for c in range(4):
            o = 64 + 4*((4*i+c) % 8)
            for k in range(4): a.I('v_cvt_pk_bf16_f32', V(o+k), V(G+11*i+c+2*k), V(G+11*i+c+2*k+1))
            a.I('ds_write_b128', 'v99', V(o,4), mods=f'offset:{1024*i+c*ZST}')
    st.stamp('K:z')

def l_gather(a, st):
    ph3.gather_setup(a)
    lds_wait(a, HS_PAR, GATE_PAR[0], 8)
    for k in range(8): ph3.gather_load(a, k)
    st.stamp('L:gissued')
```

```python
from common import *
import ph1, ph2, ph3, ph4, ffn
KNAME = 'sequential_preLN__ssm_conv_s4__dense_activation_mish__prompt_kernel'

W1_THROTTLE = None
W2_THROTTLE = 4
USE_GATE = False
H_EXIT = 8
W1_EARLY = 16
W2_FIRST = 36
def kernel_p(prof=False):
    a = Asm(); st = St(a, prof)
    a.I('s_cmp_ge_u32', 's2', '256'); a.I('s_cbranch_scc1', 'P_END')
    a.I('s_load_dwordx16', S(64,16), S(0,2), '0'); a.I('s_load_dwordx16', S(80,16), S(0,2), '64')
    a.I('v_and_b32', 'v1', '63', 'v0'); a.I('v_lshrrev_b32', 'v2', '6', 'v0')
    a.I('v_readfirstlane_b32', 's3', 'v2')
    a.I('v_lshlrev_b32', 'v3', '2', 'v1'); a.I('v_add_u32', 'v3', str(LSYNC), 'v3'); a.I('v_mov_b32', 'v4', '0')
    a.I('ds_write_b32', 'v3', 'v4'); a.I('ds_write_b32', 'v3', 'v4', mods='offset:256')
    if prof: a.I('v_mov_b32', 'v0', '0')
    st.stamp('start')
    a.I('s_and_b32', 's24', 's3', '3')
    a.I('s_and_b32', 's20', 's2', '7'); a.I('s_lshr_b32', 's21', 's2', '3')
    a.I('s_lshr_b32', 's22', 's20', '1'); a.I('s_lshl_b32', 's22', 's22', '2'); a.I('s_and_b32', 's23', 's21', '3'); a.I('s_add_u32', 's22', 's22', 's23')
    a.I('s_and_b32', 's23', 's20', '1'); a.I('s_lshl_b32', 's23', 's23', '3'); a.I('s_lshr_b32', 's25', 's21', '2'); a.I('s_add_u32', 's23', 's23', 's25')
    a.I('s_mul_i32', 's48', 's20', '20'); a.I('s_add_u32', 's48', 's48', 's21')
    a.I('s_mul_i32', 's25', 's20', '12'); a.I('s_add_u32', 's25', 's25', 's21'); a.I('s_sub_u32', 's25', 's25', '20')
    a.I('s_cmp_ge_u32', 's21', '20'); a.I('s_cselect_b32', 's48', 's25', 's48')
    a.I('s_waitcnt', 'lgkmcnt(0)')
    a.I('s_barrier')
    srd(a, 8, P['ws'], WS_SIZE); srd(a, 60, P['dbg'], 256)
    a.I('s_lshr_b32', 's47', 's3', '2')
    vc = VmLog(a); vl = VmLog(a)
    a.I('s_cmp_ge_u32', 's21', '20'); a.I('s_cbranch_scc1', 'NONCONV')
    a.I('s_cmp_eq_u32', 's47', '1'); a.I('s_cbranch_scc1', 'L_CONV')
    ph4.c_kgen(a, st)
    ph1.c_conv_setup(a)
    a.I('s_barrier')
    st.stamp('C:bar1')
    ph1.c_conv(a, st)
    a.I('s_barrier')
    get_nonce(a, 8)
    a.I('s_branch', 'C_FFN')
    a.L('L_CONV')
    ph4.l_gather(a, st)
    ph2.l_u(a, st)
    a.I('s_barrier')
    ffn.l_w1_issue(a, vl, throttle=W1_THROTTLE)
    st.stamp('L:w1issued')
    a.I('s_barrier')
    st.stamp('L:bar2')
    ph2.l_hstore(a, vl)
    ffn.l_w1_write(a, vl, 0, W1_EARLY)
    vl.wait(['hst'])
    st.stamp('L:hdrained')
    a.I('s_mul_i32', 's27', 's24', '160'); a.I('s_add_u32', 's27', 's27', 's48'); a.I('s_lshl_b32', 's27', 's27', '7'); a.I('s_add_u32', 's27', 's27', hex(WS_FH))
    a.I('v_mov_b32', 'v16', '0'); a.I('v_mov_b32', 'v17', S(S_NONCE))
    a.I('s_mov_b64', 'exec', '1')
    a.I('buffer_store_dword', 'v17', 'v16', S(8,4), 's27', mods='offen sc1')
    a.I('s_mov_b64', 'exec', '-1')
    ffn.l_w1_write(a, None, W1_EARLY, 40)
    lds_signal(a, HS_W1W, 8)
    st.stamp('L:w1landed')
    a.I('s_branch', 'L_G1B')
    a.L('NONCONV')
    ph2.nonce_publish(a)
    a.I('s_cmp_ge_u32', 's48', '64'); a.I('s_cbranch_scc1', 'NC_CS')
    ph3.stats_task(a, st, lambda: ph3.w2_issue(a))
    ph2.nonconv_ready(a)
    ph3.w2_finish(a, st)
    a.I('s_branch', 'NC_RDY2')
    a.L('NC_CS')
    ph2.colsum_task(a, st)
    ph2.nonconv_ready(a)
    if USE_GATE: ph2.nonce_aggregate(a)
    a.L('NC_RDY2')
    a.I('s_barrier')
    st.stamp('N:ready')
    a.I('s_cmp_eq_u32', 's47', '0'); a.I('s_cbranch_scc1', 'C_FFN')
    if USE_GATE:
        a.I('s_cmp_lg_u32', 's24', '0'); a.I('s_cbranch_scc1', 'NC_G')
        a.I('v_mov_b32', 'v8', '0'); a.I('s_mov_b32', 's27', hex(WS_GO))
        poll_flags(a, [8], 's27', 10)
        lds_signal(a, HS_GC, 8)
        a.L('NC_G')
        lds_wait(a, HS_GC, 1, 8)
        st.stamp('N:gate')
    vl2 = VmLog(a)
    ffn.l_w1_issue(a, vl2)
    ffn.l_w1_write(a, vl2)
    a.I('s_branch', 'L_G1')
    a.L('C_FFN')
    a.I('s_cmp_lg_u32', 's24', '0'); a.I('s_cbranch_scc1', 'C_NOPOLL')
    ffn.hpoller(a, st, 1, H_EXIT, 8)
    a.L('C_NOPOLL')
    ffn.c_gemm1(a, vc, st, 'C_G1DONE')
    a.L('C_G1DONE')
    vc.wait_all()
    st.stamp('C:actdrained')
    a.I('s_lshl_b32', 's37', 's22', '4'); a.I('s_add_u32', 's27', 's37', 's23'); a.I('s_lshl_b32', 's27', 's27', '7'); a.I('s_add_u32', 's27', 's27', hex(WS_FA))
    publish_last(a, LSYNC+96, 24, 4, 's27', 8)
    a.I('s_cmp_lg_u32', 's24', '0'); a.I('s_cbranch_scc1', 'C_ARDY')
    a.I('v_lshlrev_b32', 'v8', '7', 'v6')
    a.I('s_lshl_b32', 's37', 's37', '7'); a.I('s_add_u32', 's37', 's37', hex(WS_FA))
    poll_flags(a, [8], 's37', 10)
    lds_signal(a, HS_ARDY, 8)
    a.L('C_ARDY')
    lds_wait(a, HS_ARDY, 1, 8)
    st.stamp('C:actready')
    ffn.c_common_regs(a)
    nb2 = ffn.c_gemm2(a, vc, st)
    if prof:
        a.I('s_waitcnt', 'vmcnt(0)'); st.stamp('end'); st.dump()
    a.I('s_endpgm')
    for g_ in ffn.SLOWG: g_.emit_slow()
    a.L('L_G1')
    lds_signal(a, HS_W1W, 8)
    st.stamp('L:w1landed')
    a.L('L_G1B')
    a.I('s_cmp_lg_u32', 's24', '3'); a.I('s_cbranch_scc1', 'L_NOPOLL')
    ffn.hpoller(a, st, 2, 20, 16)
    a.L('L_NOPOLL')
    lane(a, 1); a.I('v_min_u32', 'v8', '53', 'v1'); a.I('v_lshlrev_b32', 'v8', '6', 'v8')
    a.I('s_mov_b32', 's27', hex(WS_FT))
    poll_flags(a, [8], 's27', 10)
    vl.log = []
    lds_wait(a, HS_GO, 4, 8)
    a.I('s_cmp_lg_u32', 's24', '0'); a.I('s_cbranch_scc1', 'L_NOCS')
    ffn.l_csb1(a)
    a.L('L_NOCS')
    ffn.l_w2_setup(a)
    ffn.l_w2_issue(a, vl, 0, 60, throttle=W2_THROTTLE)
    st.stamp('L:w2a2')
    lds_wait(a, HS_G1D, 4, 8)
    ffn.l_w2_write(a, vl, range(0, 30))
    a.I('s_waitcnt', 'lgkmcnt(0)')
    lds_signal(a, HS_W2W, 8)
    ffn.l_w2_issue(a, vl, 60, 68)
    st.stamp('L:w2b')
    ffn.l_gemm2(a, vl, nb2)
    if prof:
        st.stamp('end'); st.dump()
    a.L('P_END')
    a.I('s_endpgm')
    return a, dict(name=KNAME, grid=256, block=512, lds=LDS_TOTAL, vgpr=256, sgpr=102, stamps=st.names)

if __name__ == '__main__':
    import json
    sys.path.insert(0, 'dev')
    out = sys.argv[1]; prof = len(sys.argv) > 2 and sys.argv[2] == 'p'
    for kv in sys.argv[3:]:
        k, v = kv.split('=')
        if k == 'sleep': RC_SLEEP[0] = int(v)
        if k == 'rot': ffn.ROT[0] = bool(int(v))
        if k == 'thr': globals()['W2_THROTTLE'] = int(v)
        if k == 'bm': ffn.BM[0] = v.replace('+', ' ')
        if k == 'db2': ffn.DB2[0] = int(v)
        if k == 'db1': ffn.DB1[0] = int(v)
        if k == 'outm': ffn.OUTM[0] = ' ' + v.replace('+', ' ')
        if k == 'stag': ffn.STAG[0] = int(v)
        if k == 'stepst': ffn.STEPST[0] = bool(int(v))
        if k == 'go': ffn.GO_STEP[0] = int(v)
        if k == 'gate': globals()['USE_GATE'] = bool(int(v))
        if k == 'hexit': globals()['H_EXIT'] = int(v)
        if k == 'gp': ph4.GATE_PAR[0] = int(v)
        if k == 'lpos': ffn.LPOS[:] = [int(x) for x in v.split(',')]
    a, m = kernel_p(prof)
    n = a.pad_hazards()
    HEADER = open('sequential_preLN__ssm_conv_s4__dense_activation_mish__prompt.s.ref').read().split('; Override launch')[0]
    o = [HEADER.rstrip(), f"; @launch grid=({m['grid']},1,1) block=({m['block']},1,1) lds={m['lds']}", '.amdgcn_target "amdgcn-amd-amdhsa--gfx950"', '.text',
         f".globl {m['name']}", '.p2align 8', f".type {m['name']},@function", f"{m['name']}:", a.text().rstrip(),
         '.section .rodata,"a"', '.p2align 6', f".amdhsa_kernel {m['name']}", f"  .amdhsa_next_free_vgpr {m['vgpr']}", f"  .amdhsa_next_free_sgpr {m['sgpr']}",
         f"  .amdhsa_accum_offset {m['vgpr']}", "  .amdhsa_group_segment_fixed_size 0", "  .amdhsa_kernarg_size 128", "  .amdhsa_user_sgpr_count 2",
         "  .amdhsa_user_sgpr_kernarg_segment_ptr 1", "  .amdhsa_system_sgpr_workgroup_id_x 1", ".end_amdhsa_kernel"]
    open(out, 'w').write('\n'.join(o)+'\n')
    json.dump(m['stamps'], open(out.replace('.s', '.json'), 'w'))
    print('nops inserted', n, 'instrs', len(a.items))
```

```python
from common import *

ROT=[False]
BM=['offen sc1']
PROBE=[[0, 3, 6]]
SLOWG=[]
OUTM=['']
STAG=[0]
STEPST=[False]
GO_STEP=[1]
LPOS=[1, 4]
DB1=[8]
DB2=[5]
class GemmC:
    def __init__(self, a, vm, NT, own, KSPLIT, RK, KSB, HS, TS, DB, s_boff, ACC, WB, BB, VWL, s_tmp, bmods, SKo=None, rot=None, dyn=None, sent=None):
        self.__dict__.update(locals()); self.bi = 0; self.NB = DB+1; self.slow = []
    def breg(self, i): return self.BB + 8*(i % self.NB)
    def issue_b(self, upto, part=None):
        a = self.a
        while self.bi < min(upto, self.own):
            i = self.bi; r = self.breg(i)
            if part == 1:
                a.I('buffer_load_dwordx4', V(r+4,4), 'v5', S(8,4), S(self.s_tmp), mods=self.bmods); self.vm.op(('B', id(self), i))
                self.bi += 1
                continue
            if self.dyn is not None:
                self.dyn_need(i)
                a.I('v_readlane_b32', S(self.s_tmp), V(self.dyn), str(i))
                a.I('s_lshl_b32', S(self.s_tmp), S(self.s_tmp), '17'); a.I('s_add_u32', S(self.s_tmp), S(self.s_tmp), S(self.s_boff))
            elif self.rot is None:
                a.I('s_add_u32', S(self.s_tmp), S(self.s_boff), str(i*self.KSPLIT*8*GS))
            else:
                a.I('s_add_u32', S(self.s_tmp), S(self.rot), str(i)); a.I('s_sub_u32', 's35', S(self.s_tmp), str(self.own))
                a.I('s_cmp_ge_u32', S(self.s_tmp), str(self.own)); a.I('s_cselect_b32', S(self.s_tmp), 's35', S(self.s_tmp))
                a.I('s_mul_i32', S(self.s_tmp), S(self.s_tmp), str(self.KSPLIT*8*GS)); a.I('s_add_u32', S(self.s_tmp), S(self.s_tmp), S(self.s_boff))
            a.I('buffer_load_dwordx4', V(r,4), 'v4', S(8,4), S(self.s_tmp), mods=self.bmods); self.vm.op(('B', id(self), i))
            if part == 0: return
            a.I('buffer_load_dwordx4', V(r+4,4), 'v5', S(8,4), S(self.s_tmp), mods=self.bmods); self.vm.op(('B', id(self), i))
            self.bi += 1
    def spin_first(self, t):
        a = self.a
        L, E = uid('SF'), uid('SFX')
        r = self.breg(0)
        probes = [p for p in PROBE[0] if p < self.own]
        a.L(L)
        a.I('s_add_u32', 's100', 's100', '1'); a.I('s_cmp_gt_u32', 's100', str(SPIN_MAX)); a.I('s_cbranch_scc1', E)
        for k, p in enumerate(probes):
            a.I('s_add_u32', 's35', S(self.s_boff), str(p*self.KSPLIT*8*GS))
            a.I('buffer_load_dwordx4', V(r+4*k,4), 'v4', S(8,4), 's35', mods=self.bmods)
        a.I('s_waitcnt', 'vmcnt(0)')
        a.I('v_max_u32', V(t), V(r), V(r+2))
        for k in range(1, len(probes)): a.I('v_max3_u32', V(t), V(t), V(r+4*k), V(r+4*k+2))
        a.I('v_cmp_eq_u32', 'vcc', '-1', V(t)); a.I('s_cbranch_vccnz', L)
        a.L(E)
    def dyn_need(self, i):
        a = self.a
        back, slow = uid('DQB'), uid('DQS')
        a.I('s_cmp_le_u32', 's31', str(i)); a.I('s_cbranch_scc1', slow)
        a.L(back)
        self.slow.append((slow, back, i))
    def emit_slow(self):
        a = self.a
        for ent in self.slow:
            if ent[0] == 'sent':
                _, slow, back, i, hi = ent
                r = self.breg(i)
                ex = uid('SVX')
                a.L(slow)
                a.I('s_add_u32', 's100', 's100', '1'); a.I('s_cmp_gt_u32', 's100', str(SPIN_MAX)); a.I('s_cbranch_scc1', ex)
                a.I('s_waitcnt', 'vmcnt(0)')
                for jj in range(i, hi):
                    rj = self.breg(jj)
                    a.I('s_add_u32', 's35', S(self.s_boff), str(jj*self.KSPLIT*8*GS))
                    a.I('buffer_load_dwordx4', V(rj,4), 'v4', S(8,4), 's35', mods=self.bmods); a.I('buffer_load_dwordx4', V(rj+4,4), 'v5', S(8,4), 's35', mods=self.bmods)
                a.I('s_waitcnt', f'vmcnt({2*(hi-i-1)})')
                a.I('s_branch', back)
                a.L(ex)
                a.I('v_swap_b32', V(r+2), V(r+4)); a.I('v_swap_b32', V(r+3), V(r+5))
                a.I('s_branch', ent[2]+'_AFTER')
                continue
            slow, back, i = ent
            L = uid('DQL')
            a.L(slow)
            a.I('s_mov_b32', 's101', '0')
            a.L(L)
            a.I('s_add_u32', 's101', 's101', '1'); a.I('s_cmp_gt_u32', 's101', str(SPIN_MAX*20)); a.I('s_cbranch_scc1', back)
            a.I('ds_read_b32', V(self.dyn), V(self.dyn+1)); a.I('s_waitcnt', 'lgkmcnt(0)')
            a.I('v_readlane_b32', 's31', V(self.dyn), '20'); a.I('s_cmp_gt_u32', 's31', str(i)); a.I('s_cbranch_scc0', L)
            a.I('s_branch', back)
        self.slow = []
    def wbase(self, i):
        a = self.a
        a.I('v_readlane_b32', 's35', V(self.dyn), str(i)); a.I('s_mul_i32', 's35', 's35', str(self.KSB))
        a.I('v_add_u32', V(self.dyn+2+(i & 1)), 's35', V(self.VWL[0]))
    def wread(self, Wn, i, T2):
        if self.dyn is not None:
            T, h = divmod(T2, 2)
            if T2 == 0: self.wbase(i)
            self.a.I('ds_read_b64_tr_b16', V(Wn+4*T+2*h,2), V(self.dyn+2+(i & 1)), mods=f'offset:{h*self.HS + T*self.TS}')
            return
        if self.HS is None:
            off = ((self.KSPLIT*i) % self.RK)*self.KSB + T2*1024
            k, o = divmod(off, 65536)
            self.a.I('ds_read_b128', V(Wn+4*T2,4), V(self.VWL[k]), mods=f'offset:{o}')
            return
        T, h = divmod(T2, 2)
        off = ((self.KSPLIT*i) % self.RK)*self.KSB + h*self.HS + T*self.TS
        k, o = divmod(off, 65536)
        self.a.I('ds_read_b64_tr_b16', V(Wn+4*T+2*h,2), V(self.VWL[k]), mods=f'offset:{o}')
    def run(self, extra=None, late=None, st=None, tag=''):
        a, vm, NT = self.a, self.vm, self.NT
        nwb = len(self.WB); pre = nwb-1
        NR = NT if self.HS is None else 2*NT
        nbar = 0
        visible = 0
        def ensure(i):
            nonlocal visible, nbar
            if self.SKo is None: return False
            s = i//self.SKo
            did = False
            while visible < s:
                visible += 1
                a.I('s_waitcnt', 'lgkmcnt(0)'); a.I('s_barrier'); nbar += 1; did = True
            return did
        def swap(i):
            r = self.breg(i)
            if self.sent is not None:
                t = self.sent
                back, slow = uid('SVB'), uid('SVS')
                a.L(back)
                a.I('v_max3_u32', V(t), V(r), V(r+2), V(r+4)); a.I('v_max_u32', V(t), V(t), V(r+6))
                a.I('v_cmp_eq_u32', 'vcc', '-1', V(t)); a.I('s_cbranch_vccnz', slow)
                self.slow.append(('sent', slow, back, i, self.bi))
                a.I('v_swap_b32', V(r+2), V(r+4)); a.I('v_swap_b32', V(r+3), V(r+5))
                a.L(back+'_AFTER')
                return
            a.I('v_swap_b32', V(r+2), V(r+4)); a.I('v_swap_b32', V(r+3), V(r+5))
        for p in range(pre):
            ensure(p)
            for T in range(NR): self.wread(self.WB[p % nwb], p, T)
        vm.wait([('B', id(self), 0)]); swap(0)
        if STAG[0]:
            for k in (1, 2, 3):
                sk = uid('STG')
                a.I('s_cmp_lt_u32', 's24', str(k)); a.I('s_cbranch_scc1', sk); a.I('s_sleep', str(STAG[0])); a.L(sk)
        if st: st.stamp(tag+'b0')
        for i in range(self.own):
            nxt = i + pre; vn = nxt < self.own
            did = ensure(nxt) if vn else False
            if not did:
                n_out = NR*min(pre-1, self.own-1-i)
                a.I('s_waitcnt', f'lgkmcnt({min(15, n_out)})')
            if late: late(i)
            r = self.breg(i)
            Wc = self.WB[i % nwb]; Wn = self.WB[nxt % nwb]
            ins = []
            for T in range(NT):
                for lt in range(2):
                    ins.append(('v_mfma_f32_16x16x32_bf16', V(self.ACC+4*(2*T+lt),4), V(Wc+4*T,4), V(r+4*lt,4), V(self.ACC+4*(2*T+lt),4)))
            if extra: ins += extra(i, [r, r+4])
            rd = 0
            mid = len(ins)//2
            for idx, m in enumerate(ins):
                a.I(*m)
                if vn and rd < NR: self.wread(Wn, nxt, rd); rd += 1
                if idx == LPOS[0]: self.issue_b(i+1+self.DB, part=0)
                if idx == LPOS[1]: self.issue_b(i+1+self.DB, part=1)
                if idx == mid and i+1 < self.own:
                    vm.wait([('B', id(self), i+1)]); swap(i+1)
            while vn and rd < NR: self.wread(Wn, nxt, rd); rd += 1
            if st and i == self.own//2: st.stamp(tag+'mid')
            if st and STEPST[0] and i % 2 == 1: st.stamp(tag+f's{i}')
        return nbar

CSL = UB
def l_csb1(a):
    lds_wait(a, HS_RDY, 1, 8)
    lane(a, 1)
    srd(a, 16, P['b1'], 3456)
    a.I('s_mul_i32', 's34', 's23', '448'); a.I('s_add_u32', 's34', 's34', hex(WS_CS))
    a.I('v_lshlrev_b32', 'v8', '4', 'v1')
    a.I('s_mul_i32', 's35', 's23', '224'); a.I('v_lshlrev_b32', 'v9', '2', 'v1'); a.I('v_add_u32', 'v9', 's35', 'v9')
    a.I('buffer_load_dwordx4', V(16,4), 'v8', S(8,4), 's34', mods='offen sc1')
    a.I('buffer_load_dword', 'v20', 'v9', S(16,4), '0', mods='offen')
    a.I('v_add_u32', 'v8', str(CSL), 'v8'); a.I('v_lshlrev_b32', 'v9', '2', 'v1'); a.I('v_add_u32', 'v9', str(CSL+448), 'v9')
    a.I('s_waitcnt', 'vmcnt(0)')
    a.I('s_mov_b32', 'exec_lo', '0x0fffffff'); a.I('s_mov_b32', 'exec_hi', '0')
    a.I('ds_write_b128', 'v8', V(16,4))
    a.I('s_mov_b32', 'exec_lo', '-1'); a.I('s_mov_b32', 'exec_hi', '0x00ffffff')
    a.I('ds_write_b32', 'v9', 'v20')
    a.I('s_mov_b64', 'exec', '-1')
    a.I('s_waitcnt', 'lgkmcnt(0)')
    lds_signal(a, HS_CSL, 8)

def haggregate(a, st, vb):
    v = lambda k: V(vb+k)
    lane(a, vb)
    a.I('v_lshlrev_b32', v(1), '7', v(0)); a.I('v_add_u32', v(2), '8192', v(1)); a.I('v_and_b32', v(3), '31', v(0)); a.I('v_lshlrev_b32', v(3), '7', v(3)); a.I('v_add_u32', v(3), '16384', v(3))
    a.I('s_mov_b32', 's38', '0'); a.I('s_mov_b32', 's27', hex(WS_FR)); a.I('s_mov_b32', 's101', '0')
    a.I('s_lshl_b32', 's39', 's20', '7'); a.I('s_add_u32', 's39', 's39', hex(WS_AG))
    a.I('v_mov_b32', v(7), '0'); a.I('v_mov_b32', v(9), S(S_NONCE))
    L, E, N_ = uid('AG'), uid('AGX'), uid('AGN')
    a.L(L)
    a.I('s_add_u32', 's101', 's101', '1'); a.I('s_cmp_gt_u32', 's101', str(SPIN_MAX)); a.I('s_cbranch_scc1', E)
    a.I('buffer_load_dword', v(4), v(1), S(8,4), 's27', mods='offen sc1'); a.I('buffer_load_dword', v(5), v(2), S(8,4), 's27', mods='offen sc1'); a.I('buffer_load_dword', v(6), v(3), S(8,4), 's27', mods='offen sc1')
    a.I('s_waitcnt', 'vmcnt(0)')
    a.I('v_cmp_eq_u32', S(40,2), S(S_NONCE), v(4)); a.I('v_cmp_eq_u32', S(42,2), S(S_NONCE), v(5)); a.I('v_cmp_eq_u32', S(44,2), S(S_NONCE), v(6))
    a.I('s_mov_b32', 's34', '0')
    for g in range(20):
        w_, b_ = 40 + g//4, (g % 4)*8
        a.I('s_bfe_u32', 's35', S(w_), hex((8 << 16) | b_)); a.I('s_cmp_eq_u32', 's35', '0xff'); a.I('s_cselect_b32', 's35', hex(1 << g), '0'); a.I('s_or_b32', 's34', 's34', 's35')
    a.I('s_cmp_eq_u32', 's34', 's38'); a.I('s_cbranch_scc1', N_)
    a.I('s_mov_b32', 's38', 's34'); a.I('v_mov_b32', v(8), 's34')
    a.I('s_mov_b64', 'exec', '1')
    a.I('buffer_store_dwordx2', V(vb+8,2), v(7), S(8,4), 's39', mods='offen sc1')
    a.I('s_mov_b64', 'exec', '-1')
    a.L(N_)
    a.I('s_cmp_lg_u32', 's38', '0xfffff'); a.I('s_cbranch_scc1', L)
    a.L(E)
    st.stamp('L:aggdone')

def hpoller(a, st, phase, exit_count, vb):
    v = lambda k: V(vb+k)
    lane(a, vb)
    a.I('v_lshlrev_b32', v(1), '7', v(0)); a.I('v_add_u32', v(2), '8192', v(1)); a.I('v_and_b32', v(3), '31', v(0)); a.I('v_lshlrev_b32', v(3), '7', v(3)); a.I('v_add_u32', v(3), '16384', v(3))
    a.I('v_mov_b32', v(7), str(KQ)); a.I('v_mov_b32', v(8), str(KQ+80))
    if phase == 1:
        a.I('s_mov_b32', 's38', '0'); a.I('s_mov_b32', 's39', '0')
    else:
        lds_wait(a, HS_HAND, 1, vb+9)
        a.I('ds_read_b64', V(vb+10,2), v(8))
        a.I('s_waitcnt', 'lgkmcnt(0)'); a.I('v_readfirstlane_b32', 's39', v(10)); a.I('v_readfirstlane_b32', 's38', v(11))
    a.I('s_lshr_b32', 's27', 's22', '2'); a.I('s_mul_i32', 's27', 's27', str(160*128)); a.I('s_add_u32', 's27', 's27', hex(WS_FH)); a.I('s_mov_b32', 's101', '0')
    L, E, A_, N_ = uid('HP'), uid('HPX'), uid('HPA'), uid('HPN')
    a.I('s_cmp_ge_u32', 's39', str(exit_count)); a.I('s_cbranch_scc1', E)
    a.L(L)
    a.I('s_add_u32', 's101', 's101', '1'); a.I('s_cmp_gt_u32', 's101', str(SPIN_MAX)); a.I('s_cbranch_scc1', E)
    a.I('buffer_load_dword', v(4), v(1), S(8,4), 's27', mods='offen sc1'); a.I('buffer_load_dword', v(5), v(2), S(8,4), 's27', mods='offen sc1'); a.I('buffer_load_dword', v(6), v(3), S(8,4), 's27', mods='offen sc1')
    a.I('s_waitcnt', 'vmcnt(0)')
    a.I('v_cmp_eq_u32', S(40,2), S(S_NONCE), v(4)); a.I('v_cmp_eq_u32', S(42,2), S(S_NONCE), v(5)); a.I('v_cmp_eq_u32', S(44,2), S(S_NONCE), v(6))
    a.I('s_mov_b32', 's34', '0')
    for wi in range(5):
        a.I('s_lshr_b32', 's35', S(40+wi), '4'); a.I('s_and_b32', 's35', 's35', S(40+wi))
        a.I('s_lshr_b32', 's36', 's35', '2'); a.I('s_and_b32', 's35', 's35', 's36')
        a.I('s_lshr_b32', 's36', 's35', '1'); a.I('s_and_b32', 's35', 's35', 's36')
        a.I('s_and_b32', 's35', 's35', '0x01010101')
        a.I('s_mul_i32', 's35', 's35', '0x10204081' if False else '0x01020408'); a.I('s_lshr_b32', 's35', 's35', '24'); a.I('s_and_b32', 's35', 's35', '0xf')
        a.I('s_lshl_b32', 's35', 's35', str(4*wi)); a.I('s_or_b32', 's34', 's34', 's35')
    a.I('s_andn2_b32', 's34', 's34', 's38')
    a.I('s_cmp_eq_u32', 's34', '0'); a.I('s_cbranch_scc1', N_)
    a.I('s_or_b32', 's38', 's38', 's34')
    a.L(A_)
    a.I('s_ff1_i32_b32', 's35', 's34'); a.I('s_bitset0_b32', 's34', 's35')
    a.I('v_mov_b32', v(9), 's35'); a.I('s_lshl_b32', 's36', 's39', '2'); a.I('v_add_u32', v(10), 's36', v(7))
    a.I('ds_write_b32', v(10), v(9))
    a.I('s_add_u32', 's39', 's39', '1')
    a.I('s_cmp_lg_u32', 's34', '0'); a.I('s_cbranch_scc1', A_)
    a.I('v_mov_b32', v(9), 's39'); a.I('ds_write_b32', v(8), v(9))
    a.L(N_)
    a.I('s_cmp_lt_u32', 's39', str(exit_count)); a.I('s_cbranch_scc1', L)
    a.L(E)
    if phase == 1:
        a.I('v_mov_b32', v(9), 's38'); a.I('ds_write_b32', v(8), v(9), mods='offset:4'); a.I('s_waitcnt', 'lgkmcnt(0)')
        lds_signal(a, HS_HAND, vb+9)
        st.stamp('C:h8')
    else:
        st.stamp('L:hall')
        a.I('v_and_b32', v(2), '31', v(0)); a.I('v_lshlrev_b32', v(2), '7', v(2)); a.I('v_add_u32', v(2), '8192', v(2))
        a.I('s_mov_b32', 's27', hex(WS_FR + 160*128))
        poll_flags(a, [vb+1, vb+2], 's27', vb+4)
        lds_signal(a, HS_RDY, vb+9)

def c_prefill(a, conv, sg=(36, 37)):
    lane(a, 200)
    for k in range(4): a.I('v_mov_b32', V(202+k), '-1')
    a.I('v_lshrrev_b32', 'v206', '4', 'v200'); a.I('v_and_b32', 'v207', '15', 'v200')
    a.I('v_lshlrev_b32', 'v201', '14', 'v206'); a.I('v_lshl_add_u32', 'v201', 'v207', '4', 'v201')
    a.I('s_lshl_b32', S(sg[0]), 's22', '10'); a.I('s_lshl_b32', S(sg[1]), 's24', '8'); a.I('s_add_u32', S(sg[0]), S(sg[0]), S(sg[1])); a.I('s_add_u32', S(sg[0]), S(sg[0]), hex(WS_ACT))
    a.I('s_mul_i32', S(sg[1]), 's23', str(7*65536)); a.I('s_add_u32', S(sg[0]), S(sg[0]), S(sg[1]))
    sk = uid('PF')
    for T in range(7):
        if T == 3:
            a.I('s_cmp_eq_u32', 's23', '15'); a.I('s_cbranch_scc1', sk)
        a.I('buffer_store_dwordx4', V(202,4), 'v201', S(8,4), S(sg[0]), mods='offen sc1')
        if T < 6: a.I('s_add_u32', S(sg[0]), S(sg[0]), '65536')
    a.L(sk)
    if conv:
        a.I('v_lshlrev_b32', 'v201', '4', 'v200')
        a.I('s_lshl_b32', S(sg[0]), 's48', '14'); a.I('s_lshl_b32', S(sg[1]), 's24', '12'); a.I('s_add_u32', S(sg[0]), S(sg[0]), S(sg[1])); a.I('s_add_u32', S(sg[0]), S(sg[0]), hex(WS_HT4))
        for i in range(4): a.I('buffer_store_dwordx4', V(202,4), 'v201', S(8,4), S(sg[0]), mods=f'offen offset:{1024*i} sc1')

def nc_prefill(a, which):
    lane(a, 8); a.I('v_lshlrev_b32', 'v8', '4', 'v8')
    for k in range(4): a.I('v_mov_b32', V(12+k), '-1')
    if which == 0:
        a.I('s_lshl_b32', 's25', 's48', '3'); a.I('s_add_u32', 's25', 's25', 's3')
        n, tot, base, nw = 4, 2560, WS_HT4, 768
    else:
        a.I('s_lshl_b32', 's25', 's48', '2'); a.I('s_add_u32', 's25', 's25', 's24')
        n, tot, base, nw = 18, 6912, WS_ACT, 384
    for k in range(n):
        sk = uid('NPF')
        a.I('s_add_u32', 's26', 's25', str(nw*k))
        if nw*(k+1) > tot:
            a.I('s_cmp_ge_u32', 's26', str(tot)); a.I('s_cbranch_scc1', sk)
        a.I('s_lshl_b32', 's27', 's26', '10'); a.I('s_add_u32', 's27', 's27', hex(base))
        a.I('buffer_store_dwordx4', V(12,4), 'v8', S(8,4), 's27', mods='offen sc1')
        a.L(sk)
def nc_prefill_publish(a):
    a.I('s_waitcnt', 'vmcnt(0)')
    a.I('s_lshl_b32', 's27', 's48', '7'); a.I('s_add_u32', 's27', 's27', hex(WS_FP))
    publish_last(a, LSYNC, 3, 8, 's27', 16)

def prefill_aggregate(a):
    sk = uid('NA')
    a.I('s_cmp_lg_u32', 's48', '95'); a.I('s_cbranch_scc1', sk); a.I('s_cmp_lg_u32', 's3', '3'); a.I('s_cbranch_scc1', sk)
    lane(a, 10); a.I('v_lshlrev_b32', 'v8', '7', 'v10'); a.I('v_and_b32', 'v9', '31', 'v10'); a.I('v_lshlrev_b32', 'v9', '7', 'v9'); a.I('v_add_u32', 'v9', '8192', 'v9')
    a.I('s_mov_b32', 's27', hex(WS_FP))
    poll_flags(a, [8, 9], 's27', 12)
    a.I('v_mov_b32', 'v36', '0'); a.I('v_mov_b32', 'v37', S(S_NONCE))
    a.I('s_mov_b32', 's27', hex(WS_GO))
    a.I('s_mov_b64', 'exec', '1')
    a.I('buffer_store_dword', 'v37', 'v36', S(8,4), 's27', mods='offen sc1')
    a.I('s_mov_b64', 'exec', '-1')
    a.L(sk)

def c_common_regs(a):
    lane(a, 1)
    a.I('v_lshlrev_b32', 'v3', '4', 'v1'); a.I('v_lshrrev_b32', 'v7', '4', 'v1'); a.I('v_and_b32', 'v6', '15', 'v1')
    a.I('v_lshlrev_b32', 'v4', '14', 'v7'); a.I('v_lshl_add_u32', 'v4', 'v6', '4', 'v4'); a.I('v_add_u32', 'v5', '0x10000', 'v4')

def w_addr(a, rowb, colb, extra_sgpr=None):
    a.I('v_lshrrev_b32', 'v3', '2', 'v6'); a.I('v_lshl_add_u32', 'v3', 'v7', '2', 'v3'); a.I('v_mul_u32_u24', 'v3', str(rowb), 'v3')
    a.I('v_and_b32', 'v2', '3', 'v6'); a.I('v_mul_u32_u24', 'v2', str(colb), 'v2'); a.I('v_add_u32', 'v3', 'v3', 'v2')
    if extra_sgpr is not None: a.I('v_add_u32', 'v3', S(extra_sgpr), 'v3')
    a.I('v_add_u32', 'v2', '0x10000', 'v3'); a.I('v_add_u32', 'v1', '0x20000', 'v3')

def c_gemm1(a, vm, st, done_label, DB=None):
    DB = DB1[0]
    ACC, WB, SUM, GRAM, ONES, BB, CSR, B1R = 8, (64, 92, 120), 148, 156, 164, 168, 120, 240
    assert BB + 8*(DB+1) <= 252
    c_common_regs(a)
    w_addr(a, 224, 8)
    a.I('s_lshl_b32', 's30', 's22', '10'); a.I('s_lshl_b32', 's31', 's24', '8'); a.I('s_add_u32', 's30', 's30', 's31')
    a.I('s_add_u32', 's26', 's30', hex(WS_HT4))
    a.I('s_mul_i32', 's25', 's23', '224')
    for k in range(56): a.I('v_mov_b32', V(ACC+k), '0')
    for k in range(16): a.I('v_mov_b32', V(SUM+k), '0')
    for k in range(4): a.I('v_mov_b32', V(ONES+k), '0x3f803f80')
    srd(a, 12, P['b1'], 3456)
    g = GemmC(a, vm, 7, 20, 1, 20, 7168, 3584, 32, DB, 26, ACC, WB, BB, [3, 2, 1], 33, BM[0], sent=252)
    a.I('s_mov_b32', 's100', '0')
    lds_wait(a, HS_GC, 1, 252)
    g.spin_first(252)
    g.issue_b(DB)
    lds_wait(a, HS_W1W, 4, 252)
    st.stamp('C:bar3')
    def extra(i, b):
        r = []
        for lt in range(2):
            r.append(('v_mfma_f32_16x16x32_bf16', V(SUM+4*lt,4), V(ONES,4), V(b[lt],4), V(SUM+4*lt,4)))
            r.append(('v_mfma_f32_16x16x32_bf16', V(GRAM+4*lt,4), V(b[lt],4), V(b[lt],4), V(GRAM+4*lt,4)))
        return r
    def late(i):
        if i == GO_STEP[0]: lds_signal(a, HS_GO, 252)
    g.run(extra=extra, late=late, st=st, tag='C:g1')
    SLOWG.append(g)
    a.I('s_waitcnt', 'lgkmcnt(0)')
    lds_signal(a, HS_G1D, WB[0])
    st.stamp('C:loop1end')
    TMP = BB+64+12
    a.I('v_and_b32', V(WB[1]+1), '3', 'v6'); a.I('v_lshrrev_b32', V(WB[1]+2), '2', 'v6')
    RS, MR = WB[0], WB[0]+4
    Tm = WB[1]
    for lt in range(2):
        gg = GRAM+4*lt; d = Tm+4+lt
        a.I('v_mov_b32', V(d), V(gg))
        for r in (1, 2, 3):
            a.I('v_cmp_eq_u32', 'vcc', str(r), V(Tm+1)); a.I('v_cndmask_b32', V(d), V(d), V(gg+r), 'vcc')
        a.I('v_cmp_eq_u32', 'vcc', V(Tm+2), 'v7'); a.I('v_cndmask_b32', V(d), '0', V(d), 'vcc')
    for sw in ('v_permlane16_swap_b32', 'v_permlane32_swap_b32'):
        for lt in range(2): a.I('v_mov_b32', V(Tm+6+lt), V(Tm+4+lt))
        for lt in range(2): a.I(sw, V(Tm+4+lt), V(Tm+6+lt))
        for lt in range(2): a.I('v_add_f32', V(Tm+4+lt), V(Tm+4+lt), V(Tm+6+lt))
    for lt in range(2):
        m, qv = SUM+4*lt, Tm+4+lt
        a.I('v_mul_f32', V(m), '0x3acccccd', V(m)); a.I('v_mul_f32', V(qv), '0x3acccccd', V(qv))
        a.I('v_fma_f32', V(qv), '-'+V(m), V(m), V(qv)); a.I('v_add_f32', V(qv), '0x3727c5ac', V(qv)); a.I('v_rsq_f32', V(qv), V(qv))
        a.I('v_mul_f32', V(RS+2*lt), hex(LOG2E), V(qv)); a.I('v_mul_f32', V(MR+2*lt), V(m), V(RS+2*lt))
    a.I('s_add_u32', 's42', 's30', hex(WS_ACT)); a.I('s_mul_i32', 's43', 's23', '7')
    lds_wait(a, HS_CSL, 1, Tm)
    a.I('v_lshlrev_b32', V(Tm+8), '4', 'v7'); a.I('v_add_u32', V(Tm+8), str(CSL), V(Tm+8))
    a.I('v_lshlrev_b32', V(Tm+9), '3', 'v7'); a.I('v_add_u32', V(Tm+9), str(CSL+448), V(Tm+9))
    for T in range(7):
        a.I('ds_read_b128', V(CSR+4*T,4), V(Tm+8), mods=f'offset:{64*T}'); a.I('ds_read_b64', V(B1R+2*T,2), V(Tm+9), mods=f'offset:{32*T}')
    a.I('s_waitcnt', 'lgkmcnt(0)')
    work = BB
    L2P, LNP, B1, X = work, work+2, work+4, work+8
    a.I('s_mov_b32', 's38', hex(LOG2E)); a.I('s_mov_b32', 's39', hex(LOG2E))
    a.I('s_mov_b32', 's40', hex(f2u(-2.0))); a.I('s_mov_b32', 's41', hex(f2u(-2.0)))
    twoL = hex(f2u(2*1.4426950408889634))
    a.I('v_mov_b32', V(L2P), twoL); a.I('v_mov_b32', V(L2P+1), twoL); a.I('v_mov_b32', V(LNP), hex(LN2)); a.I('v_mov_b32', V(LNP+1), hex(LN2))
    for T in range(7):
        a.I('s_add_u32', 's36', 's43', str(T))
        a.I('s_cmp_ge_u32', 's36', '108'); a.I('s_cbranch_scc1', done_label)
        a.I('s_lshl_b32', 's36', 's36', '16'); a.I('s_add_u32', 's36', 's36', 's42')
        CS = CSR+4*T; b = B1R+2*T
        a.I('v_lshlrev_b32', V(B1), '16', V(b)); a.I('v_and_b32', V(B1+1), '0xffff0000', V(b))
        a.I('v_lshlrev_b32', V(B1+2), '16', V(b+1)); a.I('v_and_b32', V(B1+3), '0xffff0000', V(b+1))
        a.I('v_pk_mul_f32', V(B1,2), V(B1,2), S(38,2)); a.I('v_pk_mul_f32', V(B1+2,2), V(B1+2,2), S(38,2))
        base = X + 32*(T & 1)
        xs = [base, base+12]; O = base+24
        for lt in range(2):
            x = xs[lt]; ac = ACC+4*(2*T+lt)
            for p in range(2): a.I('v_pk_fma_f32', V(x+2*p,2), V(CS+2*p,2), V(MR+2*lt,2), V(B1+2*p,2), mods='op_sel_hi:[1,0,1] neg_lo:[0,1,0] neg_hi:[0,1,0]')
            for p in range(2): a.I('v_pk_fma_f32', V(x+2*p,2), V(ac+2*p,2), V(RS+2*lt,2), V(x+2*p,2), mods='op_sel_hi:[1,0,1]')
        for lt in range(2):
            for r in range(4): a.I('v_exp_f32', V(xs[lt]+4+r), V(xs[lt]+r))
        for lt in range(2):
            x = xs[lt]
            for p in range(2): a.I('v_pk_fma_f32', V(x+8+2*p,2), V(x+4+2*p,2), S(38,2), V(L2P,2))
            for p in range(2): a.I('v_pk_fma_f32', V(x+8+2*p,2), V(x+4+2*p,2), V(x+8+2*p,2), V(L2P,2))
        for lt in range(2):
            for r in range(4): a.I('v_rcp_f32', V(xs[lt]+8+r), V(xs[lt]+8+r))
        for lt in range(2):
            x = xs[lt]
            for p in range(2): a.I('v_pk_fma_f32', V(x+8+2*p,2), V(x+8+2*p,2), S(40,2), V(LNP,2))
            for p in range(2): a.I('v_pk_mul_f32', V(x+2*p,2), V(x+2*p,2), V(x+8+2*p,2))
            a.I('v_cvt_pk_bf16_f32', V(O+2*lt), V(x), V(x+1)); a.I('v_cvt_pk_bf16_f32', V(O+2*lt+1), V(x+2), V(x+3))
        a.I('buffer_store_dwordx4', V(O,4), 'v4', S(8,4), 's36', mods='offen sc1'); vm.op('st')

def g2_params(a):
    a.I('s_lshr_b32', 's50', 's23', '3'); a.I('s_lshl_b32', 's51', 's22', '1'); a.I('s_add_u32', 's50', 's50', 's51')
    a.I('s_and_b32', 's51', 's23', '7')
    a.I('s_mul_i32', 's45', 's51', '27'); a.I('s_lshr_b32', 's45', 's45', '3')
    if not ROT[0]: a.I('s_mov_b32', 's45', '0')
    a.I('s_and_b32', 's52', 's24', '1'); a.I('s_lshr_b32', 's53', 's24', '1')

def c_gemm2(a, vm, st, DB=None):
    DB = DB2[0]
    ACC, WB, BB, RES, TMP = 8, (48, 68, 88), 108, 228, 240
    g2_params(a)
    a.I('s_lshl_b32', 's55', 's50', '6'); a.I('s_lshl_b32', 's56', 's52', '5'); a.I('s_add_u32', 's55', 's55', 's56')
    a.I('s_lshl_b32', 's56', 's55', '3'); a.I('s_lshl_b32', 's57', 's53', '17'); a.I('s_add_u32', 's56', 's56', 's57'); a.I('s_add_u32', 's56', 's56', hex(WS_ACT))
    g = GemmC(a, vm, 5, 27, 2, 24, 5120, None, None, DB, 56, ACC, WB, BB, [3, 2, 1], 33, BM[0], SKo=6, rot=None, sent=242)
    SLOWG.append(g)
    a.I('s_mov_b32', 's100', '0')
    g.spin_first(242)
    g.issue_b(DB)
    a.I('s_mul_i32', 's57', 's53', '5120')
    a.I('v_add_u32', 'v3', 's57', 'v3'); a.I('v_add_u32', 'v2', '0x10000', 'v3'); a.I('v_add_u32', 'v1', '0x20000', 'v3')
    for k in range(40): a.I('v_mov_b32', V(ACC+k), '0')
    lds_wait(a, HS_W2W, 4, TMP)
    st.stamp('C:bar5')
    def late(i):
        if i != 20: return
        a.I('v_mul_u32_u24', V(TMP), str(5*GS), 'v7'); a.I('v_lshl_add_u32', V(TMP), 'v6', '4', V(TMP))
        a.I('s_add_u32', 's58', 's55', 's53'); a.I('s_lshl_b32', 's58', 's58', '3'); a.I('s_mul_i32', 's59', 's51', str(20*GS)); a.I('s_add_u32', 's58', 's58', 's59'); a.I('s_add_u32', 's58', 's58', hex(WS_HT4))
        for T in range(5):
            a.I('buffer_load_dwordx2', V(RES+2*T,2), V(TMP), S(8,4), 's58', mods='offen sc1'); vm.op('res')
            if T < 4: a.I('s_add_u32', 's58', 's58', str(GS))
    nb = g.run(late=late, st=st, tag='C:g2')
    st.stamp('C:loop2end')
    a.I('s_waitcnt', 'lgkmcnt(0)'); a.I('s_barrier')
    lane(a, 3); a.I('v_lshlrev_b32', 'v3', '4', 'v3')
    a.I('s_mul_i32', 's57', 's24', '5120'); a.I('v_add_u32', V(TMP+1), 's57', 'v3')
    a.I('s_xor_b32', 's59', 's24', '2'); a.I('s_mul_i32', 's59', 's59', '5120'); a.I('v_add_u32', V(TMP+2), 's59', 'v3')
    K = WB[0]
    l0, l1 = uid('KH0'), uid('RED')
    a.I('s_cmp_eq_u32', 's53', '0'); a.I('s_cbranch_scc1', l0)
    for T in range(5):
        a.I('ds_write_b128', V(TMP+1), V(ACC+8*T,4), mods=f'offset:{1024*T}')
        for r in range(4): a.I('v_mov_b32', V(K+4*T+r), V(ACC+8*T+4+r))
    a.I('s_branch', l1)
    a.L(l0)
    for T in range(5):
        a.I('ds_write_b128', V(TMP+1), V(ACC+8*T+4,4), mods=f'offset:{1024*T}')
        for r in range(4): a.I('v_mov_b32', V(K+4*T+r), V(ACC+8*T+r))
    a.L(l1)
    a.I('s_waitcnt', 'lgkmcnt(0)'); a.I('s_barrier')
    R = WB[1]
    for T in range(5): a.I('ds_read_b128', V(R+4*T,4), V(TMP+2), mods=f'offset:{1024*T}')
    srd(a, 16, P['out'], 2048*1280)
    a.I('v_mul_u32_u24', V(TMP), '2560', 'v6'); a.I('v_mul_u32_u24', V(TMP+3), '40', 'v7'); a.I('v_add_u32', V(TMP), V(TMP), V(TMP+3))
    a.I('s_add_u32', 's58', 's55', 's53'); a.I('s_mul_i32', 's58', 's58', '1280'); a.I('s_mul_i32', 's59', 's51', '160'); a.I('s_add_u32', 's58', 's58', 's59')
    vm.wait(['res'])
    X = WB[2]
    for T in range(5):
        a.I('s_waitcnt', f'lgkmcnt({4-T})')
        r0, r1 = RES+2*T, RES+2*T+1
        a.I('v_lshlrev_b32', V(X+4*T), '16', V(r0)); a.I('v_and_b32', V(X+4*T+1), '0xffff0000', V(r0))
        a.I('v_lshlrev_b32', V(X+4*T+2), '16', V(r1)); a.I('v_and_b32', V(X+4*T+3), '0xffff0000', V(r1))
        for r in range(4):
            a.I('v_add_f32', V(K+4*T+r), V(K+4*T+r), V(R+4*T+r)); a.I('v_add_f32', V(X+4*T+r), V(X+4*T+r), V(K+4*T+r))
        a.I('v_cvt_pk_bf16_f32', V(r0), V(X+4*T), V(X+4*T+1)); a.I('v_cvt_pk_bf16_f32', V(r1), V(X+4*T+2), V(X+4*T+3))
        a.I('buffer_store_dwordx2', V(r0,2), V(TMP), S(16,4), 's58', mods=f'offen offset:{8*T}'+OUTM[0]); vm.op('out')
    return nb + 2

W1R = 96
def l_w1_issue(a, vm, throttle=None):
    lane(a, 1)
    a.I('v_mul_u32_u24', 'v2', '4682', 'v1'); a.I('v_lshrrev_b32', 'v2', '16', 'v2')
    a.I('v_mul_u32_u24', 'v3', '14', 'v2'); a.I('v_sub_u32', 'v3', 'v1', 'v3'); a.I('v_lshlrev_b32', 'v3', '4', 'v3')
    a.I('s_mul_i32', 's25', 's23', '224'); a.I('v_add_u32', 'v3', 's25', 'v3'); a.I('v_min_u32', 'v3', '3440', 'v3')
    a.I('v_mul_u32_u24', 'v2', '3456', 'v2'); a.I('v_add_u32', 'v2', 'v2', 'v3')
    srd(a, 12, P['w1'], 640*3456)
    a.I('s_mul_i32', 's26', 's24', '13824')
    a.I('s_mov_b32', 'exec_lo', '-1'); a.I('s_mov_b32', 'exec_hi', '0x00ffffff')
    for i in range(40):
        a.I('s_add_u32', 's27', 's26', str(i*4*13824))
        a.I('buffer_load_dwordx4', V(W1R+4*i,4), 'v2', S(12,4), 's27', mods='offen'); vm.op(('w1', i))
        if throttle and i >= throttle: vm.wait([('w1', i-throttle)])
    a.I('s_mov_b64', 'exec', '-1')
def l_w1_write(a, vm, lo=0, hi=40):
    lane(a, 1)
    a.I('s_mul_i32', 's26', 's24', '896'); a.I('v_lshlrev_b32', 'v3', '4', 'v1'); a.I('v_add_u32', 'v3', 's26', 'v3')
    a.I('v_add_u32', 'v4', '0x10000', 'v3'); a.I('v_add_u32', 'v5', '0x20000', 'v3')
    a.I('s_mov_b32', 'exec_lo', '-1'); a.I('s_mov_b32', 'exec_hi', '0x00ffffff')
    for i in range(lo, hi):
        if vm: vm.wait([('w1', i)])
        k, o = divmod(i*3584, 65536)
        a.I('ds_write_b128', V(3+k), V(W1R+4*i,4), mods=f'offset:{o}')
    a.I('s_mov_b64', 'exec', '-1')
    a.I('s_waitcnt', 'lgkmcnt(0)')

W2R = 16
def w2reg(n): return W2R + 4*(n % 60)
def l_w2_setup(a, keep_w1=False):
    g2_params(a)
    lane(a, 1); a.I('v_lshlrev_b32', 'v6', '4', 'v1')
    a.I('s_lshl_b32', 's27', 's24', '10')
    a.I('s_mul_i32', 's46', 's51', str(270*1024)); a.I('s_add_u32', 's46', 's46', hex(WS_W2F))
    a.I('s_mul_i32', 's44', 's45', '10240'); a.I('s_add_u32', 's44', 's44', 's27')
    a.I('v_add_u32', 'v12', 's27', 'v6'); a.I('v_add_u32', 'v13', '0x10000', 'v12'); a.I('v_add_u32', 'v14', '0x20000', 'v12')
def l_w2_issue(a, vm, lo, hi, throttle=None):
    for n in range(lo, hi):
        a.I('s_add_u32', 's27', 's44', str(4*n*1024)); a.I('s_sub_u32', 's35', 's27', str(270*1024))
        a.I('s_cmp_ge_u32', 's27', str(270*1024)); a.I('s_cselect_b32', 's27', 's35', 's27'); a.I('s_add_u32', 's27', 's27', 's46')
        a.I('buffer_load_dwordx4', V(w2reg(n),4), 'v6', S(8,4), 's27', mods='offen sc1'); vm.op(('w2', n))
        if throttle and n-lo >= throttle: vm.wait([('w2', n-throttle)])
def l_w2_write(a, vm, ns):
    for n in ns:
        vm.wait([('w2', n)])
        kk, o = divmod(((4*n) % 120)*1024, 65536)
        a.I('ds_write_b128', V(12+kk), V(w2reg(n),4), mods=f'offset:{o}')
def l_gemm2(a, vm, nbar_total):
    for v in range(1, 5):
        a.I('s_barrier')
        if v + 1 <= 4:
            l_w2_write(a, vm, [n for n in range(15*(v+1), 15*(v+2)) if n <= 67])
            a.I('s_waitcnt', 'lgkmcnt(0)')
    for _ in range(nbar_total - 4): a.I('s_barrier')
```

```python
from common import *

def l_stats(a, vm, st):
    a.I('v_lshrrev_b32', 'v8', '5', 'v1'); a.I('v_and_b32', 'v9', '31', 'v1')
    a.I('v_mul_u32_u24', 'v10', '1280', 'v8'); a.I('v_lshl_add_u32', 'v10', 'v9', '4', 'v10')
    a.I('v_mov_b32', 'v11', '0x7ffffff0'); a.I('v_cmp_gt_u32', 'vcc', '16', 'v9'); a.I('v_cndmask_b32', 'v11', 'v11', 'v10', 'vcc')
    a.I('s_lshl_b32', 's25', 's2', '3'); a.I('s_lshl_b32', 's26', 's24', '1'); a.I('s_add_u32', 's25', 's25', 's26')
    a.I('s_mul_i32', 's26', 's25', '1280')
    srd(a, 12, P['x'], 2621440)
    a.I('buffer_load_dwordx4', V(12,4), 'v10', S(12,4), 's26', mods='offen')
    a.I('buffer_load_dwordx4', V(16,4), 'v10', S(12,4), 's26', mods='offen offset:512')
    a.I('buffer_load_dwordx4', V(20,4), 'v11', S(12,4), 's26', mods='offen offset:1024')
    sk = uid('NP')
    a.I('s_cmp_lg_u32', 's2', '0'); a.I('s_cbranch_scc1', sk); a.I('s_cmp_lg_u32', 's24', '0'); a.I('s_cbranch_scc1', sk)
    a.I('v_mov_b32', 'v48', '0'); a.I('s_mov_b32', 's27', hex(WS_NONCE))
    a.I('buffer_load_dword', 'v49', 'v48', S(8,4), 's27', mods='offen sc1'); a.I('s_waitcnt', 'vmcnt(0)')
    a.I('v_add_u32', 'v49', '1', 'v49'); a.I('v_or_b32', 'v49', '0x80000000', 'v49')
    a.I('s_mov_b64', 'exec', '1')
    a.I('buffer_store_dword', 'v49', 'v48', S(60,4), '0', mods='offen sc1')
    a.I('buffer_store_dword', 'v49', 'v48', S(8,4), 's27', mods='offen sc1')
    a.I('s_mov_b64', 'exec', '-1')
    a.L(sk)
    a.I('s_waitcnt', 'vmcnt(0)')
    st.stamp('L:xrow')
    U = 24
    for k in range(12):
        a.I('v_lshlrev_b32', V(U+2*k), '16', V(12+k)); a.I('v_and_b32', V(U+2*k+1), '0xffff0000', V(12+k))
    a.I('v_pk_add_f32', V(12,2), V(U,2), V(U+2,2))
    for k in range(2, 12): a.I('v_pk_add_f32', V(12,2), V(12,2), V(U+2*k,2))
    a.I('v_add_f32', 'v12', 'v12', 'v13')
    def red32(r):
        for sh in (8, 4, 2, 1): a.I('v_add_f32_dpp', V(r), V(r), V(r), mods=f'row_ror:{sh} row_mask:0xf bank_mask:0xf')
        a.I('v_mov_b32', 'v15', V(r)); a.I('v_permlane16_swap_b32', V(r), 'v15'); a.I('v_add_f32', V(r), V(r), 'v15')
    red32(12)
    a.I('v_mul_f32', 'v12', '0x3acccccd', 'v12')
    a.I('v_cmp_gt_u32', 'vcc', '16', 'v9')
    for k in range(16, 24): a.I('v_cndmask_b32', V(U+k), 'v12', V(U+k), 'vcc')
    a.I('v_mov_b32', 'v13', 'v12')
    for k in range(12): a.I('v_pk_add_f32', V(U+2*k,2), V(U+2*k,2), V(12,2), mods='neg_lo:[0,1] neg_hi:[0,1]')
    a.I('v_pk_mul_f32', V(14,2), V(U,2), V(U,2))
    for k in range(1, 12): a.I('v_pk_fma_f32', V(14,2), V(U+2*k,2), V(U+2*k,2), V(14,2))
    a.I('v_add_f32', 'v14', 'v14', 'v15')
    red32(14)
    a.I('v_mov_b32', 'v13', '0x3727c5ac'); a.I('v_fmac_f32', 'v13', '0x3acccccd', 'v14'); a.I('v_rsq_f32', 'v13', 'v13')
    a.I('v_lshlrev_b32', 'v8', '3', 'v8')
    a.I('s_lshl_b32', 's26', 's25', '3'); a.I('s_add_u32', 's26', 's26', hex(WS_STAT))
    a.I('s_mov_b32', 'exec_lo', '1'); a.I('s_mov_b32', 'exec_hi', '1')
    a.I('buffer_store_dwordx2', V(12,2), 'v8', S(8,4), 's26', mods='offen sc1')
    a.I('s_mov_b64', 'exec', '-1')
    get_nonce(a, 16)
    a.I('s_lshl_b32', 's27', 's2', '6'); a.I('s_add_u32', 's27', 's27', hex(WS_FS))
    publish_last(a, LSYNC, 24, 4, 's27', 16)
    st.stamp('L:statpub')

XR, SR, UR = 64, 80, 96
def l_gather_u(a, vm, st):
    a.I('s_lshl_b32', 's25', 's24', '8'); a.I('v_add_u32', 'v8', 's25', 'v1')
    a.I('v_mul_u32_u24', 'v9', '2560', 'v8')
    a.I('s_lshl_b32', 's26', 's48', '3')
    for i in range(4):
        a.I('s_add_u32', 's27', 's26', str(i*64*2560))
        a.I('buffer_load_dwordx2', V(XR+4*i,2), 'v9', S(12,4), 's27', mods='offen')
        a.I('buffer_load_dwordx2', V(XR+4*i+2,2), 'v9', S(12,4), 's27', mods='offen offset:1280')
    st.stamp('L:gissued')
    a.I('s_lshl_b32', 's27', 's48', '3'); a.I('s_add_u32', 's6', S(P['D']), 's27'); a.I('s_addc_u32', 's7', S(P['D']+1), '0')
    a.I('s_load_dwordx2', S(36,2), S(6,2), '0')
    a.I('s_mul_i32', 's27', 's24', '4608'); a.I('s_add_u32', 's27', 's27', str(UB))
    a.I('v_lshlrev_b32', 'v10', '3', 'v1'); a.I('v_add_u32', 'v10', 's27', 'v10')
    a.I('v_mov_b32', 'v12', '0'); a.I('v_mov_b32', 'v13', '0'); a.I('ds_write_b64', 'v10', V(12,2))
    a.I('s_lshl_b32', 's27', 's24', '12'); a.I('s_add_u32', 's27', 's27', hex(WS_FS))
    a.I('v_lshlrev_b32', 'v11', '6', 'v1')
    poll_flags(a, [11], 's27', 14)
    st.stamp('L:B1')
    a.I('v_lshlrev_b32', 'v11', '4', 'v8')
    for i in range(4):
        a.I('s_mov_b32', 's27', hex(WS_STAT + i*1024))
        a.I('buffer_load_dwordx4', V(SR+4*i,4), 'v11', S(8,4), 's27', mods='offen sc1')
    a.I('v_lshlrev_b32', 'v10', '2', 'v8'); a.I('v_add_u32', 'v10', str(UB+512), 'v10')
    for i in range(4):
        a.I('s_waitcnt', f'vmcnt({3-i})')
        x, s_ = XR+4*i, SR+4*i
        T = 16
        for h in range(2):
            for dwi in range(2):
                r = x + 2*h + dwi
                a.I('v_lshlrev_b32', V(T+4*h+2*dwi), '16', V(r)); a.I('v_and_b32', V(T+4*h+2*dwi+1), '0xffff0000', V(r))
            for c in range(4):
                a.I('v_sub_f32', V(T+4*h+c), V(T+4*h+c), V(s_+2*h)); a.I('v_mul_f32', V(T+4*h+c), V(T+4*h+c), V(s_+2*h+1))
        for c in range(4):
            a.I('v_cvt_pk_bf16_f32', V(UR+4*i+c), V(T+c), V(T+4+c))
            a.I('ds_write_b32', 'v10', V(UR+4*i+c), mods=f'offset:{c*4608+256*i}')
    a.I('s_waitcnt', 'lgkmcnt(0)')
    st.stamp('L:udone')

def l_hstore(a, vm, st):
    a.I('v_subrev_u32', 'v10', '512', 'v10')
    B = 112
    for i in range(4):
        for c in range(4): a.I('ds_read_b32', V(B+4*i+c), 'v10', mods=f'offset:{c*4608+256*i}')
    a.I('s_lshl_b32', 's38', 's36', '16'); a.I('s_and_b32', 's39', 's36', '0xffff0000'); a.I('s_lshl_b32', 's40', 's37', '16'); a.I('s_and_b32', 's41', 's37', '0xffff0000')
    a.I('s_lshl_b32', 's27', 's48', '14'); a.I('s_add_u32', 's27', 's27', hex(WS_HT4))
    a.I('v_lshlrev_b32', 'v11', '4', 'v8')
    for i in range(4):
        a.I('s_waitcnt', f'lgkmcnt({4*(3-i)})')
        T = 16; H = 24; x = XR+4*i
        for c in range(4):
            u, y = UR+4*i+c, B+4*i+c
            a.I('v_lshlrev_b32', V(T), '16', V(u)); a.I('v_and_b32', V(T+1), '0xffff0000', V(u))
            a.I('v_lshlrev_b32', V(T+2), '16', V(y)); a.I('v_and_b32', V(T+3), '0xffff0000', V(y))
            a.I('v_fmac_f32', V(T+2), S(38+c), V(T)); a.I('v_fmac_f32', V(T+3), S(38+c), V(T+1))
            xl, xh = x + c//2, x + 2 + c//2
            if c % 2 == 0:
                a.I('v_lshlrev_b32', V(T), '16', V(xl)); a.I('v_lshlrev_b32', V(T+1), '16', V(xh))
            else:
                a.I('v_and_b32', V(T), '0xffff0000', V(xl)); a.I('v_and_b32', V(T+1), '0xffff0000', V(xh))
            a.I('v_add_f32', V(H+c), V(T), V(T+2)); a.I('v_add_f32', V(H+4+c), V(T+1), V(T+3))
        O = 128 + 4*i
        a.I('v_cvt_pk_bf16_f32', V(O), V(H), V(H+1)); a.I('v_cvt_pk_bf16_f32', V(O+1), V(H+2), V(H+3))
        a.I('v_cvt_pk_bf16_f32', V(O+2), V(H+4), V(H+5)); a.I('v_cvt_pk_bf16_f32', V(O+3), V(H+6), V(H+7))
        a.I('s_add_u32', 's28', 's27', str(1024*i))
        a.I('buffer_store_dwordx4', V(O,4), 'v11', S(8,4), 's28', mods='offen sc1'); vm.op('hst')

def c_kgen(a, st):
    a.I('s_lshl_b32', 's25', 's48', '2'); a.I('s_add_u32', 's25', 's25', 's24')
    a.I('s_lshl_b32', 's26', 's25', '8')
    a.I('v_lshlrev_b32', 'v3', '1', 'v1')
    names = ['Are', 'Aim', 'Bre', 'Bim', 'Cre', 'Cim']
    for i, n in enumerate(names):
        srd(a, 12, P[n], 640*128*2)
        a.I('buffer_load_ushort', V(10+i), 'v3', S(12,4), 's26', mods='offen')
        a.I('buffer_load_ushort', V(56+i), 'v3', S(12,4), 's26', mods='offen offset:128')
    srd(a, 12, P['logdt'], 1280)
    a.I('s_lshl_b32', 's27', 's25', '1'); a.I('v_mov_b32', 'v4', 's27')
    a.I('buffer_load_ushort', 'v16', 'v4', S(12,4), '0', mods='offen')
    a.I('s_mul_i32', 's28', 's24', str(EREG))
    a.I('v_lshlrev_b32', 'v6', '2', 'v1'); a.I('v_add_u32', 'v6', 's28', 'v6')
    a.I('v_add_u32', 'v5', str(E1O), 'v6')
    a.I('s_waitcnt', 'vmcnt(0)')
    st.stamp('C:params')
    a.I('v_lshlrev_b32', 'v16', '16', 'v16')
    a.I('v_mul_f32', 'v16', hex(LOG2E), 'v16'); a.I('v_exp_f32', 'v16', 'v16')
    a.I('v_cvt_pk_bf16_f32', 'v16', 'v16', 'v16'); a.I('v_lshlrev_b32', 'v62', '16', 'v16')
    for half in range(2):
        src = 10 if half == 0 else 56
        off = 256*half
        for i in range(6): a.I('v_lshlrev_b32', V(10+i), '16', V(src+i))
        a.I('v_mul_f32', 'v10', 'v62', 'v10'); a.I('v_mul_f32', 'v11', 'v62', 'v11')
        a.I('v_mul_f32', 'v10', hex(LOG2E), 'v10'); a.I('v_mul_f32', 'v11', hex(INV2PI), 'v11')
        a.I('v_mul_f32', 'v12', 'v62', 'v12'); a.I('v_mul_f32', 'v13', 'v62', 'v13')
        T = 18
        cmul(a, 20, 14, 12, T)
        def cis(d, v):
            a.I('v_mul_f32', V(d), hex(f2u(float(v))), 'v10'); a.I('v_mul_f32', V(d+1), hex(f2u(float(v))), 'v11')
            a.I('v_exp_f32', V(d), V(d)); a.I('v_fract_f32', V(d+1), V(d+1))
            a.I('v_cos_f32', V(T), V(d+1)); a.I('v_sin_f32', V(d+1), V(d+1))
            a.I('v_mul_f32', V(d+1), V(d), V(d+1)); a.I('v_mul_f32', V(d), V(d), V(T))
        g1, g2, g3, g4, g5, g6, g7, g8 = 22, 24, 26, 28, 30, 32, 34, 36
        g256, g512, g1024, g768, tmp = 38, 40, 42, 44, 46
        cis(g1, 1); cis(g8, 8); cis(g256, 256); cis(g512, 512); cis(g1024, 1024)
        cmul(a, g2, g1, g1, T); cmul(a, g3, g2, g1, T); cmul(a, g4, g2, g2, T); cmul(a, g5, g4, g1, T); cmul(a, g6, g3, g3, T); cmul(a, g7, g4, g3, T)
        cmul(a, g768, g512, g256, T)
        pk = 48; cnt = [0]
        def st2(row, s_):
            r = pk + (cnt[0] & 3); cnt[0] += 1
            a.I('v_cvt_pk_bf16_f32', V(r), V(s_), '-'+V(s_+1))
            a.I('ds_write_b32', 'v6', V(r), mods=f'offset:{row*ROW+off}')
        a.I('v_mov_b32', V(pk), '0x3f80'); a.I('ds_write_b32', 'v6', V(pk), mods=f'offset:{off}'); cnt[0] = 1
        for row, g in zip(range(1, 8), (g1, g2, g3, g4, g5, g6, g7)): st2(row, g)
        st2(8, g256)
        for row, (p, q) in zip((9, 10, 11), ((g256, g2), (g256, g4), (g256, g6))): cmul(a, tmp, p, q, T); st2(row, tmp)
        st2(12, g512); cmul(a, tmp, g512, g4, T); st2(13, tmp)
        st2(14, g768); cmul(a, tmp, g768, g4, T); st2(15, tmp)
        st2(16, g1024)
        for row, (p, q) in zip((17, 18, 19, 20), ((g1024, g256), (g1024, g512), (g1024, g768), (g1024, g1024))): cmul(a, tmp, p, q, T); st2(row, tmp)
        for row in range(32):
            r = pk + (cnt[0] & 3); cnt[0] += 1
            a.I('v_cvt_pk_bf16_f32', V(r), 'v20', 'v21')
            a.I('ds_write_b32', 'v5', V(r), mods=f'offset:{row*ROW+off}')
            if row < 31: cmul(a, 20, 20, g8, T)
    st.stamp('C:egen')
    a.I('v_and_b32', 'v8', '15', 'v1'); a.I('v_lshrrev_b32', 'v9', '4', 'v1')
    a.I('v_mul_u32_u24', 'v13', str(ROW), 'v8'); a.I('v_lshl_add_u32', 'v13', 'v9', '4', 'v13'); a.I('v_add_u32', 'v13', 's28', 'v13')
    a.I('v_add_u32', 'v12', str(E1O), 'v13')
    a.I('v_mov_b32', 'v14', 'v8'); a.I('v_mov_b32', 'v15', '8')
    a.I('v_add_u32', 'v16', '248', 'v8')
    a.I('v_cmp_le_u32', 'vcc', '8', 'v8'); a.I('v_cndmask_b32', 'v14', 'v14', 'v16', 'vcc'); a.I('v_mov_b32', 'v17', '4'); a.I('v_cndmask_b32', 'v15', 'v15', 'v17', 'vcc')
    a.I('v_add_u32', 'v16', '372', 'v8')
    a.I('v_cmp_le_u32', 'vcc', '12', 'v8'); a.I('v_cndmask_b32', 'v14', 'v14', 'v16', 'vcc'); a.I('v_mov_b32', 'v17', '2'); a.I('v_cndmask_b32', 'v15', 'v15', 'v17', 'vcc')
    a.I('v_add_u32', 'v16', '434', 'v8')
    a.I('v_cmp_le_u32', 'vcc', '14', 'v8'); a.I('v_cndmask_b32', 'v14', 'v14', 'v16', 'vcc')
    a.I('v_lshlrev_b32', 'v16', '5', 'v8'); a.I('v_add_u32', 'v16', '512', 'v16'); a.I('v_mov_b32', 'v17', '672')
    a.I('v_cmp_lt_u32', 'vcc', '4', 'v8'); a.I('v_cndmask_b32', 'v16', 'v16', 'v17', 'vcc')
    a.I('v_lshlrev_b32', 'v17', '2', 'v9')
    a.I('v_mul_u32_u24', 'v18', 'v15', 'v17'); a.I('v_add_u32', 'v14', 'v14', 'v18'); a.I('v_add_u32', 'v16', 'v16', 'v17')
    a.I('s_add_u32', 's29', 's28', str(KDO)); a.I('v_mov_b32', 'v18', 's29')
    a.I('v_lshl_add_u32', 'v14', 'v14', '2', 'v18'); a.I('v_lshl_add_u32', 'v16', 'v16', '2', 'v18')
    a.I('v_lshlrev_b32', 'v15', '2', 'v15')
    D = 24
    for k in range(16): a.I('v_mov_b32', V(D+k), '0')
    a.I('s_waitcnt', 'lgkmcnt(0)')
    F = 64
    def ld(s):
        b = F + 16*(s % 4)
        a.I('ds_read_b128', V(b,4), 'v12', mods=f'offset:{s*64}'); a.I('ds_read_b128', V(b+4,4), 'v12', mods=f'offset:{s*64+16*ROW}')
        a.I('ds_read_b128', V(b+8,4), 'v13', mods=f'offset:{s*64}'); a.I('ds_read_b128', V(b+12,4), 'v13', mods=f'offset:{s*64+16*ROW}')
    for s in range(3): ld(s)
    for s in range(8):
        a.I('s_waitcnt', f'lgkmcnt({4*min(2, 7-s)})')
        b = F + 16*(s % 4)
        for mt in range(2):
            for nt in range(2):
                a.I('v_mfma_f32_16x16x32_bf16', V(D+8*mt+4*nt,4), V(b+4*mt,4), V(b+8+4*nt,4), V(D+8*mt+4*nt,4))
        if s+3 < 8: ld(s+3)
    for mt in range(2):
        for r in range(4):
            k = 16*mt + r
            if k == 0: a.I('ds_write_b32', 'v14', V(D+8*mt+r))
            else:
                a.I('v_mul_u32_u24', 'v19', str(k), 'v15'); a.I('v_add_u32', 'v19', 'v14', 'v19'); a.I('ds_write_b32', 'v19', V(D+8*mt+r))
            a.I('ds_write_b32', 'v16', V(D+8*mt+4+r), mods=f'offset:{4*k}')
    st.stamp('C:kd')
    a.I('v_lshlrev_b32', 'v2', '3', 'v1'); a.I('v_sub_u32', 'v2', '2047', 'v2')
    a.I('v_lshlrev_b32', 'v7', '4', 'v1'); a.I('v_add_u32', 'v7', 's28', 'v7')
    a.I('s_sub_u32', 's30', 's29', str(17024*4))
    a.I('v_mov_b32', 'v3', '0')
    a.I('v_and_b32', 'v19', '15', 'v1'); a.I('v_lshrrev_b32', 'v20', '2', 'v19'); a.I('v_and_b32', 'v19', '3', 'v19')
    a.I('v_mul_u32_u24', 'v20', str(ZST), 'v20'); a.I('v_lshl_add_u32', 'v19', 'v19', '3', 'v20'); a.I('v_add_u32', 'v19', 's28', 'v19')
    a.I('v_mov_b32', 'v20', '0'); a.I('v_mov_b32', 'v21', '0')
    a.I('s_waitcnt', 'lgkmcnt(0)')
    a.I('ds_write_b64', 'v19', V(20,2), mods='offset:4096')
    for i in range(4):
        J, Ff, G = 24, 40, 64+16*i
        for e in range(11):
            a.I('v_subrev_u32', V(J+e), str(512*i + e), 'v2')
            if i == 3: a.I('v_max_i32', V(J+e), '0', V(J+e))
            a.I('v_cvt_f32_u32', V(Ff+e), V(J+e))
        for e in range(0, 11, 2):
            if e+1 < 11:
                a.I('v_cvt_pk_bf16_f32', V(Ff+e), V(Ff+e), V(Ff+e+1))
                a.I('v_lshrrev_b32', V(Ff+e+1), '16', V(Ff+e)); a.I('v_and_b32', V(Ff+e), '0xffff', V(Ff+e))
            else:
                a.I('v_cvt_pk_bf16_f32', V(Ff+e), V(Ff+e), V(Ff+e)); a.I('v_and_b32', V(Ff+e), '0xffff', V(Ff+e))
        for e in range(11):
            a.I('v_lshl_add_u32', V(Ff+e), V(Ff+e), '2', 's30')
            if i == 3:
                a.I('v_lshl_add_u32', V(J+11), V(J+e), '2', 's29')
                a.I('v_cmp_gt_u32', 'vcc', '128', V(J+e)); a.I('v_cndmask_b32', V(Ff+e), V(Ff+e), V(J+11), 'vcc')
            a.I('ds_read_b32', V(G+e), V(Ff+e))
    for i in range(4):
        G = 64+16*i; O = 128+16*i
        a.I('s_waitcnt', f'lgkmcnt({min(15, 11*(3-i))})')
        if i == 3:
            a.I('v_cmp_eq_u32', 'vcc', '63', 'v1')
            for e in (8, 9, 10): a.I('v_cndmask_b32', V(G+e), V(G+e), 'v3', 'vcc')
        for c in range(4):
            for k in range(4): a.I('v_cvt_pk_bf16_f32', V(O+4*c+k), V(G+c+2*k), V(G+c+2*k+1))
            a.I('ds_write_b128', 'v7', V(O+4*c,4), mods=f'offset:{1024*i+c*ZST}')
    st.stamp('C:zdone')

ACC, A0, B0, A1, B1 = 96, 128, 160, 192, 224
def load_set(a, Areg, Breg, k):
    m, r = divmod(k, 3)
    if r == 0: a.I('ds_read_b64', V(Areg+4*m, 2), 'v4', mods=f'offset:{512*(7-m)}')
    elif r == 1: a.I('ds_read_b64', V(Areg+4*m+2, 2), 'v4', mods=f'offset:{512*(7-m)+8}')
    else: a.I('ds_read_b128', V(Breg+4*m, 4), 'v5', mods=f'offset:{512*m}')
def conv_class(a, Ac, Bc, An, Bn, prefetch):
    a.I('s_waitcnt', 'lgkmcnt(0)')
    if prefetch:
        a.I('v_subrev_u32', 'v4', '64', 'v4'); a.I('v_subrev_u32', 'v5', '64', 'v5')
    k = 0
    for m in range(8):
        for t in range(m, 8):
            a.I('v_mfma_f32_16x16x32_bf16', V(ACC+4*t,4), V(Ac+4*m,4), V(Bc+4*(t-m),4), V(ACC+4*t,4))
            if prefetch and k < 24: load_set(a, An, Bn, k); k += 1
def c_conv_setup(a):
    a.I('v_and_b32', 'v7', '15', 'v1'); a.I('v_lshrrev_b32', 'v8', '4', 'v1'); a.I('v_lshrrev_b32', 'v9', '1', 'v8'); a.I('v_and_b32', 'v8', '1', 'v8')
    a.I('v_sub_u32', 'v5', 'v7', 'v9'); a.I('v_lshlrev_b32', 'v5', '5', 'v5'); a.I('v_lshl_add_u32', 'v5', 'v8', '4', 'v5')
    a.I('s_mul_i32', 's29', 's24', '4608'); a.I('s_add_u32', 's29', 's29', str(UB+512)); a.I('v_add_u32', 'v5', 's29', 'v5')
    a.I('v_and_b32', 'v10', '3', 'v7'); a.I('v_sub_u32', 'v10', '3', 'v10'); a.I('v_mul_u32_u24', 'v4', str(ZST), 'v10')
    a.I('v_lshrrev_b32', 'v10', '2', 'v7'); a.I('v_lshlrev_b32', 'v10', '3', 'v10'); a.I('v_sub_u32', 'v4', 'v4', 'v10')
    a.I('v_lshlrev_b32', 'v10', '5', 'v9'); a.I('v_sub_u32', 'v4', 'v4', 'v10')
    a.I('v_lshl_add_u32', 'v4', 'v8', '4', 'v4'); a.I('s_add_u32', 's30', 's28', str(4088-3584)); a.I('v_add_u32', 'v4', 's30', 'v4')
    for k in range(32): a.I('v_mov_b32', V(ACC+k), '0')
    a.I('s_waitcnt', 'lgkmcnt(0)')
def c_conv(a, st, midhook=None):
    for k in range(24): load_set(a, A0, B0, k)
    a.I('s_mov_b32', 's30', '0')
    L = uid('CONV')
    a.L(L)
    conv_class(a, A0, B0, A1, B1, True); conv_class(a, A1, B1, A0, B0, True)
    a.I('s_add_u32', 's30', 's30', '1')
    if midhook:
        sk = uid('CMH')
        a.I('s_cmp_lg_u32', 's30', '1'); a.I('s_cbranch_scc1', sk)
        midhook()
        a.L(sk)
    a.I('s_cmp_lt_u32', 's30', '3'); a.I('s_cbranch_scc1', L)
    conv_class(a, A0, B0, A1, B1, True); conv_class(a, A1, B1, A0, B0, False)
    st.stamp('C:convend')
    a.I('v_lshrrev_b32', 'v8', '4', 'v1'); a.I('v_lshlrev_b32', 'v8', '3', 'v8'); a.I('v_lshl_add_u32', 'v8', 'v7', '5', 'v8')
    a.I('s_sub_u32', 's29', 's29', '512'); a.I('v_add_u32', 'v8', 's29', 'v8')
    for t in range(8):
        a.I('v_cvt_pk_bf16_f32', V(A0+2*t), V(ACC+4*t), V(ACC+4*t+1)); a.I('v_cvt_pk_bf16_f32', V(A0+2*t+1), V(ACC+4*t+2), V(ACC+4*t+3))
        a.I('ds_write_b64', 'v8', V(A0+2*t,2), mods=f'offset:{512*t}')
    a.I('s_waitcnt', 'lgkmcnt(0)')
```

```python
from common import *
import ph1, ph2, ph3, ph4, ffn
KNAME = 'sequential_preLN__ssm_conv_s4__dense_activation_mish__prompt_kernel'

W1_THROTTLE = None
W2_THROTTLE = 4
USE_GATE = False
PF_LATE = True
H_EXIT = 8
W1_EARLY = 16
W2_FIRST = 36
def kernel_p(prof=False):
    a = Asm(); st = St(a, prof)
    a.I('s_cmp_ge_u32', 's2', '256'); a.I('s_cbranch_scc1', 'P_END')
    a.I('s_load_dwordx16', S(64,16), S(0,2), '0'); a.I('s_load_dwordx16', S(80,16), S(0,2), '64')
    a.I('v_and_b32', 'v1', '63', 'v0'); a.I('v_lshrrev_b32', 'v2', '6', 'v0')
    a.I('v_readfirstlane_b32', 's3', 'v2')
    a.I('v_lshlrev_b32', 'v3', '2', 'v1'); a.I('v_add_u32', 'v3', str(LSYNC), 'v3'); a.I('v_mov_b32', 'v4', '0')
    a.I('ds_write_b32', 'v3', 'v4'); a.I('ds_write_b32', 'v3', 'v4', mods='offset:256')
    if prof: a.I('v_mov_b32', 'v0', '0')
    st.stamp('start')
    a.I('s_and_b32', 's24', 's3', '3')
    a.I('s_and_b32', 's20', 's2', '7'); a.I('s_lshr_b32', 's21', 's2', '3')
    a.I('s_lshr_b32', 's22', 's20', '1'); a.I('s_lshl_b32', 's22', 's22', '2'); a.I('s_and_b32', 's23', 's21', '3'); a.I('s_add_u32', 's22', 's22', 's23')
    a.I('s_and_b32', 's23', 's20', '1'); a.I('s_lshl_b32', 's23', 's23', '3'); a.I('s_lshr_b32', 's25', 's21', '2'); a.I('s_add_u32', 's23', 's23', 's25')
    a.I('s_mul_i32', 's48', 's20', '20'); a.I('s_add_u32', 's48', 's48', 's21')
    a.I('s_mul_i32', 's25', 's20', '12'); a.I('s_add_u32', 's25', 's25', 's21'); a.I('s_sub_u32', 's25', 's25', '20')
    a.I('s_cmp_ge_u32', 's21', '20'); a.I('s_cselect_b32', 's48', 's25', 's48')
    a.I('s_waitcnt', 'lgkmcnt(0)')
    a.I('s_barrier')
    srd(a, 8, P['ws'], WS_SIZE); srd(a, 60, P['dbg'], 256)
    a.I('s_lshr_b32', 's47', 's3', '2')
    vc = VmLog(a); vl = VmLog(a)
    a.I('s_cmp_ge_u32', 's21', '20'); a.I('s_cbranch_scc1', 'NONCONV')
    a.I('s_cmp_eq_u32', 's47', '1'); a.I('s_cbranch_scc1', 'L_CONV')
    ph4.c_kgen(a, st)
    ph1.c_conv_setup(a)
    a.I('s_barrier')
    st.stamp('C:bar1')
    ph1.c_conv(a, st)
    a.I('s_barrier')
    get_nonce(a, 8)
    a.I('s_branch', 'C_FFN')
    a.L('L_CONV')
    ph4.l_gather(a, st)
    ph2.l_u(a, st)
    a.I('s_barrier')
    ffn.l_w1_issue(a, vl, throttle=W1_THROTTLE)
    st.stamp('L:w1issued')
    a.I('s_cmp_lg_u32', 's24', '0'); a.I('s_cbranch_scc1', 'L_NOGO')
    a.I('v_mov_b32', 'v12', '0'); a.I('s_mov_b32', 's27', hex(WS_GO))
    poll_flags(a, [12], 's27', 14)
    lds_signal(a, HS_GC, 12)
    a.L('L_NOGO')
    lds_wait(a, HS_GC, 1, 12)
    vl.log = [t for t in vl.log]
    st.stamp('L:go')
    a.I('s_barrier')
    st.stamp('L:bar2')
    ph2.l_hstore(a, vl)
    st.stamp('L:hdrained')
    ffn.l_w1_write(a, vl, 0, 40)
    lds_signal(a, HS_W1W, 8)
    st.stamp('L:w1landed')
    a.I('s_branch', 'L_G1B')
    a.L('NONCONV')
    ph2.nonce_publish(a)
    a.I('s_cmp_ge_u32', 's48', '64'); a.I('s_cbranch_scc1', 'NC_CS')
    ph3.stats_task(a, st, lambda: None)
    ffn.nc_prefill(a, 0); ffn.nc_prefill_publish(a)
    lane(a, 1)
    ph3.w2_issue(a)
    ph3.w2_finish(a, st)
    a.I('s_branch', 'NC_RDY2')
    a.L('NC_CS')
    get_nonce(a, 16)
    ffn.nc_prefill(a, 0); ffn.nc_prefill_publish(a)
    ffn.prefill_aggregate(a)
    lane(a, 1)
    ph2.colsum_task(a, st)
    a.L('NC_RDY2')
    a.I('s_barrier')
    a.I('s_cmp_lg_u32', 's47', '0'); a.I('s_cbranch_scc1', 'NC_NOACT')
    ffn.nc_prefill(a, 1)
    a.L('NC_NOACT')
    ph2.nonconv_ready(a)
    st.stamp('N:ready')
    a.I('s_cmp_eq_u32', 's47', '0'); a.I('s_cbranch_scc1', 'C_FFN')
    if USE_GATE:
        a.I('s_cmp_lg_u32', 's24', '0'); a.I('s_cbranch_scc1', 'NC_G')
        a.I('v_mov_b32', 'v8', '0'); a.I('s_mov_b32', 's27', hex(WS_GO))
        poll_flags(a, [8], 's27', 10)
        lds_signal(a, HS_GC, 8)
        a.L('NC_G')
        lds_wait(a, HS_GC, 1, 8)
        st.stamp('N:gate')
    vl2 = VmLog(a)
    ffn.l_w1_issue(a, vl2)
    a.I('s_cmp_lg_u32', 's24', '0'); a.I('s_cbranch_scc1', 'NL_NOGO')
    a.I('v_mov_b32', 'v12', '0'); a.I('s_mov_b32', 's27', hex(WS_GO))
    poll_flags(a, [12], 's27', 14)
    lds_signal(a, HS_GC, 12)
    a.L('NL_NOGO')
    ffn.l_w1_write(a, vl2)
    a.I('s_branch', 'L_G1')
    a.L('C_FFN')
    ffn.c_gemm1(a, vc, st, 'C_G1DONE')
    a.L('C_G1DONE')
    vc.log = []
    st.stamp('C:actready')
    ffn.c_common_regs(a)
    nb2 = ffn.c_gemm2(a, vc, st)
    if prof:
        a.I('s_waitcnt', 'vmcnt(0)'); st.stamp('end'); st.dump()
    a.I('s_endpgm')
    for g_ in ffn.SLOWG: g_.emit_slow()
    a.L('L_G1')
    lds_signal(a, HS_W1W, 8)
    st.stamp('L:w1landed')
    a.L('L_G1B')
    a.I('s_cmp_lg_u32', 's24', '3'); a.I('s_cbranch_scc1', 'L_NOPOLL')
    lane(a, 16); a.I('v_lshlrev_b32', 'v17', '7', 'v16'); a.I('v_and_b32', 'v18', '31', 'v16'); a.I('v_lshlrev_b32', 'v18', '7', 'v18'); a.I('v_add_u32', 'v18', '8192', 'v18')
    a.I('s_mov_b32', 's27', hex(WS_FR + 160*128))
    poll_flags(a, [17, 18], 's27', 20)
    lds_signal(a, HS_RDY, 22)
    a.L('L_NOPOLL')
    lane(a, 1); a.I('v_min_u32', 'v8', '53', 'v1'); a.I('v_lshlrev_b32', 'v8', '6', 'v8')
    a.I('s_mov_b32', 's27', hex(WS_FT))
    poll_flags(a, [8], 's27', 10)
    vl.log = []
    lds_wait(a, HS_GO, 4, 8)
    a.I('s_cmp_lg_u32', 's24', '0'); a.I('s_cbranch_scc1', 'L_NOCS')
    ffn.l_csb1(a)
    a.L('L_NOCS')
    ffn.l_w2_setup(a)
    ffn.l_w2_issue(a, vl, 0, 60, throttle=W2_THROTTLE)
    st.stamp('L:w2a2')
    lds_wait(a, HS_G1D, 4, 8)
    ffn.l_w2_write(a, vl, range(0, 30))
    a.I('s_waitcnt', 'lgkmcnt(0)')
    lds_signal(a, HS_W2W, 8)
    ffn.l_w2_issue(a, vl, 60, 68)
    st.stamp('L:w2b')
    ffn.l_gemm2(a, vl, nb2)
    if prof:
        st.stamp('end'); st.dump()
    a.L('P_END')
    a.I('s_endpgm')
    return a, dict(name=KNAME, grid=256, block=512, lds=LDS_TOTAL, vgpr=256, sgpr=102, stamps=st.names)

if __name__ == '__main__':
    import json
    sys.path.insert(0, 'dev')
    out = sys.argv[1]; prof = len(sys.argv) > 2 and sys.argv[2] == 'p'
    for kv in sys.argv[3:]:
        k, v = kv.split('=')
        if k == 'sleep': RC_SLEEP[0] = int(v)
        if k == 'rot': ffn.ROT[0] = bool(int(v))
        if k == 'thr': globals()['W2_THROTTLE'] = int(v)
        if k == 'bm': ffn.BM[0] = v.replace('+', ' ')
        if k == 'db2': ffn.DB2[0] = int(v)
        if k == 'db1': ffn.DB1[0] = int(v)
        if k == 'probe': ffn.PROBE[0] = [int(x) for x in v.split(',')]
        if k == 'pfl': globals()['PF_LATE'] = bool(int(v))
        if k == 'outm': ffn.OUTM[0] = ' ' + v.replace('+', ' ')
        if k == 'stag': ffn.STAG[0] = int(v)
        if k == 'stepst': ffn.STEPST[0] = bool(int(v))
        if k == 'go': ffn.GO_STEP[0] = int(v)
        if k == 'gate': globals()['USE_GATE'] = bool(int(v))
        if k == 'hexit': globals()['H_EXIT'] = int(v)
        if k == 'gp': ph4.GATE_PAR[0] = int(v)
        if k == 'lpos': ffn.LPOS[:] = [int(x) for x in v.split(',')]
    a, m = kernel_p(prof)
    n = a.pad_hazards()
    HEADER = open('sequential_preLN__ssm_conv_s4__dense_activation_mish__prompt.s.ref').read().split('; Override launch')[0]
    o = [HEADER.rstrip(), f"; @launch grid=({m['grid']},1,1) block=({m['block']},1,1) lds={m['lds']}", '.amdgcn_target "amdgcn-amd-amdhsa--gfx950"', '.text',
         f".globl {m['name']}", '.p2align 8', f".type {m['name']},@function", f"{m['name']}:", a.text().rstrip(),
         '.section .rodata,"a"', '.p2align 6', f".amdhsa_kernel {m['name']}", f"  .amdhsa_next_free_vgpr {m['vgpr']}", f"  .amdhsa_next_free_sgpr {m['sgpr']}",
         f"  .amdhsa_accum_offset {m['vgpr']}", "  .amdhsa_group_segment_fixed_size 0", "  .amdhsa_kernarg_size 128", "  .amdhsa_user_sgpr_count 2",
         "  .amdhsa_user_sgpr_kernarg_segment_ptr 1", "  .amdhsa_system_sgpr_workgroup_id_x 1", ".end_amdhsa_kernel"]
    open(out, 'w').write('\n'.join(o)+'\n')
    json.dump(m['stamps'], open(out.replace('.s', '.json'), 'w'))
    print('nops inserted', n, 'instrs', len(a.items))
```

```python
import sys; sys.path.insert(0, 'dev')
from asmlib import *
import struct
def f2u(f): return struct.unpack('<I', struct.pack('<f', f))[0]
LOG2E = 0x3fb8aa3b; INV2PI = 0x3e22f983; LN2 = 0x3f317218
WS_STAT = 0x000000
WS_NONCE = 0x008000
WS_FS = 0x010000; WS_FT = 0x01C000
WS_FR = 0x030000; WS_FA = 0x038000
WS_FH = 0xDD0000
WS_RC = 0x00C000
WS_GC = 0x00C800
WS_FG = 0x024000; WS_GO = 0x028000
WS_FP = 0xDD0000
WS_AG = 0x02C000
WS_CS = 0x020000
WS_HT4 = 0x040000
WS_W1F = 0x2C0000
WS_W2F = 0x4F0000
WS_ACT = 0x710000
WS_SIZE = 0xDF0000
GS = 16384
P = dict(x=64, Are=66, Aim=68, Bre=70, Bim=72, Cre=74, Cim=76, logdt=78, D=80, bx=82, w1=84, b1=86, w2=88, out=90, dbg=92, ws=94)
ROW = 544
EREG = 53*ROW
E1O = 21*ROW
KDO = 16640
ZST = 4160
UB = 143360
UOFF = lambda c: UB + c*4608
LSYNC = UB + 4*4608
LDS_TOTAL = 163840
S_NONCE = 49
SPIN_MAX = 200000
RC_SLEEP = [0]
NONCE_LDS = LSYNC + 192

def srd(a, sb, p, size, off=0):
    if off:
        a.I('s_add_u32', S(sb), S(p), hex(off)); a.I('s_addc_u32', S(sb+1), S(p+1), '0')
    else:
        a.I('s_mov_b32', S(sb), S(p)); a.I('s_mov_b32', S(sb+1), S(p+1))
    a.I('s_mov_b32', S(sb+2), hex(size)); a.I('s_mov_b32', S(sb+3), '0x20000')

def cmul(a, d, x, y, t):
    a.I('v_pk_mul_f32', V(t,2), V(x,2), V(y,2), mods='op_sel:[1,1] op_sel_hi:[1,0] neg_lo:[1,0]')
    a.I('v_pk_fma_f32', V(d,2), V(x,2), V(y,2), V(t,2), mods='op_sel:[0,0,0] op_sel_hi:[0,1,1]')

STORE_TAGS = ('st', 'hst', 'out')
class VmLog:
    def __init__(self, a): self.a = a; self.log = []
    def op(self, tag=None): self.log.append(tag)
    def wait(self, tags):
        tags = set(tags); pos = -1
        for i, t in enumerate(self.log):
            if t in tags: pos = i
        if pos < 0: return
        n = sum(1 for t in self.log[pos+1:] if t not in STORE_TAGS)
        self.a.I('s_waitcnt', f'vmcnt({min(n, 63)})')
    def wait_all(self):
        self.a.I('s_waitcnt', 'vmcnt(0)'); self.log = []

_uid = [0]
def uid(p):
    _uid[0] += 1; return f'{p}_{_uid[0]}'

def get_nonce(a, vt):
    L = uid('NONCE'); E = uid('NONCEX')
    a.I('v_mov_b32', V(vt), '0'); a.I('s_mov_b32', 's101', '0')
    a.L(L)
    a.I('s_add_u32', 's101', 's101', '1'); a.I('s_cmp_gt_u32', 's101', str(SPIN_MAX)); a.I('s_cbranch_scc1', E)
    a.I('buffer_load_dword', V(vt+1), V(vt), S(60,4), '0', mods='offen sc1'); a.I('s_waitcnt', 'vmcnt(0)')
    a.I('v_readfirstlane_b32', S(S_NONCE), V(vt+1)); a.I('s_cmp_eq_u32', S(S_NONCE), '0'); a.I('s_cbranch_scc1', L)
    a.L(E)

def nonce_early_issue(a, vt):
    a.I('v_mov_b32', V(vt), '0')
    a.I('buffer_load_dword', V(vt+1), V(vt), S(60,4), '0', mods='offen sc1')
def get_nonce_keep(a, vt, vearly):
    ok = uid('NOK')
    a.I('v_readfirstlane_b32', S(S_NONCE), V(vearly+1)); a.I('s_cmp_lg_u32', S(S_NONCE), '0'); a.I('s_cbranch_scc1', ok)
    get_nonce(a, vt)
    a.L(ok)
def get_nonce_both(a, vt):
    L = uid('NB'); E = uid('NBX')
    a.I('v_mov_b32', V(vt), '0'); a.I('s_mov_b32', 's101', '0')
    a.L(L)
    a.I('s_add_u32', 's101', 's101', '1'); a.I('s_cmp_gt_u32', 's101', str(SPIN_MAX)); a.I('s_cbranch_scc1', E)
    a.I('buffer_load_dword', V(vt+1), V(vt), S(60,4), '0', mods='offen sc1')
    a.I('buffer_load_dword', V(vt+2), V(vt), S(60,4), '0', mods='offen offset:128 sc1'); a.I('s_waitcnt', 'vmcnt(0)')
    a.I('v_readfirstlane_b32', S(S_NONCE), V(vt+1)); a.I('v_readfirstlane_b32', 's34', V(vt+2))
    a.I('s_cmp_eq_u32', 's34', '0'); a.I('s_cbranch_scc1', L)
    a.L(E)
def get_nonce2(a, vt):
    L = uid('N2'); E = uid('N2X')
    a.I('v_mov_b32', V(vt), '0'); a.I('s_mov_b32', 's101', '0')
    a.L(L)
    a.I('s_add_u32', 's101', 's101', '1'); a.I('s_cmp_gt_u32', 's101', str(SPIN_MAX)); a.I('s_cbranch_scc1', E)
    a.I('buffer_load_dword', V(vt+1), V(vt), S(60,4), '0', mods='offen offset:128 sc1'); a.I('s_waitcnt', 'vmcnt(0)')
    a.I('v_readfirstlane_b32', 's34', V(vt+1)); a.I('s_cmp_eq_u32', 's34', '0'); a.I('s_cbranch_scc1', L)
    a.L(E)

def poll_flags(a, voffs, soff, vt):
    L = uid('POLL'); E = uid('POLLX')
    a.I('s_mov_b32', 's101', '0')
    a.L(L)
    a.I('s_add_u32', 's101', 's101', '1'); a.I('s_cmp_gt_u32', 's101', str(SPIN_MAX)); a.I('s_cbranch_scc1', E)
    for k, vo in enumerate(voffs): a.I('buffer_load_dword', V(vt+k), V(vo), S(8,4), soff, mods='offen sc1')
    a.I('s_waitcnt', 'vmcnt(0)')
    a.I('v_cmp_ne_u32', 'vcc', S(S_NONCE), V(vt))
    for k in range(1, len(voffs)):
        a.I('v_cmp_ne_u32', S(34,2), S(S_NONCE), V(vt+k)); a.I('s_or_b64', 'vcc', 'vcc', S(34,2))
    a.I('s_cbranch_vccnz', L)
    a.L(E)

def publish_last(a, slot_base, myslot_sgpr, nslots, flag_soff, vt):
    skip = uid('PUB')
    a.I('s_lshl_b32', 's34', S(myslot_sgpr), '2'); a.I('s_add_u32', 's34', 's34', str(slot_base))
    a.I('v_mov_b32', V(vt), 's34'); a.I('v_mov_b32', V(vt+1), '1')
    a.I('ds_write_b32', V(vt), V(vt+1))
    a.I('v_mov_b32', V(vt), str(slot_base))
    a.I('s_waitcnt', 'lgkmcnt(0)')
    for k in range(nslots//4): a.I('ds_read_b128', V(vt+2+4*k,4), V(vt), mods=f'offset:{16*k}')
    a.I('s_waitcnt', 'lgkmcnt(0)')
    a.I('v_cmp_ne_u32', 'vcc', '1', V(vt+2))
    for k in range(1, nslots):
        a.I('v_cmp_ne_u32', S(34,2), '1', V(vt+2+k)); a.I('s_or_b64', 'vcc', 'vcc', S(34,2))
    a.I('s_cbranch_vccnz', skip)
    a.I('v_mov_b32', V(vt), '0'); a.I('v_mov_b32', V(vt+1), S(S_NONCE))
    a.I('s_mov_b64', 'exec', '1')
    a.I('buffer_store_dword', V(vt+1), V(vt), S(8,4), flag_soff, mods='offen sc1')
    a.I('s_mov_b64', 'exec', '-1')
    a.L(skip)

def lane(a, d):
    a.I('v_mbcnt_lo_u32_b32', V(d), '-1', '0'); a.I('v_mbcnt_hi_u32_b32', V(d), '-1', V(d))

class St:
    def __init__(self, a, enable): self.a = a; self.enable = enable; self.names = []
    def stamp(self, name):
        if not self.enable: return
        if name in self.names: i = self.names.index(name)
        else: self.names.append(name); i = len(self.names)-1
        a = self.a
        a.I('s_memtime', S(96,2))
        if name == 'start': a.I('s_memrealtime', S(98,2))
        a.I('s_waitcnt', 'lgkmcnt(0)'); a.I('v_writelane_b32', 'v0', 's96', str(i))
        if name == 'start': a.I('v_writelane_b32', 'v0', 's98', '63')
    def dump(self):
        if not self.enable: return
        a = self.a
        a.I('s_add_u32', 's96', S(P['ws']), hex(WS_DBG)); a.I('s_addc_u32', 's97', S(P['ws']+1), '0'); a.I('s_mov_b32', 's98', '0x100000'); a.I('s_mov_b32', 's99', '0x20000')
        lane(a, 254); a.I('v_lshlrev_b32', 'v254', '2', 'v254')
        a.I('s_lshl_b32', 's100', 's2', '3'); a.I('s_add_u32', 's100', 's100', 's3'); a.I('s_lshl_b32', 's100', 's100', '8')
        a.I('buffer_store_dword', 'v0', 'v254', S(96,4), 's100', mods='offen')

def arrive_last(a, slot_base, myslot_sgpr, nslots, ctr_soff, vt):
    skip = uid('ARR')
    a.I('v_mov_b32', V(vt), str(slot_base)); a.I('v_mov_b32', V(vt+1), '1')
    a.I('s_mov_b64', 'exec', '1')
    a.I('ds_add_rtn_u32', V(vt+2), V(vt), V(vt+1))
    a.I('s_waitcnt', 'lgkmcnt(0)')
    a.I('v_readfirstlane_b32', 's34', V(vt+2))
    a.I('s_cmp_lg_u32', 's34', str(nslots-1)); a.I('s_cbranch_scc1', skip)
    a.I('v_mov_b32', V(vt), '0')
    a.I('buffer_atomic_add', V(vt+1), V(vt), S(8,4), ctr_soff, mods='offen sc1')
    a.L(skip)
    a.I('s_mov_b64', 'exec', '-1')

def poll_count(a, voff, soff, target, vt):
    L = uid('PC'); E = uid('PCX')
    a.I('s_mov_b32', 's101', '0')
    a.L(L)
    a.I('s_add_u32', 's101', 's101', '1'); a.I('s_cmp_gt_u32', 's101', str(SPIN_MAX)); a.I('s_cbranch_scc1', E)
    if RC_SLEEP[0]: a.I('s_sleep', str(RC_SLEEP[0]))
    a.I('buffer_load_dword', V(vt), V(voff), S(8,4), soff, mods='offen sc1'); a.I('s_waitcnt', 'vmcnt(0)')
    a.I('v_cmp_ne_u32', 'vcc', str(target), V(vt)); a.I('s_cbranch_vccnz', L)
    a.L(E)

HS_W1W, HS_RDY, HS_G1D, HS_ARDY, HS_W2W, HS_B1I, HS_GO, HS_GC, HS_CS, HS_CSL, HS_PAR, HS_KRDY, HS_HAND, HS_G2GO = [LSYNC+128+4*i for i in range(14)]
KQ = LSYNC + 256
def lds_signal(a, slot, vt):
    a.I('v_mov_b32', V(vt), str(slot)); a.I('v_mov_b32', V(vt+1), '1')
    a.I('s_mov_b64', 'exec', '1'); a.I('ds_add_u32', V(vt), V(vt+1)); a.I('s_mov_b64', 'exec', '-1')
LSLEEP=[0]
def lds_wait(a, slot, target, vt, sleep=True):
    L = uid('LW'); E = uid('LWX')
    a.I('v_mov_b32', V(vt), str(slot)); a.I('s_mov_b32', 's101', '0')
    a.L(L)
    a.I('s_add_u32', 's101', 's101', '1'); a.I('s_cmp_gt_u32', 's101', str(SPIN_MAX*20)); a.I('s_cbranch_scc1', E)
    a.I('ds_read_b32', V(vt+1), V(vt)); a.I('s_waitcnt', 'lgkmcnt(0)')
    a.I('v_readfirstlane_b32', 's34', V(vt+1)); a.I('s_cmp_ge_u32', 's34', str(target)); a.I('s_cbranch_scc1', E)
    if LSLEEP[0] and sleep: a.I('s_sleep', str(LSLEEP[0]))
    a.I('s_branch', L)
    a.L(E)
def poll_dbg_count(a, soff_imm_sgpr, target, vt):
    L = uid('PD'); E = uid('PDX')
    a.I('v_mov_b32', V(vt), '0'); a.I('s_mov_b32', 's101', '0')
    a.L(L)
    a.I('s_add_u32', 's101', 's101', '1'); a.I('s_cmp_gt_u32', 's101', str(SPIN_MAX)); a.I('s_cbranch_scc1', E)
    a.I('buffer_load_dword', V(vt+1), V(vt), S(60,4), soff_imm_sgpr, mods='offen sc1'); a.I('s_waitcnt', 'vmcnt(0)')
    a.I('v_readfirstlane_b32', 's34', V(vt+1)); a.I('s_cmp_lt_u32', 's34', str(target)); a.I('s_cbranch_scc1', L)
    a.L(E)
def arrive_last_dbg(a, slot_base, nslots, soff_sgpr, vt):
    skip = uid('ARD')
    a.I('v_mov_b32', V(vt), str(slot_base)); a.I('v_mov_b32', V(vt+1), '1')
    a.I('s_mov_b64', 'exec', '1')
    a.I('ds_add_rtn_u32', V(vt+2), V(vt), V(vt+1))
    a.I('s_waitcnt', 'lgkmcnt(0)')
    a.I('v_readfirstlane_b32', 's34', V(vt+2))
    a.I('s_cmp_lg_u32', 's34', str(nslots-1)); a.I('s_cbranch_scc1', skip)
    a.I('v_mov_b32', V(vt), '0')
    a.I('buffer_atomic_add', V(vt+1), V(vt), S(60,4), soff_sgpr, mods='offen sc1')
    a.L(skip)
    a.I('s_mov_b64', 'exec', '-1')
```

```python
from common import *

ROT=[False]
BM=['offen sc1']
PROBE=[[0]]
SLOWG=[]
OUTM=['']
STAG=[0]
STEPST=[False]
GO_STEP=[1]
LPOS=[1, 4]
DB1=[9]
DB2=[4]
def _key(ks): return max(((8*ks+k) % 27)//4 for k in range(8))
PI = sorted(range(54), key=lambda k: (_key(k), k))
class GemmC:
    def __init__(self, a, vm, NT, own, KSPLIT, RK, KSB, HS, TS, DB, s_boff, ACC, WB, BB, VWL, s_tmp, bmods, SKo=None, rot=None, dyn=None, sent=None, perm=None):
        self.__dict__.update(locals()); self.bi = 0; self.NB = DB+1; self.slow = []
    def breg(self, i):
        if isinstance(self.BB, (list, tuple)): return self.BB[i % self.NB]
        return self.BB + 8*(i % self.NB)
    def boff(self, i, sreg):
        a = self.a
        if self.perm is None:
            a.I('s_add_u32', S(sreg), S(self.s_boff), str(i*self.KSPLIT*8*GS))
        else:
            c0, c1 = self.perm[2*i]*8*GS, self.perm[2*i+1]*8*GS
            a.I('s_mov_b32', S(sreg), str(c0)); a.I('s_cmp_lg_u32', 's53', '0'); a.I('s_cmov_b32', S(sreg), str(c1))
            a.I('s_add_u32', S(sreg), S(sreg), S(self.s_boff))
    def issue_b(self, upto, part=None):
        a = self.a
        while self.bi < min(upto, self.own):
            i = self.bi; r = self.breg(i)
            if part == 1:
                a.I('buffer_load_dwordx4', V(r+4,4), 'v5', S(8,4), S(self.s_tmp), mods=self.bmods); self.vm.op(('B', id(self), i))
                self.bi += 1
                continue
            if self.dyn is not None:
                self.dyn_need(i)
                a.I('v_readlane_b32', S(self.s_tmp), V(self.dyn), str(i))
                a.I('s_lshl_b32', S(self.s_tmp), S(self.s_tmp), '17'); a.I('s_add_u32', S(self.s_tmp), S(self.s_tmp), S(self.s_boff))
            elif self.rot is None:
                self.boff(i, self.s_tmp)
            else:
                a.I('s_add_u32', S(self.s_tmp), S(self.rot), str(i)); a.I('s_sub_u32', 's35', S(self.s_tmp), str(self.own))
                a.I('s_cmp_ge_u32', S(self.s_tmp), str(self.own)); a.I('s_cselect_b32', S(self.s_tmp), 's35', S(self.s_tmp))
                a.I('s_mul_i32', S(self.s_tmp), S(self.s_tmp), str(self.KSPLIT*8*GS)); a.I('s_add_u32', S(self.s_tmp), S(self.s_tmp), S(self.s_boff))
            a.I('buffer_load_dwordx4', V(r,4), 'v4', S(8,4), S(self.s_tmp), mods=self.bmods); self.vm.op(('B', id(self), i))
            if part == 0: return
            a.I('buffer_load_dwordx4', V(r+4,4), 'v5', S(8,4), S(self.s_tmp), mods=self.bmods); self.vm.op(('B', id(self), i))
            self.bi += 1
    def spin_first(self, t):
        a = self.a
        L, E = uid('SF'), uid('SFX')
        r = self.breg(0)
        probes = [p for p in PROBE[0] if p < self.own]
        a.L(L)
        a.I('s_add_u32', 's100', 's100', '1'); a.I('s_cmp_gt_u32', 's100', str(SPIN_MAX)); a.I('s_cbranch_scc1', E)
        for k, p in enumerate(probes):
            self.boff(p, 35)
            a.I('buffer_load_dwordx4', V(r+4*k,4), 'v4', S(8,4), 's35', mods=self.bmods)
        a.I('s_waitcnt', 'vmcnt(0)')
        a.I('v_max_u32', V(t), V(r), V(r+2))
        for k in range(1, len(probes)): a.I('v_max3_u32', V(t), V(t), V(r+4*k), V(r+4*k+2))
        a.I('v_cmp_eq_u32', 'vcc', '-1', V(t)); a.I('s_cbranch_vccnz', L)
        a.L(E)
    def dyn_need(self, i):
        a = self.a
        back, slow = uid('DQB'), uid('DQS')
        a.I('s_cmp_le_u32', 's31', str(i)); a.I('s_cbranch_scc1', slow)
        a.L(back)
        self.slow.append((slow, back, i))
    def emit_slow(self):
        a = self.a
        for ent in self.slow:
            if ent[0] == 'sent':
                _, slow, back, i, hi = ent
                r = self.breg(i)
                ex = uid('SVX')
                a.L(slow)
                a.I('s_add_u32', 's100', 's100', '1'); a.I('s_cmp_gt_u32', 's100', str(SPIN_MAX)); a.I('s_cbranch_scc1', ex)
                a.I('s_waitcnt', 'vmcnt(0)')
                for jj in range(i, hi):
                    rj = self.breg(jj)
                    self.boff(jj, 35)
                    a.I('buffer_load_dwordx4', V(rj,4), 'v4', S(8,4), 's35', mods=self.bmods); a.I('buffer_load_dwordx4', V(rj+4,4), 'v5', S(8,4), 's35', mods=self.bmods)
                a.I('s_waitcnt', f'vmcnt({2*(hi-i-1)})')
                a.I('s_branch', back)
                a.L(ex)
                a.I('v_swap_b32', V(r+2), V(r+4)); a.I('v_swap_b32', V(r+3), V(r+5))
                a.I('s_branch', ent[2]+'_AFTER')
                continue
            slow, back, i = ent
            L = uid('DQL')
            a.L(slow)
            a.I('s_mov_b32', 's101', '0')
            a.L(L)
            a.I('s_add_u32', 's101', 's101', '1'); a.I('s_cmp_gt_u32', 's101', str(SPIN_MAX*20)); a.I('s_cbranch_scc1', back)
            a.I('ds_read_b32', V(self.dyn), V(self.dyn+1)); a.I('s_waitcnt', 'lgkmcnt(0)')
            a.I('v_readlane_b32', 's31', V(self.dyn), '20'); a.I('s_cmp_gt_u32', 's31', str(i)); a.I('s_cbranch_scc0', L)
            a.I('s_branch', back)
        self.slow = []
    def wbase(self, i):
        a = self.a
        a.I('v_readlane_b32', 's35', V(self.dyn), str(i)); a.I('s_mul_i32', 's35', 's35', str(self.KSB))
        a.I('v_add_u32', V(self.dyn+2+(i & 1)), 's35', V(self.VWL[0]))
    def wread(self, Wn, i, T2):
        if self.dyn is not None:
            T, h = divmod(T2, 2)
            if T2 == 0: self.wbase(i)
            self.a.I('ds_read_b64_tr_b16', V(Wn+4*T+2*h,2), V(self.dyn+2+(i & 1)), mods=f'offset:{h*self.HS + T*self.TS}')
            return
        if self.HS is None:
            off = ((self.KSPLIT*i) % self.RK)*self.KSB + T2*1024
            k, o = divmod(off, 65536)
            self.a.I('ds_read_b128', V(Wn+4*T2,4), V(self.VWL[k]), mods=f'offset:{o}')
            return
        T, h = divmod(T2, 2)
        off = ((self.KSPLIT*i) % self.RK)*self.KSB + h*self.HS + T*self.TS
        k, o = divmod(off, 65536)
        self.a.I('ds_read_b64_tr_b16', V(Wn+4*T+2*h,2), V(self.VWL[k]), mods=f'offset:{o}')
    def run(self, extra=None, late=None, st=None, tag=''):
        a, vm, NT = self.a, self.vm, self.NT
        nwb = len(self.WB); pre = nwb-1
        NR = NT if self.HS is None else 2*NT
        nbar = 0
        visible = 0
        def ensure(i):
            nonlocal visible, nbar
            if self.SKo is None: return False
            s = i//self.SKo
            did = False
            while visible < s:
                visible += 1
                a.I('s_waitcnt', 'lgkmcnt(0)'); a.I('s_barrier'); nbar += 1; did = True
            return did
        def swap(i):
            r = self.breg(i)
            if self.sent is not None:
                t = self.sent
                back, slow = uid('SVB'), uid('SVS')
                a.L(back)
                a.I('v_max3_u32', V(t), V(r), V(r+2), V(r+4)); a.I('v_max_u32', V(t), V(t), V(r+6))
                a.I('v_cmp_eq_u32', 'vcc', '-1', V(t)); a.I('s_cbranch_vccnz', slow)
                self.slow.append(('sent', slow, back, i, self.bi))
                a.I('v_swap_b32', V(r+2), V(r+4)); a.I('v_swap_b32', V(r+3), V(r+5))
                a.L(back+'_AFTER')
                return
            a.I('v_swap_b32', V(r+2), V(r+4)); a.I('v_swap_b32', V(r+3), V(r+5))
        for p in range(pre):
            ensure(p)
            for T in range(NR): self.wread(self.WB[p % nwb], p, T)
        vm.wait([('B', id(self), 0)]); swap(0)
        if STAG[0]:
            for k in (1, 2, 3):
                sk = uid('STG')
                a.I('s_cmp_lt_u32', 's24', str(k)); a.I('s_cbranch_scc1', sk); a.I('s_sleep', str(STAG[0])); a.L(sk)
        if st: st.stamp(tag+'b0')
        for i in range(self.own):
            nxt = i + pre; vn = nxt < self.own
            did = ensure(nxt) if vn else False
            if not did:
                n_out = NR*min(pre-1, self.own-1-i)
                a.I('s_waitcnt', f'lgkmcnt({min(15, n_out)})')
            if late: late(i)
            r = self.breg(i)
            Wc = self.WB[i % nwb]; Wn = self.WB[nxt % nwb]
            ins = []
            for T in range(NT):
                for lt in range(2):
                    ins.append(('v_mfma_f32_16x16x32_bf16', V(self.ACC+4*(2*T+lt),4), V(Wc+4*T,4), V(r+4*lt,4), V(self.ACC+4*(2*T+lt),4)))
            if extra: ins += extra(i, [r, r+4])
            rd = 0
            mid = len(ins)//2
            for idx, m in enumerate(ins):
                a.I(*m)
                if vn and rd < NR: self.wread(Wn, nxt, rd); rd += 1
                if idx == LPOS[0]: self.issue_b(i+1+self.DB, part=0)
                if idx == LPOS[1]: self.issue_b(i+1+self.DB, part=1)
                if idx == mid and i+1 < self.own:
                    vm.wait([('B', id(self), i+1)]); swap(i+1)
            while vn and rd < NR: self.wread(Wn, nxt, rd); rd += 1
            if st and i == self.own//2: st.stamp(tag+'mid')
            if st and STEPST[0] and i % 2 == 1: st.stamp(tag+f's{i}')
        return nbar

CSL = UB
def l_csb1(a):
    lds_wait(a, HS_RDY, 1, 8)
    lane(a, 1)
    srd(a, 16, P['b1'], 3456)
    a.I('s_mul_i32', 's34', 's23', '432'); a.I('s_add_u32', 's34', 's34', hex(WS_CS))
    a.I('v_lshlrev_b32', 'v8', '4', 'v1')
    a.I('s_mul_i32', 's35', 's23', '216'); a.I('v_lshlrev_b32', 'v9', '2', 'v1'); a.I('v_add_u32', 'v9', 's35', 'v9')
    a.I('buffer_load_dwordx4', V(16,4), 'v8', S(8,4), 's34', mods='offen sc1')
    a.I('buffer_load_dword', 'v20', 'v9', S(16,4), '0', mods='offen')
    a.I('v_add_u32', 'v8', str(CSL), 'v8'); a.I('v_lshlrev_b32', 'v9', '2', 'v1'); a.I('v_add_u32', 'v9', str(CSL+448), 'v9')
    a.I('s_waitcnt', 'vmcnt(0)')
    a.I('s_mov_b32', 'exec_lo', '0x0fffffff'); a.I('s_mov_b32', 'exec_hi', '0')
    a.I('ds_write_b128', 'v8', V(16,4))
    a.I('s_mov_b32', 'exec_lo', '-1'); a.I('s_mov_b32', 'exec_hi', '0x00ffffff')
    a.I('ds_write_b32', 'v9', 'v20')
    a.I('s_mov_b64', 'exec', '-1')
    a.I('s_waitcnt', 'lgkmcnt(0)')
    lds_signal(a, HS_CSL, 8)

def haggregate(a, st, vb):
    v = lambda k: V(vb+k)
    lane(a, vb)
    a.I('v_lshlrev_b32', v(1), '7', v(0)); a.I('v_add_u32', v(2), '8192', v(1)); a.I('v_and_b32', v(3), '31', v(0)); a.I('v_lshlrev_b32', v(3), '7', v(3)); a.I('v_add_u32', v(3), '16384', v(3))
    a.I('s_mov_b32', 's38', '0'); a.I('s_mov_b32', 's27', hex(WS_FR)); a.I('s_mov_b32', 's101', '0')
    a.I('s_lshl_b32', 's39', 's20', '7'); a.I('s_add_u32', 's39', 's39', hex(WS_AG))
    a.I('v_mov_b32', v(7), '0'); a.I('v_mov_b32', v(9), S(S_NONCE))
    L, E, N_ = uid('AG'), uid('AGX'), uid('AGN')
    a.L(L)
    a.I('s_add_u32', 's101', 's101', '1'); a.I('s_cmp_gt_u32', 's101', str(SPIN_MAX)); a.I('s_cbranch_scc1', E)
    a.I('buffer_load_dword', v(4), v(1), S(8,4), 's27', mods='offen sc1'); a.I('buffer_load_dword', v(5), v(2), S(8,4), 's27', mods='offen sc1'); a.I('buffer_load_dword', v(6), v(3), S(8,4), 's27', mods='offen sc1')
    a.I('s_waitcnt', 'vmcnt(0)')
    a.I('v_cmp_eq_u32', S(40,2), S(S_NONCE), v(4)); a.I('v_cmp_eq_u32', S(42,2), S(S_NONCE), v(5)); a.I('v_cmp_eq_u32', S(44,2), S(S_NONCE), v(6))
    a.I('s_mov_b32', 's34', '0')
    for g in range(20):
        w_, b_ = 40 + g//4, (g % 4)*8
        a.I('s_bfe_u32', 's35', S(w_), hex((8 << 16) | b_)); a.I('s_cmp_eq_u32', 's35', '0xff'); a.I('s_cselect_b32', 's35', hex(1 << g), '0'); a.I('s_or_b32', 's34', 's34', 's35')
    a.I('s_cmp_eq_u32', 's34', 's38'); a.I('s_cbranch_scc1', N_)
    a.I('s_mov_b32', 's38', 's34'); a.I('v_mov_b32', v(8), 's34')
    a.I('s_mov_b64', 'exec', '1')
    a.I('buffer_store_dwordx2', V(vb+8,2), v(7), S(8,4), 's39', mods='offen sc1')
    a.I('s_mov_b64', 'exec', '-1')
    a.L(N_)
    a.I('s_cmp_lg_u32', 's38', '0xfffff'); a.I('s_cbranch_scc1', L)
    a.L(E)
    st.stamp('L:aggdone')

def hpoller(a, st, phase, exit_count, vb):
    v = lambda k: V(vb+k)
    lane(a, vb)
    a.I('v_lshlrev_b32', v(1), '7', v(0)); a.I('v_add_u32', v(2), '8192', v(1)); a.I('v_and_b32', v(3), '31', v(0)); a.I('v_lshlrev_b32', v(3), '7', v(3)); a.I('v_add_u32', v(3), '16384', v(3))
    a.I('v_mov_b32', v(7), str(KQ)); a.I('v_mov_b32', v(8), str(KQ+80))
    if phase == 1:
        a.I('s_mov_b32', 's38', '0'); a.I('s_mov_b32', 's39', '0')
    else:
        lds_wait(a, HS_HAND, 1, vb+9)
        a.I('ds_read_b64', V(vb+10,2), v(8))
        a.I('s_waitcnt', 'lgkmcnt(0)'); a.I('v_readfirstlane_b32', 's39', v(10)); a.I('v_readfirstlane_b32', 's38', v(11))
    a.I('s_lshr_b32', 's27', 's22', '2'); a.I('s_mul_i32', 's27', 's27', str(160*128)); a.I('s_add_u32', 's27', 's27', hex(WS_FH)); a.I('s_mov_b32', 's101', '0')
    L, E, A_, N_ = uid('HP'), uid('HPX'), uid('HPA'), uid('HPN')
    a.I('s_cmp_ge_u32', 's39', str(exit_count)); a.I('s_cbranch_scc1', E)
    a.L(L)
    a.I('s_add_u32', 's101', 's101', '1'); a.I('s_cmp_gt_u32', 's101', str(SPIN_MAX)); a.I('s_cbranch_scc1', E)
    a.I('buffer_load_dword', v(4), v(1), S(8,4), 's27', mods='offen sc1'); a.I('buffer_load_dword', v(5), v(2), S(8,4), 's27', mods='offen sc1'); a.I('buffer_load_dword', v(6), v(3), S(8,4), 's27', mods='offen sc1')
    a.I('s_waitcnt', 'vmcnt(0)')
    a.I('v_cmp_eq_u32', S(40,2), S(S_NONCE), v(4)); a.I('v_cmp_eq_u32', S(42,2), S(S_NONCE), v(5)); a.I('v_cmp_eq_u32', S(44,2), S(S_NONCE), v(6))
    a.I('s_mov_b32', 's34', '0')
    for wi in range(5):
        a.I('s_lshr_b32', 's35', S(40+wi), '4'); a.I('s_and_b32', 's35', 's35', S(40+wi))
        a.I('s_lshr_b32', 's36', 's35', '2'); a.I('s_and_b32', 's35', 's35', 's36')
        a.I('s_lshr_b32', 's36', 's35', '1'); a.I('s_and_b32', 's35', 's35', 's36')
        a.I('s_and_b32', 's35', 's35', '0x01010101')
        a.I('s_mul_i32', 's35', 's35', '0x10204081' if False else '0x01020408'); a.I('s_lshr_b32', 's35', 's35', '24'); a.I('s_and_b32', 's35', 's35', '0xf')
        a.I('s_lshl_b32', 's35', 's35', str(4*wi)); a.I('s_or_b32', 's34', 's34', 's35')
    a.I('s_andn2_b32', 's34', 's34', 's38')
    a.I('s_cmp_eq_u32', 's34', '0'); a.I('s_cbranch_scc1', N_)
    a.I('s_or_b32', 's38', 's38', 's34')
    a.L(A_)
    a.I('s_ff1_i32_b32', 's35', 's34'); a.I('s_bitset0_b32', 's34', 's35')
    a.I('v_mov_b32', v(9), 's35'); a.I('s_lshl_b32', 's36', 's39', '2'); a.I('v_add_u32', v(10), 's36', v(7))
    a.I('ds_write_b32', v(10), v(9))
    a.I('s_add_u32', 's39', 's39', '1')
    a.I('s_cmp_lg_u32', 's34', '0'); a.I('s_cbranch_scc1', A_)
    a.I('v_mov_b32', v(9), 's39'); a.I('ds_write_b32', v(8), v(9))
    a.L(N_)
    a.I('s_cmp_lt_u32', 's39', str(exit_count)); a.I('s_cbranch_scc1', L)
    a.L(E)
    if phase == 1:
        a.I('v_mov_b32', v(9), 's38'); a.I('ds_write_b32', v(8), v(9), mods='offset:4'); a.I('s_waitcnt', 'lgkmcnt(0)')
        lds_signal(a, HS_HAND, vb+9)
        st.stamp('C:h8')
    else:
        st.stamp('L:hall')
        a.I('v_and_b32', v(2), '31', v(0)); a.I('v_lshlrev_b32', v(2), '7', v(2)); a.I('v_add_u32', v(2), '8192', v(2))
        a.I('s_mov_b32', 's27', hex(WS_FR + 160*128))
        poll_flags(a, [vb+1, vb+2], 's27', vb+4)
        lds_signal(a, HS_RDY, vb+9)

def c_prefill(a, conv, sg=(36, 37)):
    lane(a, 200)
    for k in range(4): a.I('v_mov_b32', V(202+k), '-1')
    a.I('v_lshrrev_b32', 'v206', '4', 'v200'); a.I('v_and_b32', 'v207', '15', 'v200')
    a.I('v_lshlrev_b32', 'v201', '14', 'v206'); a.I('v_lshl_add_u32', 'v201', 'v207', '4', 'v201')
    a.I('s_lshl_b32', S(sg[0]), 's22', '10'); a.I('s_lshl_b32', S(sg[1]), 's24', '8'); a.I('s_add_u32', S(sg[0]), S(sg[0]), S(sg[1])); a.I('s_add_u32', S(sg[0]), S(sg[0]), hex(WS_ACT))
    a.I('s_mul_i32', S(sg[1]), 's23', str(7*65536)); a.I('s_add_u32', S(sg[0]), S(sg[0]), S(sg[1]))
    sk = uid('PF')
    for T in range(7):
        if T == 3:
            a.I('s_cmp_eq_u32', 's23', '15'); a.I('s_cbranch_scc1', sk)
        a.I('buffer_store_dwordx4', V(202,4), 'v201', S(8,4), S(sg[0]), mods='offen sc1')
        if T < 6: a.I('s_add_u32', S(sg[0]), S(sg[0]), '65536')
    a.L(sk)
    if conv:
        a.I('v_lshlrev_b32', 'v201', '4', 'v200')
        a.I('s_lshl_b32', S(sg[0]), 's48', '14'); a.I('s_lshl_b32', S(sg[1]), 's24', '12'); a.I('s_add_u32', S(sg[0]), S(sg[0]), S(sg[1])); a.I('s_add_u32', S(sg[0]), S(sg[0]), hex(WS_HT4))
        for i in range(4): a.I('buffer_store_dwordx4', V(202,4), 'v201', S(8,4), S(sg[0]), mods=f'offen offset:{1024*i} sc1')

def nc_prefill(a, which):
    lane(a, 8); a.I('v_lshlrev_b32', 'v8', '4', 'v8')
    for k in range(4): a.I('v_mov_b32', V(12+k), '-1')
    if which == 0:
        a.I('s_lshl_b32', 's25', 's48', '3'); a.I('s_add_u32', 's25', 's25', 's3')
        n, tot, base, nw = 4, 2560, WS_HT4, 768
    else:
        a.I('s_lshl_b32', 's25', 's48', '2'); a.I('s_add_u32', 's25', 's25', 's24')
        n, tot, base, nw = 18, 6912, WS_ACT, 384
    for k in range(n):
        sk = uid('NPF')
        a.I('s_add_u32', 's26', 's25', str(nw*k))
        if nw*(k+1) > tot:
            a.I('s_cmp_ge_u32', 's26', str(tot)); a.I('s_cbranch_scc1', sk)
        a.I('s_lshl_b32', 's27', 's26', '10'); a.I('s_add_u32', 's27', 's27', hex(base))
        a.I('buffer_store_dwordx4', V(12,4), 'v8', S(8,4), 's27', mods='offen sc1')
        a.L(sk)
def nc_prefill_publish(a):
    a.I('s_waitcnt', 'vmcnt(0)')
    a.I('s_lshl_b32', 's27', 's48', '7'); a.I('s_add_u32', 's27', 's27', hex(WS_FP))
    publish_last(a, LSYNC, 3, 8, 's27', 16)

def prefill_aggregate(a):
    sk = uid('NA')
    a.I('s_cmp_lg_u32', 's48', '95'); a.I('s_cbranch_scc1', sk); a.I('s_cmp_lg_u32', 's3', '3'); a.I('s_cbranch_scc1', sk)
    lane(a, 10); a.I('v_lshlrev_b32', 'v8', '7', 'v10'); a.I('v_and_b32', 'v9', '31', 'v10'); a.I('v_lshlrev_b32', 'v9', '7', 'v9'); a.I('v_add_u32', 'v9', '8192', 'v9')
    a.I('s_mov_b32', 's27', hex(WS_FP))
    poll_flags(a, [8, 9], 's27', 12)
    a.I('v_mov_b32', 'v36', '0'); a.I('v_mov_b32', 'v37', S(S_NONCE))
    a.I('s_mov_b32', 's27', hex(WS_GO))
    a.I('s_mov_b64', 'exec', '1')
    a.I('buffer_store_dword', 'v37', 'v36', S(8,4), 's27', mods='offen sc1')
    a.I('s_mov_b64', 'exec', '-1')
    a.L(sk)

def c_common_regs(a):
    lane(a, 1)
    a.I('v_lshlrev_b32', 'v3', '4', 'v1'); a.I('v_lshrrev_b32', 'v7', '4', 'v1'); a.I('v_and_b32', 'v6', '15', 'v1')
    a.I('v_lshlrev_b32', 'v4', '14', 'v7'); a.I('v_lshl_add_u32', 'v4', 'v6', '4', 'v4'); a.I('v_add_u32', 'v5', '0x10000', 'v4')

def w_addr(a, rowb, colb, extra_sgpr=None):
    a.I('v_lshrrev_b32', 'v3', '2', 'v6'); a.I('v_lshl_add_u32', 'v3', 'v7', '2', 'v3'); a.I('v_mul_u32_u24', 'v3', str(rowb), 'v3')
    a.I('v_and_b32', 'v2', '3', 'v6'); a.I('v_mul_u32_u24', 'v2', str(colb), 'v2'); a.I('v_add_u32', 'v3', 'v3', 'v2')
    if extra_sgpr is not None: a.I('v_add_u32', 'v3', S(extra_sgpr), 'v3')
    a.I('v_add_u32', 'v2', '0x10000', 'v3'); a.I('v_add_u32', 'v1', '0x20000', 'v3')

def c_gemm1(a, vm, st, done_label, DB=None, hook=None):
    DB = DB1[0]
    ACC, WB, SUM, GRAM, ONES, BB, CSR, B1R = 8, (64, 92, 120), 148, 156, 164, 168, 120, 240
    assert BB + 8*(DB+1) <= 252
    c_common_regs(a)
    w_addr(a, 224, 8)
    a.I('s_lshl_b32', 's30', 's22', '10'); a.I('s_lshl_b32', 's31', 's24', '8'); a.I('s_add_u32', 's30', 's30', 's31')
    a.I('s_add_u32', 's26', 's30', hex(WS_HT4))
    a.I('s_mul_i32', 's25', 's23', '224')
    for k in range(56): a.I('v_mov_b32', V(ACC+k), '0')
    for k in range(8): a.I('v_mov_b32', V(GRAM+k), '0')
    srd(a, 12, P['b1'], 3456)
    g = GemmC(a, vm, 7, 20, 1, 20, 7168, 3584, 32, DB, 26, ACC, WB, BB, [3, 2, 1], 33, BM[0], sent=252)
    a.I('s_mov_b32', 's100', '0')
    lds_wait(a, HS_GC, 1, 252)
    st.stamp('C:gc')
    g.spin_first(252)
    st.stamp('C:sf1')
    g.issue_b(DB)
    lds_wait(a, HS_W1W, 4, 252)
    st.stamp('C:bar3')
    def extra(i, b):
        r = []
        for lt in range(2):
            r.append(('v_mfma_f32_16x16x32_bf16', V(GRAM+4*lt,4), V(b[lt],4), V(b[lt],4), V(GRAM+4*lt,4)))
        return r
    def late(i):
        if i == GO_STEP[0]: lds_signal(a, HS_GO, 252)
    g.run(extra=extra, late=late, st=st, tag='C:g1')
    SLOWG.append(g)
    a.I('s_waitcnt', 'lgkmcnt(0)')
    lds_signal(a, HS_G1D, WB[0])
    st.stamp('C:loop1end')
    TMP = BB+64+12
    a.I('v_and_b32', V(WB[1]+1), '3', 'v6'); a.I('v_lshrrev_b32', V(WB[1]+2), '2', 'v6')
    RS, MR = WB[0], WB[0]+4
    Tm = WB[1]
    for lt in range(2):
        gg = GRAM+4*lt; d = Tm+4+lt
        a.I('v_mov_b32', V(d), V(gg))
        for r in (1, 2, 3):
            a.I('v_cmp_eq_u32', 'vcc', str(r), V(Tm+1)); a.I('v_cndmask_b32', V(d), V(d), V(gg+r), 'vcc')
        a.I('v_cmp_eq_u32', 'vcc', V(Tm+2), 'v7'); a.I('v_cndmask_b32', V(d), '0', V(d), 'vcc')
    a.I('v_cmp_eq_u32', 'vcc', '3', 'v7')
    for lt in range(2): a.I('v_cndmask_b32', V(Tm+6+lt), '0', V(ACC+4*(12+lt)), 'vcc')
    for sw in ('v_permlane16_swap_b32', 'v_permlane32_swap_b32'):
        for k in range(4): a.I('v_mov_b32', V(Tm+10+k), V(Tm+4+k))
        for k in range(4): a.I(sw, V(Tm+4+k), V(Tm+10+k))
        for k in range(4): a.I('v_add_f32', V(Tm+4+k), V(Tm+4+k), V(Tm+10+k))
    for lt in range(2):
        m, qv = Tm+6+lt, Tm+4+lt
        a.I('v_mul_f32', V(m), '0x3acccccd', V(m)); a.I('v_mul_f32', V(qv), '0x3acccccd', V(qv))
        a.I('v_fma_f32', V(qv), '-'+V(m), V(m), V(qv)); a.I('v_add_f32', V(qv), '0x3727c5ac', V(qv)); a.I('v_rsq_f32', V(qv), V(qv))
        a.I('v_mul_f32', V(RS+2*lt), hex(LOG2E), V(qv)); a.I('v_mul_f32', V(MR+2*lt), V(m), V(RS+2*lt))
    a.I('s_add_u32', 's42', 's30', hex(WS_ACT)); a.I('s_mul_i32', 's43', 's23', str(27*GS)); a.I('s_add_u32', 's42', 's42', 's43')
    st.stamp('C:st1')
    lds_wait(a, HS_CSL, 1, Tm)
    st.stamp('C:csl')
    a.I('v_lshlrev_b32', V(Tm+14), '4', 'v7'); a.I('v_add_u32', V(Tm+14), str(CSL), V(Tm+14))
    a.I('v_lshlrev_b32', V(Tm+15), '3', 'v7'); a.I('v_add_u32', V(Tm+15), str(CSL+448), V(Tm+15))
    for T in range(7):
        a.I('ds_read_b128', V(CSR+4*T,4), V(Tm+14), mods=f'offset:{64*T}'); a.I('ds_read_b64', V(B1R+2*T,2), V(Tm+15), mods=f'offset:{32*T}')
    a.I('s_waitcnt', 'lgkmcnt(0)')
    work = BB
    L2P, LNP, B1, X = work, work+2, work+4, work+8
    a.I('s_mov_b32', 's38', hex(LOG2E)); a.I('s_mov_b32', 's39', hex(LOG2E))
    a.I('s_mov_b32', 's40', hex(f2u(-2.0))); a.I('s_mov_b32', 's41', hex(f2u(-2.0)))
    twoL = hex(f2u(2*1.4426950408889634))
    a.I('v_mov_b32', V(L2P), twoL); a.I('v_mov_b32', V(L2P+1), twoL); a.I('v_mov_b32', V(LNP), hex(LN2)); a.I('v_mov_b32', V(LNP+1), hex(LN2))
    for T in range(7):
        a.I('s_add_u32', 's36', 's42', str(4*T*GS))
        CS = CSR+4*T; b = B1R+2*T
        a.I('v_lshlrev_b32', V(B1), '16', V(b)); a.I('v_and_b32', V(B1+1), '0xffff0000', V(b))
        a.I('v_lshlrev_b32', V(B1+2), '16', V(b+1)); a.I('v_and_b32', V(B1+3), '0xffff0000', V(b+1))
        a.I('v_pk_mul_f32', V(B1,2), V(B1,2), S(38,2)); a.I('v_pk_mul_f32', V(B1+2,2), V(B1+2,2), S(38,2))
        base = X + 32*(T & 1)
        xs = [base, base+12]; O = base+24
        for lt in range(2):
            x = xs[lt]; ac = ACC+4*(2*T+lt)
            for p in range(2): a.I('v_pk_fma_f32', V(x+2*p,2), V(CS+2*p,2), V(MR+2*lt,2), V(B1+2*p,2), mods='op_sel_hi:[1,0,1] neg_lo:[0,1,0] neg_hi:[0,1,0]')
            for p in range(2): a.I('v_pk_fma_f32', V(x+2*p,2), V(ac+2*p,2), V(RS+2*lt,2), V(x+2*p,2), mods='op_sel_hi:[1,0,1]')
        for lt in range(2):
            for r in range(4): a.I('v_exp_f32', V(xs[lt]+4+r), V(xs[lt]+r))
        for lt in range(2):
            x = xs[lt]
            for p in range(2): a.I('v_pk_fma_f32', V(x+8+2*p,2), V(x+4+2*p,2), S(38,2), V(L2P,2))
            for p in range(2): a.I('v_pk_fma_f32', V(x+8+2*p,2), V(x+4+2*p,2), V(x+8+2*p,2), V(L2P,2))
        for lt in range(2):
            for r in range(4): a.I('v_rcp_f32', V(xs[lt]+8+r), V(xs[lt]+8+r))
        for lt in range(2):
            x = xs[lt]
            for p in range(2): a.I('v_pk_fma_f32', V(x+8+2*p,2), V(x+8+2*p,2), S(40,2), V(LNP,2))
            for p in range(2): a.I('v_pk_mul_f32', V(x+2*p,2), V(x+2*p,2), V(x+8+2*p,2))
            a.I('v_cvt_pk_bf16_f32', V(O+2*lt), V(x), V(x+1)); a.I('v_cvt_pk_bf16_f32', V(O+2*lt+1), V(x+2), V(x+3))
        if T == 6: a.I('s_mov_b32', 'exec_hi', '0x0000ffff')
        a.I('buffer_store_dwordx4', V(O,4), 'v4', S(8,4), 's36', mods='offen sc1'); vm.op('st')
        if T == 6: a.I('s_mov_b64', 'exec', '-1')
        if T in (0, 3, 6): st.stamp(f'C:e{T}')
        if hook: hook(T)

def g2_params(a):
    a.I('s_lshr_b32', 's50', 's23', '3'); a.I('s_lshl_b32', 's51', 's22', '1'); a.I('s_add_u32', 's50', 's50', 's51')
    a.I('s_and_b32', 's51', 's23', '7')
    a.I('s_mul_i32', 's45', 's51', '27'); a.I('s_lshr_b32', 's45', 's45', '3')
    if not ROT[0]: a.I('s_mov_b32', 's45', '0')
    a.I('s_and_b32', 's52', 's24', '1'); a.I('s_lshr_b32', 's53', 's24', '1')

def c_gemm2_pre(a, vm):
    DB = DB2[0]
    ACC, WB, BB = 8, (48, 112, 164), [72, 80, 96, 104, 148, 156]
    assert DB+1 <= len(BB)
    g2_params(a)
    a.I('s_lshl_b32', 's55', 's50', '6'); a.I('s_lshl_b32', 's56', 's52', '5'); a.I('s_add_u32', 's55', 's55', 's56')
    a.I('s_lshl_b32', 's56', 's55', '3'); a.I('s_add_u32', 's56', 's56', hex(WS_ACT))
    g = GemmC(a, vm, 5, 27, 2, 24, 5120, None, None, DB, 56, ACC, WB, BB[:DB+1], [3, 2, 1], 33, BM[0], SKo=6, rot=None, sent=242, perm=PI)
    SLOWG.append(g)
    a.I('s_mov_b32', 's100', '0')
    g.issue_b(DB)
    return g

def c_gemm2(a, vm, st, g):
    ACC, WB, RES, TMP = 8, (48, 112, 164), 228, 240
    a.I('s_mul_i32', 's57', 's53', '5120')
    a.I('v_add_u32', 'v3', 's57', 'v3'); a.I('v_add_u32', 'v2', '0x10000', 'v3'); a.I('v_add_u32', 'v1', '0x20000', 'v3')
    for k in range(40): a.I('v_mov_b32', V(ACC+k), '0')
    lds_wait(a, HS_W2W, 4, TMP)
    st.stamp('C:bar5')
    def late(i):
        if i != 20: return
        a.I('v_mul_u32_u24', V(TMP), str(5*GS), 'v7'); a.I('v_lshl_add_u32', V(TMP), 'v6', '4', V(TMP))
        a.I('s_add_u32', 's58', 's55', 's53'); a.I('s_lshl_b32', 's58', 's58', '3'); a.I('s_mul_i32', 's59', 's51', str(20*GS)); a.I('s_add_u32', 's58', 's58', 's59'); a.I('s_add_u32', 's58', 's58', hex(WS_HT4))
        for T in range(5):
            a.I('buffer_load_dwordx2', V(RES+2*T,2), V(TMP), S(8,4), 's58', mods='offen sc1'); vm.op('res')
            if T < 4: a.I('s_add_u32', 's58', 's58', str(GS))
    nb = g.run(late=late, st=st, tag='C:g2')
    st.stamp('C:loop2end')
    a.I('s_waitcnt', 'lgkmcnt(0)'); a.I('s_barrier')
    lane(a, 3); a.I('v_lshlrev_b32', 'v3', '4', 'v3')
    a.I('s_mul_i32', 's57', 's24', '5120'); a.I('v_add_u32', V(TMP+1), 's57', 'v3')
    a.I('s_xor_b32', 's59', 's24', '2'); a.I('s_mul_i32', 's59', 's59', '5120'); a.I('v_add_u32', V(TMP+2), 's59', 'v3')
    K = WB[0]
    l0, l1 = uid('KH0'), uid('RED')
    a.I('s_cmp_eq_u32', 's53', '0'); a.I('s_cbranch_scc1', l0)
    for T in range(5):
        a.I('ds_write_b128', V(TMP+1), V(ACC+8*T,4), mods=f'offset:{1024*T}')
        for r in range(4): a.I('v_mov_b32', V(K+4*T+r), V(ACC+8*T+4+r))
    a.I('s_branch', l1)
    a.L(l0)
    for T in range(5):
        a.I('ds_write_b128', V(TMP+1), V(ACC+8*T+4,4), mods=f'offset:{1024*T}')
        for r in range(4): a.I('v_mov_b32', V(K+4*T+r), V(ACC+8*T+r))
    a.L(l1)
    a.I('s_waitcnt', 'lgkmcnt(0)'); a.I('s_barrier')
    R = WB[1]
    for T in range(5): a.I('ds_read_b128', V(R+4*T,4), V(TMP+2), mods=f'offset:{1024*T}')
    srd(a, 16, P['out'], 2048*1280)
    a.I('v_mul_u32_u24', V(TMP), '2560', 'v6'); a.I('v_mul_u32_u24', V(TMP+3), '40', 'v7'); a.I('v_add_u32', V(TMP), V(TMP), V(TMP+3))
    a.I('s_add_u32', 's58', 's55', 's53'); a.I('s_mul_i32', 's58', 's58', '1280'); a.I('s_mul_i32', 's59', 's51', '160'); a.I('s_add_u32', 's58', 's58', 's59')
    vm.wait(['res'])
    X = WB[2]
    for T in range(5):
        a.I('s_waitcnt', f'lgkmcnt({4-T})')
        r0, r1 = RES+2*T, RES+2*T+1
        a.I('v_lshlrev_b32', V(X+4*T), '16', V(r0)); a.I('v_and_b32', V(X+4*T+1), '0xffff0000', V(r0))
        a.I('v_lshlrev_b32', V(X+4*T+2), '16', V(r1)); a.I('v_and_b32', V(X+4*T+3), '0xffff0000', V(r1))
        for r in range(4):
            a.I('v_add_f32', V(K+4*T+r), V(K+4*T+r), V(R+4*T+r)); a.I('v_add_f32', V(X+4*T+r), V(X+4*T+r), V(K+4*T+r))
        a.I('v_cvt_pk_bf16_f32', V(r0), V(X+4*T), V(X+4*T+1)); a.I('v_cvt_pk_bf16_f32', V(r1), V(X+4*T+2), V(X+4*T+3))
        a.I('buffer_store_dwordx2', V(r0,2), V(TMP), S(16,4), 's58', mods=f'offen offset:{8*T}'+OUTM[0]); vm.op('out')
    return nb + 2

W1R = 96
def l_w1_issue(a, vm, throttle=None):
    lane(a, 1)
    a.I('v_mul_u32_u24', 'v2', '4682', 'v1'); a.I('v_lshrrev_b32', 'v2', '16', 'v2')
    a.I('v_mul_u32_u24', 'v3', '14', 'v2'); a.I('v_sub_u32', 'v3', 'v1', 'v3'); a.I('v_lshlrev_b32', 'v3', '4', 'v3')
    a.I('s_mul_i32', 's25', 's23', '216'); a.I('v_add_u32', 'v3', 's25', 'v3')
    a.I('v_mul_u32_u24', 'v2', '3456', 'v2'); a.I('v_add_u32', 'v2', 'v2', 'v3')
    srd(a, 12, P['w1'], 640*3456)
    a.I('s_mul_i32', 's26', 's24', '13824')
    a.I('s_mov_b32', 'exec_lo', '-1'); a.I('s_mov_b32', 'exec_hi', '0x00ffffff')
    for i in range(40):
        a.I('s_add_u32', 's27', 's26', str(i*4*13824))
        a.I('buffer_load_dwordx4', V(W1R+4*i,4), 'v2', S(12,4), 's27', mods='offen'); vm.op(('w1', i))
        if throttle and i >= throttle: vm.wait([('w1', i-throttle)])
    a.I('s_mov_b64', 'exec', '-1')
W1_EARLYSET = [5, 6, 7, 13, 14, 15, 21, 22, 23] + list(range(29, 40))
def l_w1_write(a, vm, idxs=None, patch=True):
    if idxs is None: idxs = list(range(40))
    lane(a, 1)
    a.I('s_mul_i32', 's26', 's24', '896'); a.I('v_lshlrev_b32', 'v3', '4', 'v1'); a.I('v_add_u32', 'v3', 's26', 'v3')
    a.I('v_add_u32', 'v4', '0x10000', 'v3'); a.I('v_add_u32', 'v5', '0x20000', 'v3')
    a.I('s_mov_b32', 'exec_lo', '-1'); a.I('s_mov_b32', 'exec_hi', '0x00ffffff')
    for i in idxs:
        if vm: vm.wait([('w1', i)])
        k, o = divmod(i*3584, 65536)
        a.I('ds_write_b128', V(3+k), V(W1R+4*i,4), mods=f'offset:{o}')
    a.I('s_mov_b64', 'exec', '-1')
    if patch:
        a.I('s_waitcnt', 'lgkmcnt(0)')
        a.I('v_lshrrev_b32', 'v2', '2', 'v1'); a.I('v_lshlrev_b32', 'v2', '4', 'v2'); a.I('v_and_b32', 'v4', '3', 'v1'); a.I('v_add_u32', 'v2', 'v2', 'v4')
        a.I('s_lshl_b32', 's26', 's24', '2'); a.I('v_add_u32', 'v2', 's26', 'v2'); a.I('v_mul_u32_u24', 'v2', '224', 'v2'); a.I('v_add_u32', 'v2', '216', 'v2')
        a.I('v_mov_b32', 'v4', '0x3f803f80'); a.I('v_mov_b32', 'v5', '0x3f803f80')
        a.I('ds_write_b64', 'v2', V(4,2)); a.I('ds_write_b64', 'v2', V(4,2), mods=f'offset:{256*224}')
        a.I('v_add_u32', 'v2', str(2*256*224), 'v2')
        a.I('s_mov_b64', 'exec', '0xffffffff')
        a.I('ds_write_b64', 'v2', V(4,2))
        a.I('s_mov_b64', 'exec', '-1')
    a.I('s_waitcnt', 'lgkmcnt(0)')

W2R = 16
def w2reg(n): return W2R + 4*(n % 60)
def l_w2_setup(a, keep_w1=False):
    g2_params(a)
    lane(a, 1); a.I('v_lshlrev_b32', 'v6', '4', 'v1')
    a.I('s_mul_i32', 's46', 's51', str(270*1024)); a.I('s_add_u32', 's46', 's46', hex(WS_W2F))
    a.I('s_mul_i32', 's27', 's24', '5120')
    a.I('v_add_u32', 'v12', 's27', 'v6'); a.I('v_add_u32', 'v13', '0x10000', 'v12')
def l_w2_issue(a, vm, lo, hi, throttle=None):
    for n in range(lo, hi):
        m, T = divmod(n, 5)
        if T == 0 or n == lo:
            cs = [PI[4*m+w] if 4*m+w < 54 else 0 for w in range(4)]
            a.I('s_mov_b32', 's44', str(cs[0]*5120))
            for w in (1, 2, 3):
                a.I('s_cmp_eq_u32', 's24', str(w)); a.I('s_cmov_b32', 's44', str(cs[w]*5120))
            a.I('s_add_u32', 's44', 's44', 's46')
        if T < 4:
            a.I('buffer_load_dwordx4', V(w2reg(n),4), 'v6', S(8,4), 's44', mods=f'offen offset:{1024*T} sc1')
        else:
            a.I('s_add_u32', 's27', 's44', '4096')
            a.I('buffer_load_dwordx4', V(w2reg(n),4), 'v6', S(8,4), 's27', mods='offen sc1')
        vm.op(('w2', n))
        if throttle and n-lo >= throttle: vm.wait([('w2', n-throttle)])
def l_w2_write(a, vm, ns):
    for n in ns:
        vm.wait([('w2', n)])
        m, T = divmod(n, 5)
        kk, o = divmod(((4*m) % 24)*5120 + T*1024, 65536)
        a.I('ds_write_b128', V(12+kk), V(w2reg(n),4), mods=f'offset:{o}')
def l_gemm2(a, vm, nbar_total):
    for v in range(1, 5):
        a.I('s_barrier')
        if v + 1 <= 4:
            l_w2_write(a, vm, [n for n in range(15*(v+1), 15*(v+2)) if n <= 69])
            a.I('s_waitcnt', 'lgkmcnt(0)')
    for _ in range(nbar_total - 4): a.I('s_barrier')
```

```python
from common import *
KD = lambda: 115328
def stats_task(a, st):
    a.I('v_lshrrev_b32', 'v8', '4', 'v1'); a.I('v_and_b32', 'v9', '15', 'v1')
    a.I('v_mul_u32_u24', 'v10', '1280', 'v8'); a.I('v_lshl_add_u32', 'v10', 'v9', '4', 'v10')
    a.I('s_lshl_b32', 's25', 's48', '5'); a.I('s_lshl_b32', 's26', 's3', '2'); a.I('s_add_u32', 's25', 's25', 's26')
    a.I('s_mul_i32', 's26', 's25', '1280')
    srd(a, 12, P['x'], 2621440)
    for i in range(5): a.I('buffer_load_dwordx4', V(12+4*i,4), 'v10', S(12,4), 's26', mods=f'offen offset:{256*i}')
    nonce_publish(a)
    a.I('s_waitcnt', 'vmcnt(0)')
    st.stamp('N:xrow')
    U = 40
    for k in range(20):
        a.I('v_lshlrev_b32', V(U+2*k), '16', V(12+k)); a.I('v_and_b32', V(U+2*k+1), '0xffff0000', V(12+k))
    a.I('v_pk_add_f32', V(12,2), V(U,2), V(U+2,2))
    for k in range(2, 20): a.I('v_pk_add_f32', V(12,2), V(12,2), V(U+2*k,2))
    a.I('v_add_f32', 'v12', 'v12', 'v13')
    def red16(r):
        for sh in (8, 4, 2, 1): a.I('v_add_f32_dpp', V(r), V(r), V(r), mods=f'row_ror:{sh} row_mask:0xf bank_mask:0xf')
    red16(12)
    a.I('v_mul_f32', 'v12', '0x3acccccd', 'v12'); a.I('v_mov_b32', 'v13', 'v12')
    for k in range(20): a.I('v_pk_add_f32', V(U+2*k,2), V(U+2*k,2), V(12,2), mods='neg_lo:[0,1] neg_hi:[0,1]')
    a.I('v_pk_mul_f32', V(14,2), V(U,2), V(U,2))
    for k in range(1, 20): a.I('v_pk_fma_f32', V(14,2), V(U+2*k,2), V(U+2*k,2), V(14,2))
    a.I('v_add_f32', 'v14', 'v14', 'v15')
    red16(14)
    a.I('v_mov_b32', 'v13', '0x3727c5ac'); a.I('v_fmac_f32', 'v13', '0x3acccccd', 'v14'); a.I('v_rsq_f32', 'v13', 'v13')
    a.I('v_lshlrev_b32', 'v8', '3', 'v8')
    a.I('s_lshl_b32', 's26', 's25', '3'); a.I('s_add_u32', 's26', 's26', hex(WS_STAT))
    a.I('s_mov_b32', 'exec_lo', '0x00010001'); a.I('s_mov_b32', 'exec_hi', '0x00010001')
    a.I('buffer_store_dwordx2', V(12,2), 'v8', S(8,4), 's26', mods='offen sc1')
    a.I('s_mov_b64', 'exec', '-1')
    get_nonce(a, 16)
    a.I('s_lshl_b32', 's27', 's48', '6'); a.I('s_add_u32', 's27', 's27', hex(WS_FS))
    publish_last(a, LSYNC, 3, 8, 's27', 16)
    st.stamp('N:statpub')

def nonce_publish(a):
    sk = uid('NP')
    a.I('s_cmp_lg_u32', 's48', '95'); a.I('s_cbranch_scc1', sk); a.I('s_cmp_lg_u32', 's3', '7'); a.I('s_cbranch_scc1', sk)
    a.I('s_memrealtime', S(34,2))
    a.I('v_mov_b32', 'v36', '0')
    a.I('s_waitcnt', 'lgkmcnt(0)')
    a.I('s_or_b32', S(S_NONCE), 's34', '0x80000000'); a.I('v_mov_b32', 'v37', S(S_NONCE))
    a.I('s_mov_b64', 'exec', '1')
    a.I('buffer_store_dword', 'v37', 'v36', S(60,4), '0', mods='offen sc1')
    a.I('s_mov_b64', 'exec', '-1')
    a.L(sk)

def nonce_aggregate(a):
    sk = uid('NA')
    a.I('s_cmp_lg_u32', 's48', '95'); a.I('s_cbranch_scc1', sk); a.I('s_cmp_lg_u32', 's3', '3'); a.I('s_cbranch_scc1', sk)
    a.I('v_lshlrev_b32', 'v8', '6', 'v1'); a.I('v_add_u32', 'v9', '4096', 'v8'); a.I('v_and_b32', 'v10', '31', 'v1'); a.I('v_lshlrev_b32', 'v10', '6', 'v10'); a.I('v_add_u32', 'v10', '8192', 'v10')
    a.I('s_mov_b32', 's27', hex(WS_FG))
    poll_flags(a, [8, 9, 10], 's27', 12)
    a.I('v_mov_b32', 'v36', '0'); a.I('v_mov_b32', 'v37', S(S_NONCE))
    a.I('s_mov_b32', 's27', hex(WS_GO))
    a.I('s_mov_b64', 'exec', '1')
    a.I('buffer_store_dword', 'v37', 'v36', S(8,4), 's27', mods='offen sc1')
    a.I('s_mov_b64', 'exec', '-1')
    a.L(sk)

def colsum_task(a, st):
    done = uid('CSD')
    a.I('s_sub_u32', 's27', 's48', '64')
    a.I('s_cmp_ge_u32', 's27', '27'); a.I('s_cbranch_scc1', done)
    srd(a, 12, P['w1'], 640*3456)
    a.I('s_mul_i32', 's28', 's3', str(80*3456)); a.I('s_lshl_b32', 's29', 's27', '7'); a.I('s_add_u32', 's28', 's28', 's29')
    a.I('v_lshrrev_b32', 'v8', '3', 'v1'); a.I('v_mul_u32_u24', 'v8', '3456', 'v8'); a.I('v_and_b32', 'v9', '7', 'v1'); a.I('v_lshl_add_u32', 'v8', 'v9', '4', 'v8')
    for i in range(10):
        a.I('buffer_load_dwordx4', V(64+4*i,4), 'v8', S(12,4), 's28', mods='offen')
        if i < 9: a.I('s_add_u32', 's28', 's28', str(8*3456))
    for k in range(8): a.I('v_mov_b32', V(20+k), '0')
    for i in range(10):
        a.I('s_waitcnt', f'vmcnt({9-i})')
        for k in range(4):
            a.I('v_lshlrev_b32', 'v30', '16', V(64+4*i+k)); a.I('v_and_b32', 'v31', '0xffff0000', V(64+4*i+k))
            a.I('v_pk_add_f32', V(20+2*k,2), V(20+2*k,2), V(30,2))
    for k in range(8): a.I('v_add_f32_dpp', V(20+k), V(20+k), V(20+k), mods='row_ror:8 row_mask:0xf bank_mask:0xf')
    for sw in ('v_permlane16_swap_b32', 'v_permlane32_swap_b32'):
        for k in range(8): a.I('v_mov_b32', V(32+k), V(20+k))
        for k in range(8): a.I(sw, V(20+k), V(32+k))
        for k in range(8): a.I('v_add_f32', V(20+k), V(20+k), V(32+k))
    a.I('s_lshl_b32', 's29', 's3', '8'); a.I('v_lshlrev_b32', 'v10', '5', 'v9'); a.I('v_add_u32', 'v10', 's29', 'v10')
    a.I('s_mov_b64', 'exec', '0xff')
    a.I('ds_write_b128', 'v10', V(20,4)); a.I('ds_write_b128', 'v10', V(24,4), mods='offset:16')
    a.I('s_mov_b64', 'exec', '-1')
    a.I('s_waitcnt', 'lgkmcnt(0)')
    lds_signal(a, HS_CS, 12)
    fin = uid('CSF')
    a.I('s_cmp_lg_u32', 's3', '0'); a.I('s_cbranch_scc1', done)
    lds_wait(a, HS_CS, 8, 12)
    a.I('v_lshlrev_b32', 'v10', '2', 'v1')
    for k in range(8): a.I('ds_read_b32', V(20+k), 'v10', mods=f'offset:{256*k}')
    a.I('s_waitcnt', 'lgkmcnt(0)')
    for k in range(1, 8): a.I('v_add_f32', 'v20', 'v20', V(20+k))
    a.I('s_lshl_b32', 's28', 's27', '8'); a.I('s_add_u32', 's28', 's28', hex(WS_CS))
    a.I('buffer_store_dword', 'v20', 'v10', S(8,4), 's28', mods='offen sc1')
    a.L(done)
    get_nonce(a, 16)

def nonconv_ready(a):
    a.I('s_waitcnt', 'vmcnt(0)')
    a.I('s_add_u32', 's27', 's48', '160'); a.I('s_lshl_b32', 's27', 's27', '7'); a.I('s_add_u32', 's27', 's27', hex(WS_FR))
    publish_last(a, LSYNC+32, 3, 8, 's27', 20)

XR, UR, SR = 112, 128, 144
SR2 = 144
def kgen_params(a):
    a.I('s_lshl_b32', 's25', 's48', '2'); a.I('s_add_u32', 's25', 's25', 's24')
    a.I('s_lshl_b32', 's26', 's25', '8'); a.I('s_lshl_b32', 's27', 's47', '7'); a.I('s_add_u32', 's26', 's26', 's27')
    a.I('v_lshlrev_b32', 'v3', '1', 'v1')
    for i, n in enumerate(['Are', 'Aim', 'Bre', 'Bim', 'Cre', 'Cim']):
        srd(a, 12, P[n], 640*128*2)
        a.I('buffer_load_ushort', V(10+i), 'v3', S(12,4), 's26', mods='offen')
    srd(a, 12, P['logdt'], 1280)
    a.I('s_lshl_b32', 's27', 's25', '1'); a.I('v_mov_b32', 'v4', 's27')
    a.I('buffer_load_ushort', 'v16', 'v4', S(12,4), '0', mods='offen')

def gather_issue(a):
    a.I('s_lshl_b32', 's25', 's24', '8'); a.I('v_add_u32', 'v100', 's25', 'v1')
    a.I('v_mul_u32_u24', 'v101', '2560', 'v100')
    srd(a, 12, P['x'], 2621440)
    a.I('s_lshl_b32', 's26', 's48', '3')
    for i in range(4):
        a.I('s_add_u32', 's27', 's26', str(i*64*2560))
        a.I('buffer_load_dwordx2', V(XR+4*i,2), 'v101', S(12,4), 's27', mods='offen')
        a.I('buffer_load_dwordx2', V(XR+4*i+2,2), 'v101', S(12,4), 's27', mods='offen offset:1280')
    a.I('s_add_u32', 's6', S(P['D']), 's26'); a.I('s_addc_u32', 's7', S(P['D']+1), '0')
    a.I('s_load_dwordx2', S(36,2), S(6,2), '0')

def kgen_body(a, st):
    a.I('s_mul_i32', 's28', 's24', str(EREG))
    a.I('s_lshl_b32', 's27', 's47', '8'); a.I('s_add_u32', 's27', 's27', 's28')
    a.I('v_lshlrev_b32', 'v6', '2', 'v1'); a.I('v_add_u32', 'v6', 's27', 'v6')
    a.I('v_add_u32', 'v5', str(E1O), 'v6')
    a.I('v_lshlrev_b32', 'v16', '16', 'v16')
    a.I('v_mul_f32', 'v16', hex(LOG2E), 'v16'); a.I('v_exp_f32', 'v16', 'v16')
    a.I('v_cvt_pk_bf16_f32', 'v16', 'v16', 'v16'); a.I('v_lshlrev_b32', 'v16', '16', 'v16')
    for i in range(6): a.I('v_lshlrev_b32', V(10+i), '16', V(10+i))
    a.I('v_mul_f32', 'v10', 'v16', 'v10'); a.I('v_mul_f32', 'v11', 'v16', 'v11')
    a.I('v_mul_f32', 'v10', hex(LOG2E), 'v10'); a.I('v_mul_f32', 'v11', hex(INV2PI), 'v11')
    a.I('v_mul_f32', 'v12', 'v16', 'v12'); a.I('v_mul_f32', 'v13', 'v16', 'v13')
    T = 18
    cmul(a, 20, 14, 12, T)
    def cis(d, v):
        a.I('v_mul_f32', V(d), hex(f2u(float(v))), 'v10'); a.I('v_mul_f32', V(d+1), hex(f2u(float(v))), 'v11')
        a.I('v_exp_f32', V(d), V(d)); a.I('v_fract_f32', V(d+1), V(d+1))
        a.I('v_cos_f32', V(T), V(d+1)); a.I('v_sin_f32', V(d+1), V(d+1))
        a.I('v_mul_f32', V(d+1), V(d), V(d+1)); a.I('v_mul_f32', V(d), V(d), V(T))
    g1, g2, g3, g4, g5, g6, g7, g8 = 22, 24, 26, 28, 30, 32, 34, 36
    g256, g512, g1024, g768, tmp = 38, 40, 42, 44, 46
    cis(g1, 1); cis(g8, 8); cis(g256, 256); cis(g512, 512); cis(g1024, 1024)
    cmul(a, g2, g1, g1, T); cmul(a, g3, g2, g1, T); cmul(a, g4, g2, g2, T); cmul(a, g5, g4, g1, T); cmul(a, g6, g3, g3, T); cmul(a, g7, g4, g3, T)
    cmul(a, g768, g512, g256, T)
    pk = 48; cnt = [0]
    def st2(row, s_):
        r = pk + (cnt[0] & 3); cnt[0] += 1
        a.I('v_cvt_pk_bf16_f32', V(r), V(s_), '-'+V(s_+1)); a.I('ds_write_b32', 'v6', V(r), mods=f'offset:{row*ROW}')
    a.I('v_mov_b32', V(pk), '0x3f80'); a.I('ds_write_b32', 'v6', V(pk)); cnt[0] = 1
    for row, g in zip(range(1, 8), (g1, g2, g3, g4, g5, g6, g7)): st2(row, g)
    st2(8, g256)
    for row, (p, q) in zip((9, 10, 11), ((g256, g2), (g256, g4), (g256, g6))): cmul(a, tmp, p, q, T); st2(row, tmp)
    st2(12, g512); cmul(a, tmp, g512, g4, T); st2(13, tmp)
    st2(14, g768); cmul(a, tmp, g768, g4, T); st2(15, tmp)
    st2(16, g1024)
    for row, (p, q) in zip((17, 18, 19, 20), ((g1024, g256), (g1024, g512), (g1024, g768), (g1024, g1024))): cmul(a, tmp, p, q, T); st2(row, tmp)
    for row in range(32):
        r = pk + (cnt[0] & 3); cnt[0] += 1
        a.I('v_cvt_pk_bf16_f32', V(r), 'v20', 'v21'); a.I('ds_write_b32', 'v5', V(r), mods=f'offset:{row*ROW}')
        if row < 31: cmul(a, 20, 20, g8, T)
    a.I('v_and_b32', 'v8', '15', 'v1'); a.I('v_lshrrev_b32', 'v9', '4', 'v1')
    a.I('v_mul_u32_u24', 'v13', str(ROW), 'v8'); a.I('v_lshl_add_u32', 'v13', 'v9', '4', 'v13'); a.I('v_add_u32', 'v13', 's28', 'v13')
    a.I('s_mul_i32', 's27', 's47', str(16*ROW)); a.I('s_add_u32', 's27', 's27', str(E1O)); a.I('v_add_u32', 'v12', 's27', 'v13')
    a.I('v_mov_b32', 'v14', 'v8'); a.I('v_mov_b32', 'v15', '8')
    a.I('v_add_u32', 'v16', '248', 'v8')
    a.I('v_cmp_le_u32', 'vcc', '8', 'v8'); a.I('v_cndmask_b32', 'v14', 'v14', 'v16', 'vcc'); a.I('v_mov_b32', 'v17', '4'); a.I('v_cndmask_b32', 'v15', 'v15', 'v17', 'vcc')
    a.I('v_add_u32', 'v16', '372', 'v8')
    a.I('v_cmp_le_u32', 'vcc', '12', 'v8'); a.I('v_cndmask_b32', 'v14', 'v14', 'v16', 'vcc'); a.I('v_mov_b32', 'v17', '2'); a.I('v_cndmask_b32', 'v15', 'v15', 'v17', 'vcc')
    a.I('v_add_u32', 'v16', '434', 'v8')
    a.I('v_cmp_le_u32', 'vcc', '14', 'v8'); a.I('v_cndmask_b32', 'v14', 'v14', 'v16', 'vcc')
    a.I('v_lshlrev_b32', 'v16', '5', 'v8'); a.I('v_add_u32', 'v16', '512', 'v16'); a.I('v_mov_b32', 'v17', '672')
    a.I('v_cmp_lt_u32', 'vcc', '4', 'v8'); a.I('v_cndmask_b32', 'v16', 'v16', 'v17', 'vcc')
    a.I('s_lshl_b32', 's27', 's47', '4'); a.I('v_lshlrev_b32', 'v17', '2', 'v9'); a.I('v_add_u32', 'v17', 's27', 'v17')
    a.I('v_mul_u32_u24', 'v18', 'v15', 'v17'); a.I('v_add_u32', 'v14', 'v14', 'v18'); a.I('v_add_u32', 'v16', 'v16', 'v17')
    a.I('s_mul_i32', 's29', 's24', '2816'); a.I('s_add_u32', 's29', 's29', str(KD())); a.I('v_mov_b32', 'v18', 's29')
    a.I('v_lshl_add_u32', 'v14', 'v14', '2', 'v18'); a.I('v_lshl_add_u32', 'v16', 'v16', '2', 'v18')
    a.I('v_lshlrev_b32', 'v15', '2', 'v15')
    a.I('v_add_u32', 'v19', 'v14', 'v15'); a.I('v_add_u32', 'v20', 'v19', 'v15'); a.I('v_add_u32', 'v21', 'v20', 'v15')
    D = 24
    for k in range(8): a.I('v_mov_b32', V(D+k), '0')
    a.I('s_waitcnt', 'lgkmcnt(0)')
    st.stamp('K:egen')
    a.I('s_barrier')
    F = 32
    def ld(s):
        b = F + 12*(s % 4)
        a.I('ds_read_b128', V(b,4), 'v12', mods=f'offset:{s*64}')
        a.I('ds_read_b128', V(b+4,4), 'v13', mods=f'offset:{s*64}'); a.I('ds_read_b128', V(b+8,4), 'v13', mods=f'offset:{s*64+16*ROW}')
    for s in range(4): ld(s)
    for s in range(8):
        a.I('s_waitcnt', f'lgkmcnt({3*min(3, 7-s)})')
        b = F + 12*(s % 4)
        a.I('v_mfma_f32_16x16x32_bf16', V(D,4), V(b,4), V(b+4,4), V(D,4)); a.I('v_mfma_f32_16x16x32_bf16', V(D+4,4), V(b,4), V(b+8,4), V(D+4,4))
        if s+4 < 8: ld(s+4)
    a.I('s_lshl_b32', 's27', 's47', '10')
    a.I('v_lshlrev_b32', 'v2', '3', 'v1'); a.I('v_sub_u32', 'v2', '2047', 'v2'); a.I('v_subrev_u32', 'v2', 's27', 'v2')
    a.I('s_sub_u32', 's30', 's29', str(17024*4))
    for r, ad in enumerate(('v14', 'v19', 'v20', 'v21')): a.I('ds_write_b32', ad, V(D+r))
    for r in range(4): a.I('ds_write_b32', 'v16', V(D+4+r), mods=f'offset:{4*r}')
    J, Ff = 32, 56
    for i in range(2):
        for e in range(11):
            j = J+12*i+e; f = Ff+12*i+e
            a.I('v_subrev_u32', V(j), str(512*i + e), 'v2')
            if i == 1: a.I('v_max_i32', V(j), '0', V(j))
            a.I('v_cvt_f32_u32', V(f), V(j))
        for e in range(0, 11, 2):
            f = Ff+12*i+e
            if e+1 < 11:
                a.I('v_cvt_pk_bf16_f32', V(f), V(f), V(f+1)); a.I('v_lshrrev_b32', V(f+1), '16', V(f)); a.I('v_and_b32', V(f), '0xffff', V(f))
            else:
                a.I('v_cvt_pk_bf16_f32', V(f), V(f), V(f)); a.I('v_and_b32', V(f), '0xffff', V(f))
        for e in range(11):
            j = J+12*i+e; f = Ff+12*i+e
            a.I('v_lshl_add_u32', V(f), V(f), '2', 's30')
            if i == 1:
                a.I('v_lshl_add_u32', V(j), V(j), '2', 's29')
    a.I('s_add_u32', 's31', 's29', '512'); a.I('v_mov_b32', 'v80', 's31')
    for e in range(11):
        j = J+12+e; f = Ff+12+e
        a.I('v_cmp_lt_u32', 'vcc', V(j), 'v80'); a.I('v_cndmask_b32', V(f), V(f), V(j), 'vcc')
    a.I('v_lshlrev_b32', 'v7', '4', 'v1'); a.I('s_lshl_b32', 's27', 's47', '11'); a.I('s_add_u32', 's27', 's27', 's28'); a.I('v_add_u32', 'v7', 's27', 'v7')
    a.I('s_waitcnt', 'lgkmcnt(0)')
    st.stamp('K:kd')
    a.I('s_barrier')
    G = 84
    G = 32
    for i in range(2):
        for e in range(11): a.I('ds_read_b32', V(G+12*i+e), V(Ff+12*i+e))
    a.I('v_and_b32', 'v19', '15', 'v1'); a.I('v_lshrrev_b32', 'v20', '2', 'v19'); a.I('v_and_b32', 'v19', '3', 'v19')
    a.I('v_mul_u32_u24', 'v20', str(ZST), 'v20'); a.I('v_lshl_add_u32', 'v19', 'v19', '3', 'v20'); a.I('v_add_u32', 'v19', 's28', 'v19')
    a.I('v_mov_b32', 'v20', '0'); a.I('v_mov_b32', 'v21', '0')
    a.I('ds_write_b64', 'v19', V(20,2), mods='offset:4096')
    a.I('s_lshl_b32', 's31', 's47', '31'); a.I('s_mov_b32', 'vcc_lo', '0'); a.I('s_mov_b32', 'vcc_hi', 's31')
    a.I('s_waitcnt', 'lgkmcnt(1)')
    for e in (8, 9, 10): a.I('v_cndmask_b32', V(G+12+e), V(G+12+e), 'v20', 'vcc')
    O = 80
    for i in range(2):
        for c in range(4):
            o = O + 4*((4*i+c) % 4)
            for k in range(4): a.I('v_cvt_pk_bf16_f32', V(o+k), V(G+12*i+c+2*k), V(G+12*i+c+2*k+1))
            a.I('ds_write_b128', 'v7', V(o,4), mods=f'offset:{1024*i+c*ZST}')
    st.stamp('K:z')

def l_u(a, st):
    a.I('s_mul_i32', 's27', 's24', '4608'); a.I('s_add_u32', 's27', 's27', str(UB))
    a.I('v_lshlrev_b32', 'v10', '3', 'v1'); a.I('v_add_u32', 'v10', 's27', 'v10')
    a.I('v_mov_b32', 'v12', '0'); a.I('v_mov_b32', 'v13', '0'); a.I('ds_write_b64', 'v10', V(12,2))
    get_nonce(a, 14)
    st.stamp('L:gdone')
    a.I('v_lshlrev_b32', 'v11', '5', 'v100')
    L = uid('SP'); E = uid('SPX')
    a.I('s_mov_b32', 's101', '0')
    a.L(L)
    a.I('s_add_u32', 's101', 's101', '1'); a.I('s_cmp_gt_u32', 's101', str(SPIN_MAX)); a.I('s_cbranch_scc1', E)
    for i in range(4):
        a.I('s_mov_b32', 's27', hex(WS_STAT + i*2048))
        a.I('buffer_load_dwordx4', V(SR2+8*i,4), 'v11', S(8,4), 's27', mods='offen sc1')
        a.I('buffer_load_dwordx4', V(SR2+8*i+4,4), 'v11', S(8,4), 's27', mods='offen offset:16 sc1')
    a.I('s_waitcnt', 'vmcnt(0)')
    a.I('v_cmp_ne_u32', 'vcc', S(S_NONCE), V(SR2+1))
    for k in range(3, 32, 2):
        a.I('v_cmp_ne_u32', S(34,2), S(S_NONCE), V(SR2+k)); a.I('s_or_b64', 'vcc', 'vcc', S(34,2))
    a.I('s_cbranch_vccnz', L)
    a.L(E)
    st.stamp('L:B1')
    a.I('v_lshlrev_b32', 'v102', '2', 'v100'); a.I('v_add_u32', 'v102', str(UB+512), 'v102')
    for i in range(4):
        x = XR+4*i
        T = 16
        for h in range(2):
            for dwi in range(2):
                r = x + 2*h + dwi
                a.I('v_lshlrev_b32', V(T+4*h+2*dwi), '16', V(r)); a.I('v_and_b32', V(T+4*h+2*dwi+1), '0xffff0000', V(r))
            for c in range(4):
                a.I('v_sub_f32', V(T+4*h+c), V(T+4*h+c), V(SR2+8*i+4*h)); a.I('v_mul_f32', V(T+4*h+c), V(T+4*h+c), V(SR2+8*i+4*h+2))
        for c in range(4):
            a.I('v_cvt_pk_bf16_f32', V(UR+4*i+c), V(T+c), V(T+4+c))
            a.I('ds_write_b32', 'v102', V(UR+4*i+c), mods=f'offset:{c*4608+256*i}')
    for k in range(16): a.I('v_mov_b32', V(64+k), V(XR+k))
    for k in range(16): a.I('v_mov_b32', V(80+k), V(UR+k))
    a.I('v_mov_b32', 'v8', 'v100'); a.I('v_mov_b32', 'v10', 'v102')
    a.I('s_waitcnt', 'lgkmcnt(0)')
    st.stamp('L:udone')

def l_base(a):
    X_, U_ = 64, 80
    a.I('s_lshl_b32', 's38', 's36', '16'); a.I('s_and_b32', 's39', 's36', '0xffff0000'); a.I('s_lshl_b32', 's40', 's37', '16'); a.I('s_and_b32', 's41', 's37', '0xffff0000')
    O = 16
    for i in range(4):
        x = X_+4*i
        for c in range(4):
            u = U_+4*i+c
            xl, xh = x + c//2, x + 2 + c//2
            b0, b1 = O+8*i+c, O+8*i+4+c
            if c % 2 == 0:
                a.I('v_lshlrev_b32', V(b0), '16', V(xl)); a.I('v_lshlrev_b32', V(b1), '16', V(xh))
            else:
                a.I('v_and_b32', V(b0), '0xffff0000', V(xl)); a.I('v_and_b32', V(b1), '0xffff0000', V(xh))
            a.I('v_lshlrev_b32', 'v48', '16', V(u)); a.I('v_and_b32', 'v49', '0xffff0000', V(u))
            a.I('v_fmac_f32', V(b0), S(38+c), 'v48'); a.I('v_fmac_f32', V(b1), S(38+c), 'v49')
    for k in range(32): a.I('v_mov_b32', V(64+k), V(O+k))

def l_hstore(a, vm):
    a.I('v_subrev_u32', 'v10', '512', 'v10')
    B = 32
    for i in range(4):
        for c in range(4): a.I('ds_read_b32', V(B+4*i+c), 'v10', mods=f'offset:{c*4608+256*i}')
    a.I('s_lshl_b32', 's27', 's48', '14'); a.I('s_add_u32', 's27', 's27', hex(WS_HT4))
    a.I('v_lshlrev_b32', 'v11', '4', 'v8')
    for i in range(4):
        a.I('s_waitcnt', f'lgkmcnt({4*(3-i)})')
        T = 16
        for c in range(4):
            y = B+4*i+c
            a.I('v_lshlrev_b32', V(T+c), '16', V(y)); a.I('v_and_b32', V(T+4+c), '0xffff0000', V(y))
        for h in range(2):
            for p in range(2): a.I('v_pk_add_f32', V(T+4*h+2*p,2), V(T+4*h+2*p,2), V(64+8*i+4*h+2*p,2))
        O = 48 + 4*i
        a.I('v_cvt_pk_bf16_f32', V(O), V(T), V(T+1)); a.I('v_cvt_pk_bf16_f32', V(O+1), V(T+2), V(T+3))
        a.I('v_cvt_pk_bf16_f32', V(O+2), V(T+4), V(T+5)); a.I('v_cvt_pk_bf16_f32', V(O+3), V(T+6), V(T+7))
        a.I('s_add_u32', 's28', 's27', str(1024*i))
        a.I('buffer_store_dwordx4', V(O,4), 'v11', S(8,4), 's28', mods='offen sc1'); vm.op('hst')
```

```python
from common import *
import ph1, ph2, ph3, ph4, ffn
KNAME = 'sequential_preLN__ssm_conv_s4__dense_activation_mish__prompt_kernel'

W1_THROTTLE = None
W2_THROTTLE = 4
USE_GATE = False
PF_LATE = True
W1_EARLY_ON = False
PRIO = 0
G2GO = True
W2_SPLIT = 60
HOIST_T = 5
H_EXIT = 8
W1_EARLY = 16
W2_FIRST = 36
def kernel_p(prof=False):
    a = Asm(); st = St(a, prof)
    a.I('s_cmp_ge_u32', 's2', '256'); a.I('s_cbranch_scc1', 'P_END')
    a.I('s_load_dwordx16', S(64,16), S(0,2), '0'); a.I('s_load_dwordx16', S(80,16), S(0,2), '64')
    a.I('v_and_b32', 'v1', '63', 'v0'); a.I('v_lshrrev_b32', 'v2', '6', 'v0')
    a.I('v_readfirstlane_b32', 's3', 'v2')
    a.I('v_lshlrev_b32', 'v3', '2', 'v1'); a.I('v_add_u32', 'v3', str(LSYNC), 'v3'); a.I('v_mov_b32', 'v4', '0')
    a.I('ds_write_b32', 'v3', 'v4'); a.I('ds_write_b32', 'v3', 'v4', mods='offset:256')
    if prof: a.I('v_mov_b32', 'v0', '0')
    st.stamp('start')
    a.I('s_and_b32', 's24', 's3', '3')
    a.I('s_and_b32', 's20', 's2', '7'); a.I('s_lshr_b32', 's21', 's2', '3')
    a.I('s_lshr_b32', 's22', 's20', '1'); a.I('s_lshl_b32', 's22', 's22', '2'); a.I('s_and_b32', 's23', 's21', '3'); a.I('s_add_u32', 's22', 's22', 's23')
    a.I('s_and_b32', 's23', 's20', '1'); a.I('s_lshl_b32', 's23', 's23', '3'); a.I('s_lshr_b32', 's25', 's21', '2'); a.I('s_add_u32', 's23', 's23', 's25')
    a.I('s_mul_i32', 's48', 's20', '20'); a.I('s_add_u32', 's48', 's48', 's21')
    a.I('s_mul_i32', 's25', 's20', '12'); a.I('s_add_u32', 's25', 's25', 's21'); a.I('s_sub_u32', 's25', 's25', '20')
    a.I('s_cmp_ge_u32', 's21', '20'); a.I('s_cselect_b32', 's48', 's25', 's48')
    a.I('s_waitcnt', 'lgkmcnt(0)')
    a.I('s_barrier')
    srd(a, 8, P['ws'], WS_SIZE); srd(a, 60, P['dbg'], 256)
    a.I('s_lshr_b32', 's47', 's3', '2')
    if PRIO:
        a.I('s_cmp_lg_u32', 's47', '0'); a.I('s_cbranch_scc1', 'NOPRIO'); a.I('s_setprio', str(PRIO)); a.L('NOPRIO')
    vc = VmLog(a); vl = VmLog(a)
    a.I('s_cmp_ge_u32', 's21', '20'); a.I('s_cbranch_scc1', 'NONCONV')
    a.I('s_cmp_eq_u32', 's47', '1'); a.I('s_cbranch_scc1', 'L_CONV')
    ph4.c_kgen(a, st)
    ph1.c_conv_setup(a)
    a.I('s_barrier')
    st.stamp('C:bar1')
    ph1.c_conv(a, st)
    a.I('s_barrier')
    a.I('s_branch', 'C_FFN')
    a.L('L_CONV')
    ph4.l_gather(a, st)
    ph2.l_u(a, st)
    a.I('s_barrier')
    a.I('s_cmp_lg_u32', 's24', '0'); a.I('s_cbranch_scc1', 'L_NOGO')
    a.I('v_mov_b32', 'v12', '0'); a.I('s_mov_b32', 's27', hex(WS_GO))
    poll_flags(a, [12], 's27', 14)
    lds_signal(a, HS_GC, 12)
    a.L('L_NOGO')
    ffn.l_w1_issue(a, vl, throttle=W1_THROTTLE)
    st.stamp('L:w1issued')
    ph2.l_base(a)
    lds_wait(a, HS_GC, 1, 12)
    st.stamp('L:go')
    if W1_EARLY_ON: ffn.l_w1_write(a, vl, ffn.W1_EARLYSET, patch=False)
    st.stamp('L:early')
    a.I('s_barrier')
    st.stamp('L:bar2')
    ph2.l_hstore(a, vl)
    st.stamp('L:hdrained')
    ffn.l_w1_write(a, vl, [i for i in range(40) if not (W1_EARLY_ON and i in ffn.W1_EARLYSET)])
    lds_signal(a, HS_W1W, 8)
    st.stamp('L:w1landed')
    a.I('s_branch', 'L_G1B')
    a.L('NONCONV')
    ph2.nonce_publish(a)
    a.I('s_cmp_ge_u32', 's48', '64'); a.I('s_cbranch_scc1', 'NC_CS')
    ph3.stats_task(a, st, lambda: None)
    ffn.nc_prefill(a, 0); ffn.nc_prefill_publish(a)
    lane(a, 1)
    ph3.w2_issue(a)
    ph3.w2_finish(a, st)
    a.I('s_branch', 'NC_RDY2')
    a.L('NC_CS')
    get_nonce(a, 16)
    ffn.nc_prefill(a, 0); ffn.nc_prefill_publish(a)
    ffn.prefill_aggregate(a)
    lane(a, 1)
    ph2.colsum_task(a, st)
    a.L('NC_RDY2')
    a.I('s_barrier')
    a.I('s_cmp_lg_u32', 's47', '0'); a.I('s_cbranch_scc1', 'NC_NOACT')
    ffn.nc_prefill(a, 1)
    a.L('NC_NOACT')
    ph2.nonconv_ready(a)
    st.stamp('N:ready')
    a.I('s_cmp_eq_u32', 's47', '0'); a.I('s_cbranch_scc1', 'C_FFN')
    if USE_GATE:
        a.I('s_cmp_lg_u32', 's24', '0'); a.I('s_cbranch_scc1', 'NC_G')
        a.I('v_mov_b32', 'v8', '0'); a.I('s_mov_b32', 's27', hex(WS_GO))
        poll_flags(a, [8], 's27', 10)
        lds_signal(a, HS_GC, 8)
        a.L('NC_G')
        lds_wait(a, HS_GC, 1, 8)
        st.stamp('N:gate')
    vl2 = VmLog(a)
    ffn.l_w1_issue(a, vl2)
    a.I('s_cmp_lg_u32', 's24', '0'); a.I('s_cbranch_scc1', 'NL_NOGO')
    a.I('v_mov_b32', 'v12', '0'); a.I('s_mov_b32', 's27', hex(WS_GO))
    poll_flags(a, [12], 's27', 14)
    lds_signal(a, HS_GC, 12)
    a.L('NL_NOGO')
    ffn.l_w1_write(a, vl2)
    a.I('s_branch', 'L_G1')
    a.L('C_FFN')
    g2h = [None]
    def ghook(T):
        if T == HOIST_T: g2h[0] = ffn.c_gemm2_pre(a, vc)
    ffn.c_gemm1(a, vc, st, 'C_G1DONE', hook=ghook)
    if g2h[0] is None: g2h[0] = ffn.c_gemm2_pre(a, vc)
    lds_signal(a, HS_G2GO, 240)
    st.stamp('C:actready')
    ffn.c_common_regs(a)
    nb2 = ffn.c_gemm2(a, vc, st, g2h[0])
    if prof:
        a.I('s_waitcnt', 'vmcnt(0)'); st.stamp('end'); st.dump()
    a.I('s_endpgm')
    for g_ in ffn.SLOWG: g_.emit_slow()
    a.L('L_G1')
    lds_signal(a, HS_W1W, 8)
    st.stamp('L:w1landed')
    a.L('L_G1B')
    a.I('s_cmp_lg_u32', 's24', '3'); a.I('s_cbranch_scc1', 'L_NOPOLL')
    lane(a, 16); a.I('v_lshlrev_b32', 'v17', '7', 'v16'); a.I('v_and_b32', 'v18', '31', 'v16'); a.I('v_lshlrev_b32', 'v18', '7', 'v18'); a.I('v_add_u32', 'v18', '8192', 'v18')
    a.I('s_mov_b32', 's27', hex(WS_FR + 160*128))
    poll_flags(a, [17, 18], 's27', 20)
    lds_signal(a, HS_RDY, 22)
    a.L('L_NOPOLL')
    lane(a, 1); a.I('v_min_u32', 'v8', '53', 'v1'); a.I('v_lshlrev_b32', 'v8', '6', 'v8')
    a.I('s_mov_b32', 's27', hex(WS_FT))
    poll_flags(a, [8], 's27', 10)
    vl.log = []
    lds_wait(a, HS_GO, 4, 8)
    a.I('s_cmp_lg_u32', 's24', '0'); a.I('s_cbranch_scc1', 'L_NOCS')
    ffn.l_csb1(a)
    a.L('L_NOCS')
    ffn.l_w2_setup(a)
    ffn.l_w2_issue(a, vl, 0, W2_SPLIT, throttle=W2_THROTTLE)
    st.stamp('L:w2a2')
    lds_wait(a, HS_G1D, 4, 8)
    ffn.l_w2_write(a, vl, range(0, 30))
    a.I('s_waitcnt', 'lgkmcnt(0)')
    lds_signal(a, HS_W2W, 8)
    st.stamp('L:w2w')
    if G2GO: lds_wait(a, HS_G2GO, 4, 8)
    ffn.l_w2_issue(a, vl, W2_SPLIT, 70)
    st.stamp('L:w2b')
    ffn.l_gemm2(a, vl, nb2)
    if prof:
        st.stamp('end'); st.dump()
    a.L('P_END')
    a.I('s_endpgm')
    return a, dict(name=KNAME, grid=256, block=512, lds=LDS_TOTAL, vgpr=256, sgpr=102, stamps=st.names)

if __name__ == '__main__':
    import json
    sys.path.insert(0, 'dev')
    out = sys.argv[1]; prof = len(sys.argv) > 2 and sys.argv[2] == 'p'
    for kv in sys.argv[3:]:
        k, v = kv.split('=')
        if k == 'sleep': RC_SLEEP[0] = int(v)
        if k == 'rot': ffn.ROT[0] = bool(int(v))
        if k == 'thr': globals()['W2_THROTTLE'] = int(v)
        if k == 'bm': ffn.BM[0] = v.replace('+', ' ')
        if k == 'db2': ffn.DB2[0] = int(v)
        if k == 'db1': ffn.DB1[0] = int(v)
        if k == 'w1e': globals()['W1_EARLY_ON'] = bool(int(v))
        if k == 'lsleep': LSLEEP[0] = int(v)
        if k == 'prio': globals()['PRIO'] = int(v)
        if k == 'g2go': globals()['G2GO'] = bool(int(v))
        if k == 'hoist': globals()['HOIST_T'] = int(v)
        if k == 'w2s': globals()['W2_SPLIT'] = int(v)
        if k == 'probe': ffn.PROBE[0] = [int(x) for x in v.split(',')]
        if k == 'pfl': globals()['PF_LATE'] = bool(int(v))
        if k == 'outm': ffn.OUTM[0] = ' ' + v.replace('+', ' ')
        if k == 'stag': ffn.STAG[0] = int(v)
        if k == 'stepst': ffn.STEPST[0] = bool(int(v))
        if k == 'go': ffn.GO_STEP[0] = int(v)
        if k == 'gate': globals()['USE_GATE'] = bool(int(v))
        if k == 'hexit': globals()['H_EXIT'] = int(v)
        if k == 'gp': ph4.GATE_PAR[0] = int(v)
        if k == 'lpos': ffn.LPOS[:] = [int(x) for x in v.split(',')]
    a, m = kernel_p(prof)
    n = a.pad_hazards()
    HEADER = open('sequential_preLN__ssm_conv_s4__dense_activation_mish__prompt.s.ref').read().split('; Override launch')[0]
    o = [HEADER.rstrip(), f"; @launch grid=({m['grid']},1,1) block=({m['block']},1,1) lds={m['lds']}", '.amdgcn_target "amdgcn-amd-amdhsa--gfx950"', '.text',
         f".globl {m['name']}", '.p2align 8', f".type {m['name']},@function", f"{m['name']}:", a.text().rstrip(),
         '.section .rodata,"a"', '.p2align 6', f".amdhsa_kernel {m['name']}", f"  .amdhsa_next_free_vgpr {m['vgpr']}", f"  .amdhsa_next_free_sgpr {m['sgpr']}",
         f"  .amdhsa_accum_offset {m['vgpr']}", "  .amdhsa_group_segment_fixed_size 0", "  .amdhsa_kernarg_size 128", "  .amdhsa_user_sgpr_count 2",
         "  .amdhsa_user_sgpr_kernarg_segment_ptr 1", "  .amdhsa_system_sgpr_workgroup_id_x 1", ".end_amdhsa_kernel"]
    open(out, 'w').write('\n'.join(o)+'\n')
    json.dump(m['stamps'], open(out.replace('.s', '.json'), 'w'))
    print('nops inserted', n, 'instrs', len(a.items))
```
